```python
import torch

def _softmax(x, axis=-1):
    return torch.softmax(x, dim=axis)
def _gelu(x):
    return torch.nn.functional.gelu(x, approximate="tanh")
def _silu(x):
    return torch.nn.functional.silu(x)
def _sigmoid(x):
    return torch.sigmoid(x)
def _layernorm(x, axis=-1, eps=1e-5):
    m = x.mean(dim=axis, keepdim=True)
    v = x.var(dim=axis, keepdim=True, unbiased=False)
    return (x - m) / torch.sqrt(v + eps)
def _scatter_add(tgt, idx, src, axis=0):
    return tgt.clone().index_add_(axis, idx, src)
def _segment_sum(src, seg, n):
    out = torch.zeros((n,) + src.shape[1:], dtype=src.dtype)
    return out.index_add_(0, seg, src)
def _pad(x, pw):
    flat = tuple(v for pair in reversed(pw) for v in pair)
    return torch.nn.functional.pad(x, flat)

kernel_name = 'concat_heads__gqa_block_cached__sliding_block_cached__decode'

def setup_inputs():

    _w = (lambda a: (lambda t: t.to(torch.bfloat16) if t.is_floating_point() else t)(torch.as_tensor(a)))
    def _A_setup():
        B, Sq, D = 1, 1, 1024
        Hq, Hkv, Sk, Dh = 32, 4, 65536, 128
        assert Hq % Hkv == 0, (Hq, Hkv)
        return {
            "x": _w((lambda *s: torch.randn(*s, dtype=torch.bfloat16) * 0.4)(B, Sq, D)),
            "k_cache": _w((lambda *s: torch.randn(*s, dtype=torch.bfloat16) * 3.2)(B, Hkv, Sk, Dh)),
            "v_cache": _w((lambda *s: torch.randn(*s, dtype=torch.bfloat16) * 0.8)(B, Hkv, Sk, Dh)),
            "wq": _w((lambda *s: torch.randn(*s, dtype=torch.bfloat16) * 3.2)(D, Hq * Dh) * (D ** -0.5)),
            "wo": _w((lambda *s: torch.randn(*s, dtype=torch.bfloat16) * 0.8)(Hq * Dh, D) * ((Hq * Dh) ** -0.5)),
        }
    _A_in = _A_setup()

    def _B_setup():
        B, Sq, D = 1, 1, 1024
        Hq, Hkv, Sk, Dh = 32, 4, 65536, 128
        assert Hq % Hkv == 0, (Hq, Hkv)
        return {
            "x": _w((lambda *s: torch.randn(*s, dtype=torch.bfloat16) * 0.2)(B, Sq, D)),
            "k_cache": _w((lambda *s: torch.randn(*s, dtype=torch.bfloat16) * 3.2)(B, Hkv, Sk, Dh)),
            "v_cache": _w((lambda *s: torch.randn(*s, dtype=torch.bfloat16) * 1.6)(B, Hkv, Sk, Dh)),
            "wq": _w((lambda *s: torch.randn(*s, dtype=torch.bfloat16) * 3.2)(D, Hq * Dh) * (D ** -0.5)),
            "wo": _w((lambda *s: torch.randn(*s, dtype=torch.bfloat16) * 1.6)(Hq * Dh, D) * ((Hq * Dh) ** -0.5)),
        }
    _B_in = _B_setup()

    return {
        "A_x": _A_in["x"],
        "A_k_cache": _A_in["k_cache"],
        "A_v_cache": _A_in["v_cache"],
        "A_wq": _A_in["wq"],
        "A_wo": _A_in["wo"],
        "B_x": _B_in["x"],
        "B_k_cache": _B_in["k_cache"],
        "B_v_cache": _B_in["v_cache"],
        "B_wq": _B_in["wq"],
        "B_wo": _B_in["wo"],
    }

def reference(A_x, A_k_cache, A_v_cache, A_wq, A_wo, B_x, B_k_cache, B_v_cache, B_wq, B_wo):
    def _A_ref(x, k_cache, v_cache, wq, wo):
        B, Sq, D = x.shape
        Hq, Dh = 32, 128
        Hkv = k_cache.shape[1]
        rep = Hq // Hkv
        q = (lambda x, *d: x.permute(*d))((x @ wq).reshape(B, Sq, Hq, Dh), 0, 2, 1, 3)
        k = (lambda x, n, axis: torch.repeat_interleave(x, n, dim=axis))(k_cache, rep, axis=1)
        v = (lambda x, n, axis: torch.repeat_interleave(x, n, dim=axis))(v_cache, rep, axis=1)
        scores = torch.einsum("bhqd,bhkd->bhqk", q, k) * (Dh ** -0.5)
        p = _softmax(scores, axis=-1)
        o = torch.einsum("bhqk,bhkd->bhqd", p, v)
        return (lambda x, *d: x.permute(*d))(o, 0, 2, 1, 3).reshape(B, Sq, Hq * Dh) @ wo

    def _B_ref(x, k_cache, v_cache, wq, wo):
        B, Sq, D = x.shape
        Hq, Dh = 32, 128
        Hkv, Sk = k_cache.shape[1], k_cache.shape[2]
        W = min(4096, max(256, Sk // 4))
        rep = Hq // Hkv
        q = (lambda x, *d: x.permute(*d))((x @ wq).reshape(B, Sq, Hq, Dh), 0, 2, 1, 3)
        k = (lambda x, n, axis: torch.repeat_interleave(x, n, dim=axis))(k_cache[:, :, Sk - W:, :], rep, axis=1)
        v = (lambda x, n, axis: torch.repeat_interleave(x, n, dim=axis))(v_cache[:, :, Sk - W:, :], rep, axis=1)
        scores = torch.einsum("bhqd,bhkd->bhqk", q, k) * (Dh ** -0.5)
        p = _softmax(scores, axis=-1)
        o = torch.einsum("bhqk,bhkd->bhqd", p, v)
        return (lambda x, *d: x.permute(*d))(o, 0, 2, 1, 3).reshape(B, Sq, Hq * Dh) @ wo

    a = _A_ref(A_x, A_k_cache, A_v_cache, A_wq, A_wo)
    b = _B_ref(B_x, B_k_cache, B_v_cache, B_wq, B_wo)
    return torch.concatenate([a, b], axis=-1)
```

```python
import sys
NAME = 'concat_heads__gqa_block_cached__sliding_block_cached__decode'

HEADER = open('cdna_kernels/' + NAME + '.s.ref').read().split('; Override launch')[0]

WS_Q = 0x4000
WS_QF = 0x48000
IB = 8448
WS_ML = 0x50000
WS_I1 = 0xA0000
WS_I2 = 0x2C0000
WS_BYTES = 0x400000
STAMP_OFF = 0x10000000
L_CH, L_QS, L_QA, L_QB, L_MISC = 0, 16384, 20480, 22784, 25088
QSTR = 272
L_MA, L_LA = L_MISC, L_MISC + 64
L_C = L_MISC + 128
C_Q, C_M, C_O, C_L, F_QA, F_QB, F_O, C_B, C_D, F_X1, F_X2, F_X3, F_CH = [L_C + 4 * i for i in range(13)]
L_O = L_MISC + 256
L_B = 25600
LDS_BYTES = L_B + 32768

class Gen:
    def __init__(self, stamps=False, opts=None):
        self.L = []
        self.stamps = stamps
        self.nlab = 0
        self.o = dict(inter=8)
        if opts: self.o.update(opts)
    def A(self, s): self.L.append('    ' + s)
    def lab(self, s): self.L.append(s + ':')
    def newlab(self, p='L'):
        self.nlab += 1
        return f'{p}_{self.nlab}'
    def stamp(self, i):
        if self.stamps: self.A(f's_memrealtime s[{68+2*i}:{69+2*i}]')

    def lds_wait(self, addr, val, sleep=1, areg=4):
        A = self.A
        l = self.newlab('W'); d = self.newlab('D')
        A('s_mov_b32 s49, 0x40000')
        self.lab(l)
        A(f'ds_read_b32 v5, v{areg} offset:{addr}')
        A('s_waitcnt lgkmcnt(0)')
        A('v_readfirstlane_b32 s48, v5')
        A(f's_cmp_ge_u32 s48, {val}')
        A(f's_cbranch_scc1 {d}')
        if sleep: A(f's_sleep {sleep}')
        A('s_sub_u32 s49, s49, 1')
        A(f's_cbranch_scc0 {l}')
        self.lab(d)
    def lds_inc(self, addr, areg=4):
        A = self.A
        A('s_mov_b64 exec, 1')
        A(f'ds_add_u32 v{areg}, v6 offset:{addr}')
        A('s_mov_b64 exec, -1')
    def lds_inc_rtn(self, addr):
        A = self.A
        A('s_mov_b64 exec, 1')
        A(f'ds_add_rtn_u32 v5, v4, v6 offset:{addr}')
        A('s_mov_b64 exec, -1')
        A('s_waitcnt lgkmcnt(0)')
        A('v_readfirstlane_b32 s48, v5')
    def tag(self):
        self.A('s_mul_i32 s55, s54, 0x9e3779b1')
        self.A('s_add_u32 s55, s55, 0x7f4a7c15')

    def perm_tile(self, src, tt, dst):
        i, h = tt >> 1, tt & 1
        sel = 's31' if h else 's30'
        for jp in range(4):
            self.A(f'v_perm_b32 v{dst+jp}, v{src+4*(2*jp+1)+i}, v{src+4*(2*jp)+i}, {sel}')

    def xg_reduce(self, op, regs, tmps):
        A = self.A
        for sw in ('v_permlane16_swap_b32', 'v_permlane32_swap_b32'):
            for r, t in zip(regs, tmps): A(f'v_mov_b32 v{t}, v{r}')
            A('s_nop 1')
            for r, t in zip(regs, tmps): A(f'{sw} v{r}, v{t}')
            A('s_nop 1')
            for r, t in zip(regs, tmps): A(f'{op} v{r}, v{r}, v{t}')
    def ror_reduce(self, op, regs, n):
        A = self.A
        A('s_nop 1')
        for r in regs: A(f'{op}_dpp v{r}, v{r}, v{r} row_ror:{n} row_mask:0xf bank_mask:0xf')

    def gather(self, dst, sbase, N, tagged):
        A = self.A
        l = self.newlab('G'); d = self.newlab('GD')
        A('s_setprio 3')
        A(f's_add_u32 s51, {sbase}, 4096')
        A('s_mov_b32 s49, 0x8000')
        self.lab(l)
        for k in range(N):
            r = dst + 4 * k
            A(f'buffer_load_dwordx4 v[{r}:{r+3}], v1, s[44:47], {sbase if k < 4 else "s51"} offen offset:{1024*(k&3)} sc1')
        for k in range(N):
            r = dst + 4 * k
            A(f's_waitcnt vmcnt({N-1-k})')
            if tagged:
                if k == 0:
                    A(f'v_min_u32 v5, v{r+1}, v{r+3}'); A(f'v_max_u32 v7, v{r+1}, v{r+3}')
                else:
                    A(f'v_min3_u32 v5, v5, v{r+1}, v{r+3}'); A(f'v_max3_u32 v7, v7, v{r+1}, v{r+3}')
            else:
                if k == 0:
                    A(f'v_max_u32 v5, v{r}, v{r+1}'); A(f'v_max_u32 v7, v{r+2}, v{r+3}')
                else:
                    A(f'v_max3_u32 v5, v5, v{r}, v{r+1}'); A(f'v_max3_u32 v7, v7, v{r+2}, v{r+3}')
        if tagged:
            A('v_cmp_ne_u32 vcc, s55, v5')
            A('v_cmp_ne_u32 s[66:67], s55, v7')
            A('s_or_b64 s[66:67], s[66:67], vcc')
            A(f's_cbranch_scc0 {d}')
        else:
            A('v_max_u32 v5, v5, v7')
            A('v_cmp_eq_u32 vcc, -1, v5')
            A(f's_cbranch_vccz {d}')
        A('s_sub_u32 s49, s49, 1')
        A(f's_cbranch_scc0 {l}')
        self.lab(d)

    def q_gather(self, br):
        A = self.A
        A('v_lshrrev_b32 v8, 5, v0'); A('v_and_b32 v5, 31, v0')
        A(f'v_mul_u32_u24 v8, {QSTR}, v8'); A('v_lshl_add_u32 v8, v5, 3, v8')
        A(f'v_add_u32 v8, {L_QB if br else L_QA}, v8')
        A(f'v_add_u32 v9, {4*QSTR}, v8')
        A('s_lshl_b32 s52, s22, 3'); A('s_and_b32 s51, s2, 7'); A('s_add_u32 s52, s52, s51')
        if not br:
            l = self.newlab('H'); d = self.newlab('HD')
            A('s_lshl_b32 s51, s52, 8'); A(f's_add_u32 s51, s51, {WS_QF}')
            A('s_and_b32 s50, s55, 0xff'); A('s_mul_i32 s50, s50, 0x01010101')
            A('s_mov_b32 s49, 0x8000')
            self.lab(l)
            A('s_load_dwordx8 s[56:63], s[28:29], s51 glc')
            A('s_waitcnt lgkmcnt(0)')
            for k in range(8): A(f's_xor_b32 s{56+k}, s{56+k}, s50')
            A('s_or_b64 s[56:57], s[56:57], s[58:59]'); A('s_or_b64 s[60:61], s[60:61], s[62:63]'); A('s_or_b64 s[56:57], s[56:57], s[60:61]')
            A(f's_cbranch_scc0 {d}')
            A('s_sleep 2')
            A('s_sub_u32 s49, s49, 1')
            A(f's_cbranch_scc0 {l}')
            self.lab(d)
            self.stamp(10)
        A('s_lshl_b32 s52, s52, 12'); A(f's_add_u32 s52, s52, {WS_Q + br * 131072}')
        self.gather(48, 's52', 4, True)
        for k in range(4):
            o = 2 * QSTR * (k & 1) // 4
            A(f'ds_write2_b32 v{8 + (k >> 1)}, v{48+4*k}, v{50+4*k} offset0:{o} offset1:{o+1}')
        A(f'ds_write_b32 v4, v6 offset:{F_QB if br else F_QA}')

    def k_loads(self):
        for n in range(8):
            for hf in range(2):
                r = 64 + 8 * n + 4 * hf
                self.A(f'buffer_load_dwordx4 v[{r}:{r+3}], v2, s[32:35], s{96+(n>>2)} offen offset:{1024*(n&3)+128*hf} nt')
                self.A('s_nop 0')
    def v_issue(self):
        self.A('s_setprio 1')
        for t in range(4):
            for j in range(4):
                r = 64 + 16 * t + 4 * j
                self.A(f'buffer_load_dwordx4 v[{r}:{r+3}], v1, s[36:39], s{96+t} offen offset:{1024*j} nt')
                self.A('s_nop 0')
        self.A('s_setprio 2')
    def vS(self, reg):
        A = self.A
        A(f'v_lshrrev_b32 v{reg}, 3, v0'); A(f'v_mul_u32_u24 v{reg}, {IB}, v{reg}'); A(f'v_lshl_add_u32 v{reg}, v10, 2, v{reg}')
    def ml_store(self, br):
        A = self.A
        A('s_setprio 3')
        A('v_mov_b32 v13, s55'); A('v_mov_b32 v15, s55')
        self.vS(7)
        if br: A(f's_add_u32 s5, s5, {16*IB}')
        A('s_mov_b64 exec, 0xffffffff')
        A(f'buffer_store_dwordx4 v[12:15], v7, s[44:47], s5 offen sc1')
        A('s_mov_b64 exec, -1')
        A('s_setprio 2')
    def op_offsets(self, br):
        A = self.A
        for q in range(4): A(f's_add_u32 s{56+q}, s6, {br * 128 * IB + 8 * q * IB}')

    def task(self, isB):
        A = self.A
        LQ = L_QB if isB else L_QA
        if isB:
            A(f'v_add_u32 v13, {L_B}, v1')
            self.lds_wait(C_B, 4)
            for n in range(16): A(f'ds_read_b128 v[{64+4*n}:{67+4*n}], v13 offset:{1024*n}')
            self.lds_wait(F_QB, 1)
        else:
            self.k_loads()
            self.stamp(2)
            nod = self.newlab('NOD'); wq = self.newlab('WQ'); nq = self.newlab('NQ')
            A('s_cmp_lt_u32 s3, 12'); A(f's_cbranch_scc1 {nod}')
            A('s_mov_b32 s56, s16'); A('s_mov_b32 s57, s17'); A('s_mov_b32 s58, 0x4000000'); A('s_mov_b32 s59, 0x20000')
            A('s_mov_b32 s60, s18'); A('s_mov_b32 s61, s19'); A('s_mov_b32 s62, 0x4000000'); A('s_mov_b32 s63, 0x20000')
            A('s_lshl_b32 s50, s22, 24'); A('s_lshl_b32 s48, s23, 14'); A('s_add_u32 s50, s50, s48'); A(f's_add_u32 s50, s50, {61440*256}')
            A('s_sub_u32 s52, s3, 12')
            A('s_lshl_b32 s48, s52, 11'); A('s_add_u32 s51, s50, s48')
            A('s_lshl_b32 s48, s52, 12'); A('s_add_u32 s50, s50, s48')
            A(f's_add_u32 s48, s48, {L_B}')
            A('v_and_b32 v7, 0xfff, v2'); A('v_and_b32 v5, 2, v0'); A('v_lshl_add_u32 v7, v5, 12, v7')
            for j, (imm, adj) in enumerate(((0, 896), (128, 128), (1024, 896), (1152, 0))):
                A('s_mov_b32 m0, s48'); A(f's_add_u32 s48, s48, {adj}')
                A(f'buffer_load_dwordx4 v7, s[56:59], s51 offen offset:{imm} nt lds')
            A(f's_add_u32 s48, s48, {16384 - 1920}')
            A('s_mov_b32 m0, s48'); A('s_nop 0')
            for j in range(4):
                A(f'buffer_load_dwordx4 v1, s[60:63], s50 offen offset:{1024*j} nt lds')
                A('s_nop 0')
            self.stamp(10)
            self.lds_wait(F_QA, 1)
            A('s_waitcnt vmcnt(8)')
            A(f's_branch {wq}')
            self.lab(nod)
            A('s_cmp_lg_u32 s3, 0'); A(f's_cbranch_scc1 {nq}')
            self.q_gather(0)
            self.stamp(9)
            self.lab(nq)
            self.lds_wait(F_QA, 1)
            A('s_waitcnt vmcnt(0)')
            self.lab(wq)
            self.tag()
        for hf in range(2):
            A(f'ds_read_b128 v[{16+4*hf}:{19+4*hf}], v3 offset:{LQ + 128*hf}')
        A('s_waitcnt lgkmcnt(0)')
        if not isB: self.stamp(3)
        for hf in range(2):
            for n in range(8):
                r = 64 + 8 * n + 4 * hf
                c = '0' if hf == 0 else f'v[{32+4*n}:{35+4*n}]'
                A(f'v_mfma_f32_16x16x32_bf16 v[{32+4*n}:{35+4*n}], v[{r}:{r+3}], v[{16+4*hf}:{19+4*hf}], {c}')
        A('s_nop 0')
        for n in range(8):
            d = 32 + 4 * n
            A(f'v_cndmask_b32 v{d}, v{d+3}, v{d}, s[14:15]')
            A(f'v_cndmask_b32 v{d+1}, v{d+1}, v{d+2}, s[14:15]')
        for n in range(8):
            d = 32 + 4 * n
            A(f'v_add_f32_dpp v{24+n}, v{d+1}, v{d} row_ror:8 row_mask:0xf bank_mask:0xf')
        A('v_max3_f32 v8, v24, v25, v26')
        A('v_max3_f32 v9, v27, v28, v29')
        A('v_max3_f32 v8, v8, v30, v31')
        A('v_max_f32 v8, v8, v9')
        self.ror_reduce('v_max_f32', [8], 8)
        self.xg_reduce('v_max_f32', [8], [9])
        if isB:
            for n in range(16): A(f'ds_read_b128 v[{64+4*n}:{67+4*n}], v13 offset:{16384 + 1024*n}')
        else:
            A('s_mov_b64 exec, 0xff')
            A(f'ds_max_f32 v10, v8 offset:{L_MA}')
            A('s_mov_b64 exec, -1')
            self.lds_inc(C_M)
            self.stamp(4)
            young = self.newlab('Y'); nqb = self.newlab('NQB')
            A('s_cmp_lg_u32 s3, 5'); A(f's_cbranch_scc1 {nqb}')
            self.q_gather(1)
            A('s_setprio 2')
            self.stamp(9)
            self.lab(nqb)
            A('s_cmp_ge_u32 s3, 4')
            A(f's_cbranch_scc1 {young}')
            self.v_issue()
            self.lab(young)
        S = list(range(24, 32))
        for k in range(4): A(f'v_cvt_pk_bf16_f32 v{32+k}, v{S[2*k]}, v{S[2*k+1]}')
        for k in range(4):
            A(f'v_lshlrev_b32 v{S[2*k]}, 16, v{32+k}')
            A(f'v_and_b32 v{S[2*k+1]}, s100, v{32+k}')
        for x in S: A(f'v_mul_f32 v{x}, s101, v{x}')
        for k in range(4): A(f'v_cvt_pk_bf16_f32 v{32+k}, v{S[2*k]}, v{S[2*k+1]}')
        for k in range(4):
            A(f'v_lshlrev_b32 v{S[2*k]}, 16, v{32+k}')
            A(f'v_and_b32 v{S[2*k+1]}, s100, v{32+k}')
        if not isB:
            self.lds_wait(C_M, 16)
            self.stamp(5)
            A(f'ds_read_b32 v8, v10 offset:{L_MA}')
            A('s_waitcnt lgkmcnt(0)')
        A('v_cvt_pk_bf16_f32 v8, v8, v8')
        A('v_and_b32 v8, s100, v8')
        A('v_mul_f32 v8, s101, v8')
        A('v_cvt_pk_bf16_f32 v8, v8, v8')
        A('v_and_b32 v12, s100, v8')
        for x in S: A(f'v_sub_f32 v{x}, v{x}, v12')
        for x in S: A(f'v_mul_f32 v{x}, 0x3fb8aa3b, v{x}')
        for x in S: A(f'v_exp_f32 v{x}, v{x}')
        A('s_nop 0')
        for k in range(4): A(f'v_cvt_pk_bf16_f32 v{32+k}, v{S[2*k]}, v{S[2*k+1]}')
        for k in range(4): A(f'v_add_f32 v{36+k}, v{S[2*k]}, v{S[2*k+1]}')
        A('v_add_f32 v36, v36, v37'); A('v_add_f32 v38, v38, v39'); A('v_add_f32 v14, v36, v38')
        for k in range(4): A(f'v_cndmask_b32 v{16+k}, 0, v{32+k}, s[14:15]')
        for k in range(4): A(f'v_cndmask_b32 v{28+k}, v{32+k}, 0, s[14:15]')
        for k in range(4): A(f'v_mov_b32_dpp v{24+k}, v{16+k} row_ror:8 row_mask:0xf bank_mask:0xf')
        for k in range(4): A(f'v_mov_b32_dpp v{20+k}, v{28+k} row_ror:8 row_mask:0xf bank_mask:0xf')
        self.ror_reduce('v_add_f32', [14], 8)
        self.xg_reduce('v_add_f32', [14], [9])
        if not isB:
            nopub = self.newlab('NP')
            A('s_mov_b64 exec, 0xff')
            A(f'ds_add_f32 v10, v14 offset:{L_LA}')
            A('s_mov_b64 exec, -1')
            self.lds_inc_rtn(C_L)
            A('s_cmp_lg_u32 s48, 15')
            A(f's_cbranch_scc1 {nopub}')
            A(f'ds_read_b32 v14, v10 offset:{L_LA}')
            A('s_waitcnt lgkmcnt(0)')
            self.ml_store(0)
            self.lab(nopub)
        for x in range(32, 48): A(f'v_mov_b32 v{x}, 0')
        self.vS(58)
        self.op_offsets(1 if isB else 0)
        if not isB:
            old = self.newlab('O'); nsb = self.newlab('NSB')
            A('v_lshrrev_b32 v57, 10, v11')
            A('s_lshr_b32 s52, s3, 2')
            A('s_cmp_eq_u32 s52, 0')
            A(f's_cbranch_scc1 {old}')
            A('s_cmp_lg_u32 s52, 3'); A(f's_cbranch_scc1 {nsb}')
            A('s_waitcnt vmcnt(0)')
            self.lds_inc(C_B)
            for o in range(1, 4):
                A(f'v_add_u32 v{58+o}, {4096*o}, v11'); A(f'v_and_b32 v{58+o}, 0x3fff, v{58+o}')
            self.lab(nsb)
            self.v_issue()
            self.lds_wait(F_CH, 's52', areg=57)
            for q in range(4): A(f'ds_read_b128 v[{32+4*q}:{35+4*q}], v11 offset:{L_CH + 1024*q}')
            self.lab(old)
            self.stamp(6)
        A('s_waitcnt lgkmcnt(0)')
        tq = [48, 52]
        for T in range(2):
            if not isB: A(f's_waitcnt vmcnt({8 if T == 0 else 0})')
            src = 64 + 32 * T
            self.perm_tile(src, 0, tq[0])
            for tt in range(8):
                if tt < 7: self.perm_tile(src, tt + 1, tq[(tt + 1) & 1])
                else: A('s_nop 1')
                q = tq[tt & 1]
                d = 32 + 4 * (tt & 3)
                p = (16 if tt < 4 else 24) + 4 * T
                A(f'v_mfma_f32_16x16x32_bf16 v[{d}:{d+3}], v[{q}:{q+3}], v[{p}:{p+3}], v[{d}:{d+3}]')
        if isB:
            A('s_setprio 3')
            A('s_nop 6')
            for q in range(4):
                A(f'buffer_store_dwordx4 v[{32+4*q}:{35+4*q}], v58, s[44:47], s{56+q} offen sc1')
            A('s_waitcnt vmcnt(0)')
            self.ml_store(1)
            return
        self.stamp(7)
        dep = self.newlab('DEP'); done = self.newlab('DN')
        A('s_cmp_lt_u32 s3, 12')
        A(f's_cbranch_scc1 {dep}')
        self.lds_inc_rtn(C_O)
        A('s_cmp_lg_u32 s48, 3')
        A(f's_cbranch_scc1 {dep}')
        A('s_setprio 3')
        self.lds_wait(C_D, 15, sleep=0)
        for o in range(1, 4):
            for q in range(4):
                r = 64 + 16 * (o - 1) + 4 * q
                A(f'ds_read_b128 v[{r}:{r+3}], v{58+o} offset:{L_CH + 1024*q}')
        for o in range(1, 4):
            for q in range(4):
                A(f's_waitcnt lgkmcnt({11 - 4*(o-1) - q})')
                r = 64 + 16 * (o - 1) + 4 * q
                for e in range(4): A(f'v_add_f32 v{32+4*q+e}, v{32+4*q+e}, v{r+e}')
        for q in range(4):
            A(f'buffer_store_dwordx4 v[{32+4*q}:{35+4*q}], v58, s[44:47], s{56+q} offen sc1')
        self.stamp(8)
        A(f's_branch {done}')
        self.lab(dep)
        A('s_nop 5')
        for q in range(4): A(f'ds_write_b128 v11, v[{32+4*q}:{35+4*q}] offset:{L_CH + 1024*q}')
        A('s_mov_b64 exec, 1')
        A(f'ds_add_u32 v57, v6 offset:{F_CH}')
        A(f'ds_add_u32 v4, v6 offset:{C_D}')
        A('s_mov_b64 exec, -1')
        self.lab(done)

    def proj_mfma(self):
        for tt in range(8):
            self.A(f'v_mfma_f32_16x16x32_bf16 v[{24+4*tt}:{27+4*tt}], v[16:19], v[{96+4*tt}:{99+4*tt}], 0')
    def out_addr(self):
        A = self.A
        A('v_bfe_u32 v59, v0, 2, 1'); A(f'v_mul_u32_u24 v59, {IB}, v59')
        A('v_and_b32 v5, 3, v0'); A('v_lshl_add_u32 v59, v5, 5, v59')
        A('v_and_b32 v5, 8, v0'); A('v_lshl_add_u32 v59, v5, 1, v59')
        A('s_lshl_b32 s53, s20, 5'); A('s_lshl_b32 s48, s65, 4'); A('s_add_u32 s53, s53, s48'); A('s_lshl_b32 s48, s3, 1'); A('s_add_u32 s53, s53, s48')
        A(f's_mul_i32 s53, s53, {IB}'); A('s_lshl_b32 s48, s64, 7'); A('s_add_u32 s53, s53, s48'); A(f's_add_u32 s53, s53, {WS_I2}')

    def build(self):
        A = self.A; o = self.o
        L = self.L
        L.append(HEADER.rstrip())
        L.append(f'; @launch grid=(256,1,1) block=(1024,1,1) lds={LDS_BYTES}')
        L.append('.amdgcn_target "amdgcn-amd-amdhsa--gfx950"')
        L.append('.text')
        L.append(f'.globl {NAME}_kernel')
        L.append('.p2align 8')
        L.append(f'.type {NAME}_kernel,@function')
        L.append(f'{NAME}_kernel:')
        A('s_cmp_ge_u32 s2, 256')
        A('s_cbranch_scc1 L_end')
        A('s_load_dwordx16 s[4:19], s[0:1], 0')
        A('s_load_dwordx8 s[20:27], s[0:1], 64')
        A('s_load_dwordx2 s[28:29], s[0:1], 96')
        if self.stamps:
            for i in range(70, 96): A(f's_mov_b32 s{i}, 0')
        self.stamp(0)
        A('v_lshrrev_b32 v5, 6, v0')
        A('v_mov_b32 v4, 0')
        A('v_readfirstlane_b32 s3, v5')
        A('v_and_b32 v0, 63, v0')
        A('v_mov_b32 v6, 1')
        A('v_lshlrev_b32 v1, 4, v0')
        A('v_and_b32 v57, 3, v5')
        A('v_lshl_add_u32 v11, v57, 12, v1')
        A('v_lshrrev_b32 v8, 4, v0')
        A('v_and_b32 v9, 15, v0')
        A('v_and_b32 v12, 3, v0')
        A('v_lshrrev_b32 v13, 2, v9')
        dt = 19 if o['inter'] == 8 else 13
        A('v_and_b32 v2, 1, v0'); A('v_lshlrev_b32 v2, 4, v2')
        A('v_lshl_add_u32 v2, v13, 8, v2')
        A('v_lshl_add_u32 v2, v8, 5, v2')
        A('v_and_b32 v7, 2, v0')
        A(f'v_lshl_add_u32 v2, v7, {dt-1}, v2')
        A('v_and_b32 v7, 7, v0')
        A('v_lshlrev_b32 v10, 2, v7')
        A(f'v_mul_u32_u24 v3, {QSTR}, v7')
        A('v_lshl_add_u32 v3, v8, 5, v3')
        A('v_and_b32 v7, 8, v0')
        A('v_lshl_add_u32 v3, v7, 1, v3')
        A('s_setprio 2')
        A('s_mov_b32 s30, 0x05040100')
        A('s_mov_b32 s31, 0x07060302')
        A('s_mov_b32 s100, 0xffff0000')
        A('s_mov_b32 s101, 0x3db504f3')
        A('v_lshlrev_b32 v14, 4, v12'); A('v_lshl_add_u32 v14, v13, 18, v14'); A('v_lshl_add_u32 v14, v8, 16, v14')
        A('v_lshlrev_b32 v15, 6, v13'); A('v_lshl_add_u32 v15, v8, 4, v15')
        A('s_and_b32 s64, s2, 7'); A('s_bfe_u32 s65, s2, 0x30004'); A('s_lshl_b32 s65, s65, 3'); A('s_add_u32 s64, s64, s65')
        A('s_bfe_u32 s65, s2, 0x10003')
        A('s_lshl_b32 s52, s64, 1'); A('s_add_u32 s52, s52, s65')
        A('s_lshl_b32 s48, s52, 6'); A('s_lshl_b32 s49, s3, 20'); A('s_add_u32 s48, s48, s49')
        A('s_lshl_b32 s49, s3, 8'); A('v_add_u32 v15, s49, v15')
        A('s_waitcnt lgkmcnt(0)')
        A('s_cmp_lt_u32 s2, 128')
        A('s_cselect_b32 s40, s10, s20'); A('s_cselect_b32 s41, s11, s21'); A('s_mov_b32 s42, 0x800000'); A('s_mov_b32 s43, 0x20000')
        A('s_cselect_b32 s66, s4, s14');  A('s_cselect_b32 s67, s5, s15')
        A('s_cselect_b32 s10, s12, s22'); A('s_cselect_b32 s11, s13, s23')
        A('s_cmp_ge_u32 s3, 8')
        A('s_cbranch_scc1 L_nowq')
        for j in range(8):
            A(f'buffer_load_dwordx4 v[{64+4*j}:{67+4*j}], v14, s[40:43], s48 offen nt')
            if j < 7: A('s_add_u32 s48, s48, 8192')
        A('global_load_dwordx4 v[16:19], v15, s[66:67]')
        self.lab('L_nowq')
        A('s_mov_b32 s32, s6');  A('s_mov_b32 s33, s7');  A('s_mov_b32 s34, 0x4000000'); A('s_mov_b32 s35, 0x20000')
        A('s_mov_b32 s36, s8');  A('s_mov_b32 s37, s9');  A('s_mov_b32 s38, 0x4000000'); A('s_mov_b32 s39, 0x20000')
        A('s_mov_b32 s44, s28'); A('s_mov_b32 s45, s29'); A(f's_mov_b32 s46, {WS_BYTES}'); A('s_mov_b32 s47, 0x20000')
        A('s_lshr_b32 s20, s2, 7')
        A('s_lshr_b32 s22, s2, 6')
        A('s_and_b32 s23, s2, 63')
        A('s_mov_b32 s14, 0x00ff00ff'); A('s_mov_b32 s15, 0x00ff00ff')
        A('s_lshl_b32 s48, s23, 7')
        A(f's_mul_i32 s6, s22, {32*IB}'); A('s_add_u32 s6, s6, s48'); A(f's_add_u32 s6, s6, {WS_I1}')
        A(f's_mul_i32 s5, s22, {4*IB}'); A('s_add_u32 s5, s5, s48'); A(f's_add_u32 s5, s5, {WS_ML}')
        self.kv_offsets()
        A('s_cmp_ge_u32 s3, 8')
        A('s_cbranch_scc1 L_young0')
        A('s_load_dword s54, s[28:29], 0')
        A('s_lshl_b32 s56, s20, 17'); A('s_lshr_b32 s48, s52, 5'); A('s_lshl_b32 s48, s48, 15'); A('s_add_u32 s56, s56, s48')
        A('s_lshr_b32 s57, s56, 4')
        A('s_and_b32 s48, s52, 31'); A('s_add_u32 s57, s57, s48'); A(f's_add_u32 s57, s57, {WS_QF}')
        A('s_lshl_b32 s48, s48, 7'); A('s_add_u32 s56, s56, s48'); A(f's_add_u32 s56, s56, {WS_Q}')
        A('v_lshlrev_b32 v7, 5, v9'); A('s_lshl_b32 s48, s3, 9'); A('v_add_u32 v7, s48, v7')
        A('v_mov_b32 v20, -1'); A('v_mov_b32 v21, -1'); A('v_mov_b32 v22, -1'); A('v_mov_b32 v23, -1')
        A('s_mov_b32 s50, 0x00f0000f'); A('s_mov_b32 s51, 0xf0000f00')
        self.out_addr()
        self.vS(58)
        A('v_lshrrev_b32 v60, 3, v0'); A('v_lshlrev_b32 v60, 12, v60'); A('v_lshl_add_u32 v60, v10, 2, v60')
        A('v_lshlrev_b32 v61, 8, v0')
        A('s_barrier')
        A('s_waitcnt vmcnt(0)')
        for tt in range(8): self.perm_tile(64, tt, 96 + 4 * tt)
        A('s_nop 1')
        self.proj_mfma()
        A('s_mov_b64 exec, s[50:51]')
        A('s_nop 0')
        for tt in range(8): A(f'ds_write_b32 v7, v{24+4*tt} offset:{L_QS + 4*tt}')
        A('s_mov_b64 exec, -1')
        self.lds_inc_rtn(C_Q)
        self.stamp(1)
        self.tag()
        A('s_cmp_lg_u32 s48, 7')
        A('s_cbranch_scc1 L_qdone')
        A('s_setprio 3')
        for k in range(4): A(f'ds_read_b128 v[{32+4*k}:{35+4*k}], v1 offset:{L_QS + 1024*k}')
        for k in range(1, 4):
            A(f's_waitcnt lgkmcnt({3-k})')
            for e in range(4): A(f'v_add_f32 v{32+e}, v{32+e}, v{32+4*k+e}')
        self.ror_reduce('v_add_f32', [32, 33, 34, 35], 8)
        self.xg_reduce('v_add_f32', [32, 33, 34, 35], [36, 37, 38, 39])
        A('v_cvt_pk_bf16_f32 v32, v32, v33'); A('v_cvt_pk_bf16_f32 v34, v34, v35')
        A('v_mov_b32 v33, s55'); A('v_mov_b32 v35, s55')
        A('buffer_store_dwordx4 v[32:35], v60, s[44:47], s56 offen sc1')
        A('s_mov_b64 exec, 0xff')
        A('buffer_store_byte v33, v61, s[44:47], s57 offen sc1')
        A('s_mov_b64 exec, -1')
        A('s_setprio 2')
        self.lab('L_qdone')
        A('s_mov_b64 exec, 0xffff')
        A('buffer_store_dwordx4 v[20:23], v59, s[44:47], s53 offen sc1')
        A('s_mov_b64 exec, -1')
        A('s_cmp_lt_u32 s3, 4')
        A('s_cbranch_scc1 L_task')
        A('s_sub_u32 s48, s3, 4'); A(f's_mul_i32 s48, s48, {8*IB}'); A('s_add_u32 s48, s48, s6')
        A('buffer_store_dwordx4 v[20:23], v58, s[44:47], s48 offen sc1')
        A('s_branch L_task')
        self.lab('L_young0')
        A('v_mov_b32 v5, 0xff800000')
        A('v_cmp_gt_u32 vcc, 16, v0')
        A('v_lshlrev_b32 v7, 2, v0')
        A('s_nop 0')
        A('v_cndmask_b32 v5, v4, v5, vcc')
        A(f'ds_write_b32 v7, v5 offset:{L_MISC}')
        A('s_waitcnt lgkmcnt(0)')
        A('s_barrier')
        A('s_load_dword s54, s[28:29], 0')
        self.lab('L_task')
        self.task(False)
        A('s_cmp_ge_u32 s3, 8')
        A('s_cbranch_scc1 L_tail_young')
        A('s_cmp_lg_u32 s3, 2')
        A('s_cbranch_scc1 L_wo')
        self.task(True)
        self.stamp(9)
        self.lab('L_wo')
        A('s_mov_b32 s40, s10'); A('s_mov_b32 s41, s11')
        A('s_lshr_b32 s50, s64, 4'); A('s_lshl_b32 s50, s50, 10')
        A('s_and_b32 s51, s64, 3'); A('s_lshl_b32 s51, s51, 5'); A('s_add_u32 s50, s50, s51')
        A('s_bfe_u32 s51, s64, 0x20002'); A('s_add_u32 s50, s50, s51')
        A('s_lshl_b32 s50, s50, 11'); A('s_lshl_b32 s51, s65, 10'); A('s_add_u32 s50, s50, s51'); A('s_lshl_b32 s51, s3, 7'); A('s_add_u32 s50, s50, s51')
        A('v_lshrrev_b32 v8, 4, v0')
        A('v_lshlrev_b32 v58, 19, v8'); A('v_lshl_add_u32 v58, v10, 2, v58'); A('v_and_b32 v5, 8, v0'); A('v_lshl_add_u32 v58, v5, 10, v58')
        A('v_and_b32 v60, 1, v0'); A('v_lshlrev_b32 v60, 6, v60'); A('v_lshl_add_u32 v60, v8, 4, v60')
        self.out_addr()
        A('s_setprio 0')
        for j in range(8):
            A(f'buffer_load_dwordx4 v[{64+4*j}:{67+4*j}], v58, s[40:43], s50 offen nt')
            if j < 7: A(f's_add_u32 s50, s50, {16384 if j != 3 else (128 - 24) * 2048}')
        self.stamp(11)
        A('s_waitcnt vmcnt(0)')
        A('s_setprio 2')
        for tt in range(8): self.perm_tile(64, tt, 96 + 4 * tt)
        self.stamp(12)
        self.lds_wait(F_O, 2, sleep=0)
        A(f'ds_read_b128 v[16:19], v60 offset:{L_O}')
        A('s_waitcnt lgkmcnt(0)')
        for tt in (0, 4, 1, 5, 2, 6, 3, 7):
            A(f'v_mfma_f32_16x16x32_bf16 v[{24+4*tt}:{27+4*tt}], v[16:19], v[{96+4*tt}:{99+4*tt}], 0')
        A('s_nop 1')
        for k in range(4):
            d0 = 24 + 4 * k; d4 = 24 + 4 * (k + 4)
            A(f'v_cndmask_b32 v{d0+2}, v{d4+1}, v{d0}, s[14:15]')
            A(f'v_cndmask_b32 v{d0+3}, v{d0+1}, v{d4}, s[14:15]')
        A('s_mov_b64 exec, 0xffff')
        for k in range(4):
            d0 = 24 + 4 * k
            A(f'v_add_f32_dpp v{20+k}, v{d0+3}, v{d0+2} row_ror:8 row_mask:0xf bank_mask:0xf')
        A('buffer_store_dwordx4 v[20:23], v59, s[44:47], s53 offen sc1')
        A('s_mov_b64 exec, -1')
        self.stamp(13)
        A('s_branch L_fin')
        self.lab('L_tail_young')
        A('s_cmp_eq_u32 s3, 10')
        A('s_cbranch_scc1 L_red')
        A('s_cmp_ge_u32 s3, 10')
        A('s_cbranch_scc1 L_fin')
        A('s_lshr_b32 s40, s64, 4'); A('s_lshl_b32 s41, s20, 2'); A('s_add_u32 s40, s40, s41')
        A('s_lshl_b32 s41, s40, 2'); A('s_and_b32 s42, s2, 3'); A('s_add_u32 s41, s41, s42'); A(f's_mul_i32 s41, s41, {IB}'); A(f's_add_u32 s41, s41, {WS_ML}')
        A('s_lshl_b32 s40, s40, 5'); A('s_and_b32 s42, s64, 15'); A('s_lshl_b32 s42, s42, 1'); A('s_add_u32 s40, s40, s42')
        A('s_and_b32 s42, s3, 1'); A('s_add_u32 s40, s40, s42'); A(f's_mul_i32 s40, s40, {IB}'); A(f's_add_u32 s40, s40, {WS_I1}')
        A('s_lshl_b32 s42, s42, 6'); A('v_lshlrev_b32 v12, 3, v0'); A('v_add_u32 v12, s42, v12')
        self.gather(96, 's41', 8, True)
        self.stamp(9)
        M = [96 + 4 * k for k in range(8)]
        A(f'v_max3_f32 v32, v{M[0]}, v{M[1]}, v{M[2]}'); A(f'v_max3_f32 v32, v32, v{M[3]}, v{M[4]}'); A(f'v_max3_f32 v32, v32, v{M[5]}, v{M[6]}'); A(f'v_max_f32 v32, v32, v{M[7]}')
        self.ror_reduce('v_max_f32', [32], 8)
        self.xg_reduce('v_max_f32', [32], [33])
        for k in range(8): A(f'v_sub_f32 v{M[k]}, v{M[k]}, v32')
        for k in range(8): A(f'v_mul_f32 v{M[k]}, 0x3fb8aa3b, v{M[k]}')
        for k in range(8): A(f'v_exp_f32 v{M[k]}, v{M[k]}')
        A('s_nop 0')
        A(f'v_mul_f32 v32, v{M[0]}, v{M[0]+2}')
        for k in range(1, 8): A(f'v_fmac_f32 v32, v{M[k]}, v{M[k]+2}')
        self.ror_reduce('v_add_f32', [32], 8)
        self.xg_reduce('v_add_f32', [32], [33])
        A('v_rcp_f32 v33, v32')
        A('s_nop 0')
        A('v_fma_f32 v34, -v32, v33, 1.0')
        A('v_fma_f32 v33, v34, v33, v33')
        for k in range(8): A(f'v_mul_f32 v{M[k]}, v{M[k]}, v33')
        nw = self.newlab('NW')
        A('s_cmp_lg_u32 s20, 0'); A(f's_cbranch_scc1 {nw}')
        self.lds_wait(C_O, 4)
        self.lab(nw)
        self.stamp(11)
        self.gather(64, 's40', 8, False)
        self.stamp(12)
        for e in range(4): A(f'v_mul_f32 v{32+e}, v{M[0]}, v{64+e}')
        for k in range(1, 8):
            for e in range(4): A(f'v_fmac_f32 v{32+e}, v{M[k]}, v{64+4*k+e}')
        self.ror_reduce('v_add_f32', [32, 33, 34, 35], 8)
        self.xg_reduce('v_add_f32', [32, 33, 34, 35], [36, 37, 38, 39])
        A('v_cvt_pk_bf16_f32 v32, v32, v33'); A('v_cvt_pk_bf16_f32 v33, v34, v35')
        A('s_mov_b64 exec, 0xff')
        A(f'ds_write_b64 v12, v[32:33] offset:{L_O}')
        A('s_mov_b64 exec, 1')
        A(f'ds_add_u32 v4, v6 offset:{F_O}')
        A('s_mov_b64 exec, -1')
        self.stamp(13)
        A('s_branch L_fin')
        self.lab('L_red')
        A('s_bfe_u32 s40, s2, 0x20003'); A('s_cmp_lg_u32 s40, 0')
        A('s_cbranch_scc1 L_fin')
        A('s_lshr_b32 s40, s2, 5'); A('s_lshl_b32 s40, s40, 3'); A('s_and_b32 s41, s2, 7'); A('s_add_u32 s40, s40, s41')
        A('v_lshrrev_b32 v8, 3, v0'); A('v_lshlrev_b32 v8, 4, v8'); A('v_and_b32 v9, 7, v0'); A('v_add_u32 v8, v8, v9')
        A('s_bfe_u32 s41, s40, 0x10004'); A('s_lshl_b32 s41, s41, 3'); A('s_lshl_b32 s42, s20, 7'); A('s_add_u32 s41, s41, s42'); A('v_add_u32 v8, s41, v8')
        A('v_lshrrev_b32 v9, 6, v8'); A(f'v_mul_u32_u24 v9, {4*IB}, v9'); A('v_and_b32 v8, 63, v8'); A('v_lshl_add_u32 v8, v8, 7, v9')
        A('s_and_b32 s41, s2, 3'); A(f's_mul_i32 s41, s41, {IB}'); A(f's_add_u32 s41, s41, {WS_ML}')
        A('s_lshl_b32 s42, s40, 6'); A('v_lshlrev_b32 v12, 3, v0'); A('v_add_u32 v12, s42, v12')
        A(f's_mul_i32 s40, s40, {IB}'); A(f's_add_u32 s40, s40, {WS_I2}')
        A('v_mov_b32 v13, s55')
        A('s_mov_b32 s49, 0x8000')
        self.lab('L_ev')
        A('buffer_load_dword v9, v8, s[44:47], s41 offen offset:4 sc1')
        A('s_waitcnt vmcnt(0)')
        A('v_cmp_ne_u32 vcc, s55, v9')
        A('s_cbranch_vccz L_evd')
        A('s_sub_u32 s49, s49, 1')
        A('s_cbranch_scc0 L_ev')
        self.lab('L_evd')
        self.lds_wait(F_O, 2)
        self.stamp(11)
        self.gather(64, 's40', 8, False)
        self.stamp(12)
        for k in range(4):
            for e in range(4): A(f'v_add_f32 v{64+4*k+e}, v{64+4*k+e}, v{80+4*k+e}')
        for k in range(2):
            for e in range(4): A(f'v_add_f32 v{64+4*k+e}, v{64+4*k+e}, v{72+4*k+e}')
        for e in range(4): A(f'v_add_f32 v{64+e}, v{64+e}, v{68+e}')
        self.ror_reduce('v_add_f32', [64, 65, 66, 67], 8)
        self.xg_reduce('v_add_f32', [64, 65, 66, 67], [36, 37, 38, 39])
        A('v_cvt_pk_bf16_f32 v32, v64, v65'); A('v_cvt_pk_bf16_f32 v33, v66, v67')
        A('s_mov_b64 exec, 0xff')
        A('global_store_dwordx2 v12, v[32:33], s[24:25]')
        A('s_cmp_lg_u32 s2, 0')
        A('s_cbranch_scc1 L_nogen')
        A('s_mov_b64 exec, 1')
        A('global_store_dword v4, v13, s[28:29]')
        self.lab('L_nogen')
        A('s_mov_b64 exec, -1')
        self.stamp(13)
        self.lab('L_fin')
        if self.stamps:
            A('s_waitcnt vmcnt(0) lgkmcnt(0)')
            A('s_getreg_b32 s48, hwreg(HW_REG_XCC_ID)')
            A('s_getreg_b32 s49, hwreg(HW_REG_HW_ID)')
            for i in range(28): A(f'v_writelane_b32 v20, s{68+i}, {i}')
            A('v_writelane_b32 v20, s48, 28')
            A('v_writelane_b32 v20, s49, 29')
            A('s_lshl_b32 s48, s2, 4'); A('s_add_u32 s48, s48, s3'); A('s_lshl_b32 s48, s48, 7'); A(f's_add_u32 s48, s48, {STAMP_OFF}')
            A('v_lshlrev_b32 v7, 2, v0'); A('v_add_u32 v7, s48, v7')
            A('s_mov_b64 exec, 0xffffffff')
            A('global_store_dword v7, v20, s[28:29]')
        self.lab('L_end')
        A('s_endpgm')
        L.append('.section .rodata,"a"')
        L.append('.p2align 6')
        L.append(f'.amdhsa_kernel {NAME}_kernel')
        L.append('  .amdhsa_next_free_vgpr 128')
        L.append('  .amdhsa_next_free_sgpr 102')
        L.append('  .amdhsa_accum_offset 128')
        L.append('  .amdhsa_group_segment_fixed_size 0')
        L.append('  .amdhsa_kernarg_size 104')
        L.append('  .amdhsa_user_sgpr_count 2')
        L.append('  .amdhsa_user_sgpr_kernarg_segment_ptr 1')
        L.append('  .amdhsa_system_sgpr_workgroup_id_x 1')
        L.append('.end_amdhsa_kernel')
        return '\n'.join(L) + '\n'

    def kv_offsets(self):
        A = self.A; o = self.o
        A('s_lshl_b32 s96, s22, 24')
        if o['inter'] == 8:
            A('s_lshl_b32 s48, s3, 20'); A('s_add_u32 s96, s96, s48')
            A('s_lshl_b32 s48, s23, 13'); A('s_add_u32 s96, s96, s48')
            A('s_add_u32 s97, s96, 4096'); A('s_add_u32 s98, s96, 0x80000'); A('s_add_u32 s99, s98, 4096')
        elif o['inter'] == 16:
            A('s_lshl_b32 s48, s3, 20'); A('s_add_u32 s96, s96, s48')
            A('s_lshl_b32 s48, s23, 14'); A('s_add_u32 s96, s96, s48')
            A('s_add_u32 s97, s96, 4096'); A('s_add_u32 s98, s96, 8192'); A('s_add_u32 s99, s96, 12288')
        else:
            A('s_lshl_b32 s48, s3, 14'); A('s_add_u32 s96, s96, s48')
            A('s_lshl_b32 s48, s23, 18'); A('s_add_u32 s96, s96, s48')
            A('s_add_u32 s97, s96, 4096'); A('s_add_u32 s98, s96, 8192'); A('s_add_u32 s99, s96, 12288')

if __name__ == '__main__':
    out = sys.argv[1]
    stamps = 'stamps' in sys.argv[2:]
    opts = {}
    for a in sys.argv[2:]:
        if '=' in a:
            k, v = a.split('='); opts[k] = int(v)
    open(out, 'w').write(Gen(stamps, opts).build())
```

```python
import sys
NAME = 'concat_heads__gqa_block_cached__sliding_block_cached__decode'

HEADER = open('cdna_kernels/' + NAME + '.s.ref').read().split('; Override launch')[0]

IB = 8448
WS_Q = 0x4000
WS_ML = 0x50000
WS_I1 = 0xA0000
WS_I2 = 0x2C0000
WS_BYTES = 0x400000
STAMP_OFF = 0x10000000
L_CH, L_QS, L_QA, L_QB, L_MISC = 0, 16384, 20480, 22784, 25088
QSTR = 272
L_MA, L_LA = L_MISC, L_MISC + 64
L_C = L_MISC + 128
C_Q, C_M, C_O, C_L, F_QA, F_QB, F_O, C_B, C_D, F_W, F_X2, F_X3, F_CH = [L_C + 4 * i for i in range(13)]
L_O = L_MISC + 256
L_B = 25600
LDS_BYTES = L_B + 32768

class Gen:
    def __init__(self, stamps=False, opts=None):
        self.L = []
        self.stamps = stamps
        self.nlab = 0
        self.o = dict(inter=8, qw=4)
        if opts: self.o.update(opts)
    def A(self, s):
        if self.o.get('pure') and s.startswith('buffer_store'): return
        dr = self.o.get('drop', 0)
        if s.startswith('buffer_store'):
            if 'v58' in s and self.o.get('inB') and dr & 1: return
            if 'v58' in s and not self.o.get('inB') and dr & 2: return
            if 'v[12:15]' in s and dr & 4: return
            if 'v58' in s and dr & 8: s = s.replace(' sc1', '')
            if 'v58' in s and dr & 16: s = s.replace(' sc1', ' sc1 nt')
        self.L.append('    ' + s)
    def lab(self, s): self.L.append(s + ':')
    def newlab(self, p='L'):
        self.nlab += 1
        return f'{p}_{self.nlab}'
    def stamp(self, i):
        if self.stamps: self.A(f's_memrealtime s[{68+2*i}:{69+2*i}]')

    def lds_wait(self, addr, val, sleep=1, areg=4):
        A = self.A
        l = self.newlab('W'); d = self.newlab('D')
        A('s_mov_b32 s49, 0x40000')
        self.lab(l)
        A(f'ds_read_b32 v5, v{areg} offset:{addr}')
        A('s_waitcnt lgkmcnt(0)')
        A('v_readfirstlane_b32 s48, v5')
        A(f's_cmp_ge_u32 s48, {val}')
        A(f's_cbranch_scc1 {d}')
        if sleep: A(f's_sleep {sleep}')
        A('s_sub_u32 s49, s49, 1')
        A(f's_cbranch_scc0 {l}')
        self.lab(d)
    def lds_inc(self, addr, areg=4):
        A = self.A
        A('s_mov_b64 exec, 1')
        A(f'ds_add_u32 v{areg}, v6 offset:{addr}')
        A('s_mov_b64 exec, -1')
    def lds_inc_rtn(self, addr):
        A = self.A
        A('s_mov_b64 exec, 1')
        A(f'ds_add_rtn_u32 v5, v4, v6 offset:{addr}')
        A('s_mov_b64 exec, -1')
        A('s_waitcnt lgkmcnt(0)')
        A('v_readfirstlane_b32 s48, v5')
    def tag(self):
        A = self.A
        A('s_and_b32 s55, s54, 0x7f7f7f7f'); A('s_add_u32 s55, s55, 0x35172b4d'); A('s_and_b32 s8, s54, 0x80808080'); A('s_xor_b32 s55, s55, s8')
        A('s_and_b32 s8, s55, 0xff'); A('s_bfe_u32 s9, s55, 0x80008'); A('s_bfe_u32 s12, s55, 0x80010'); A('s_lshr_b32 s13, s55, 24')
    TB = ['s8', 's9', 's12', 's13']
    def embed(self, regs):
        for r in regs: self.A(f'v_and_or_b32 v{r}, v{r}, v56, {self.TB[r & 3]}')

    def perm_tile(self, src, tt, dst):
        i, h = tt >> 1, tt & 1
        sel = 's31' if h else 's30'
        for jp in range(4):
            self.A(f'v_perm_b32 v{dst+jp}, v{src+4*(2*jp+1)+i}, v{src+4*(2*jp)+i}, {sel}')

    def xg_reduce(self, op, regs, tmps):
        A = self.A
        for sw in ('v_permlane16_swap_b32', 'v_permlane32_swap_b32'):
            for r, t in zip(regs, tmps): A(f'v_mov_b32 v{t}, v{r}')
            A('s_nop 1')
            for r, t in zip(regs, tmps): A(f'{sw} v{r}, v{t}')
            A('s_nop 1')
            for r, t in zip(regs, tmps): A(f'{op} v{r}, v{r}, v{t}')
    def ror_reduce(self, op, regs, n):
        A = self.A
        A('s_nop 1')
        for r in regs: A(f'{op}_dpp v{r}, v{r}, v{r} row_ror:{n} row_mask:0xf bank_mask:0xf')

    def gather(self, dst, sbase, N, tagged):
        A = self.A
        l = self.newlab('G'); d = self.newlab('GD')
        A('s_setprio 3')
        A(f's_add_u32 s51, {sbase}, 4096')
        A('s_mov_b32 s49, 0x8000')
        self.lab(l)
        for k in range(N):
            r = dst + 4 * k
            A(f'buffer_load_dwordx4 v[{r}:{r+3}], v1, s[44:47], {sbase if k < 4 else "s51"} offen offset:{1024*(k&3)} sc1')
        for k in range(N):
            r = dst + 4 * k
            A(f's_waitcnt vmcnt({N-1-k})')
            if tagged:
                if k == 0:
                    A(f'v_min_u32 v5, v{r+1}, v{r+3}'); A(f'v_max_u32 v7, v{r+1}, v{r+3}')
                else:
                    A(f'v_min3_u32 v5, v5, v{r+1}, v{r+3}'); A(f'v_max3_u32 v7, v7, v{r+1}, v{r+3}')
            else:
                if k == 0:
                    A(f'v_xor_b32 v5, s8, v{r}'); A(f'v_xor_b32 v7, s9, v{r+1}')
                else:
                    A(f'v_bitop3_b32 v5, s8, v5, v{r} bitop3:0xde'); A(f'v_bitop3_b32 v7, s9, v7, v{r+1} bitop3:0xde')
                A(f'v_bitop3_b32 v5, s12, v5, v{r+2} bitop3:0xde'); A(f'v_bitop3_b32 v7, s13, v7, v{r+3} bitop3:0xde')
        if tagged:
            A('v_cmp_ne_u32 vcc, s55, v5')
            A('v_cmp_ne_u32 s[66:67], s55, v7')
            A('s_or_b64 s[66:67], s[66:67], vcc')
            A(f's_cbranch_scc0 {d}')
        else:
            A('v_or_b32 v5, v5, v7')
            A('v_and_b32 v5, 0xff, v5')
            A('v_cmp_ne_u32 vcc, 0, v5')
            A(f's_cbranch_vccz {d}')
        A('s_sub_u32 s49, s49, 1')
        A(f's_cbranch_scc0 {l}')
        self.lab(d)

    def q_gather(self, br):
        A = self.A
        if self.o.get('pure'):
            A(f'ds_write_b32 v4, v6 offset:{F_QB if br else F_QA}')
            return
        A('v_lshrrev_b32 v8, 5, v0'); A('v_and_b32 v5, 31, v0')
        A(f'v_mul_u32_u24 v8, {QSTR}, v8'); A('v_lshl_add_u32 v8, v5, 3, v8')
        A('s_lshl_b32 s52, s22, 2'); A('s_and_b32 s51, s2, 3'); A('s_add_u32 s52, s52, s51')
        A(f's_mul_i32 s52, s52, {IB}'); A(f's_add_u32 s52, s52, {WS_Q + br * 16 * IB}')
        if not br and self.o.get('hint'):
            l = self.newlab('H'); d = self.newlab('HD')
            R = list(range(56, 66)) + list(range(74, 96))
            A('s_add_u32 s66, s28, s52'); A('s_addc_u32 s67, s29, 0')
            A('s_mov_b32 s49, 0x8000')
            self.lab(l)
            for k in range(32): A(f's_load_dword s{R[k]}, s[66:67], {256*k} glc')
            A('s_waitcnt lgkmcnt(0)')
            A('s_mov_b32 s50, s8'); A('s_mov_b32 s51, s8')
            for k in range(0, 32, 2): A(f's_xor_b64 s[{R[k]}:{R[k]+1}], s[{R[k]}:{R[k]+1}], s[50:51]')
            for k in range(2, 32, 2): A(f's_or_b64 s[56:57], s[56:57], s[{R[k]}:{R[k]+1}]')
            A('s_or_b32 s56, s56, s57'); A('s_and_b32 s56, s56, 0xff')
            A(f's_cbranch_scc0 {d}')
            A('s_sub_u32 s49, s49, 1')
            A(f's_cbranch_scc0 {l}')
            self.lab(d)
            if self.stamps:
                for i in range(74, 96): A(f's_mov_b32 s{i}, 0')
            self.stamp(10)
        self.gather(32, 's52', 8, False)
        for k in range(4):
            r = 32 + 4 * k
            for e in range(4): A(f'v_add_f32 v{r+e}, v{r+e}, v{r+16+e}')
            A(f'v_cvt_pk_bf16_f32 v{r}, v{r}, v{r+1}'); A(f'v_cvt_pk_bf16_f32 v{r+1}, v{r+2}, v{r+3}')
            A(f'ds_write_b64 v8, v[{r}:{r+1}] offset:{(L_QB if br else L_QA) + 2*QSTR*k}')
        A(f'ds_write_b32 v4, v6 offset:{F_QB if br else F_QA}')

    def k_loads(self):
        for n in range(8):
            for hf in range(2):
                r = 64 + 8 * n + 4 * hf
                self.A(f'buffer_load_dwordx4 v[{r}:{r+3}], v2, s[32:35], s{96+(n>>2)} offen offset:{1024*(n&3)+128*hf} nt')
                self.A('s_nop 0')
    def v_issue(self):
        self.A('s_setprio 1')
        for t in range(4):
            for j in range(4):
                r = 64 + 16 * t + 4 * j
                self.A(f'buffer_load_dwordx4 v[{r}:{r+3}], v1, s[36:39], s{96+t} offen offset:{1024*j} nt')
                self.A('s_nop 0')
        self.A('s_setprio 2')
    def vS(self, reg):
        A = self.A
        A(f'v_lshrrev_b32 v{reg}, 3, v0'); A(f'v_mul_u32_u24 v{reg}, {IB}, v{reg}'); A(f'v_lshl_add_u32 v{reg}, v10, 2, v{reg}')
    def ml_store(self, br):
        A = self.A
        A('s_setprio 3')
        A('v_mov_b32 v13, s55'); A('v_mov_b32 v15, s55')
        self.vS(7)
        if br: A(f's_add_u32 s5, s5, {16*IB}')
        A('s_mov_b64 exec, 0xffffffff')
        A(f'buffer_store_dwordx4 v[12:15], v7, s[44:47], s5 offen sc1')
        A('s_mov_b64 exec, -1')
        A('s_setprio 2')
    def op_offsets(self, br):
        A = self.A
        for q in range(4): A(f's_add_u32 s{56+q}, s6, {br * 128 * IB + 8 * q * IB}')

    def task(self, isB):
        A = self.A
        LQ = L_QB if isB else L_QA
        if isB:
            A(f'v_add_u32 v13, {L_B}, v1')
            self.lds_wait(C_B, 4)
            for n in range(16): A(f'ds_read_b128 v[{64+4*n}:{67+4*n}], v13 offset:{1024*n}')
            self.lds_wait(F_QB, 1)
        else:
            self.k_loads()
            self.stamp(2)
            nod = self.newlab('NOD'); wq = self.newlab('WQ'); nq = self.newlab('NQ')
            A('s_cmp_lt_u32 s3, 12'); A(f's_cbranch_scc1 {nod}')
            A('s_mov_b32 s56, s16'); A('s_mov_b32 s57, s17'); A('s_mov_b32 s58, 0x4000000'); A('s_mov_b32 s59, 0x20000')
            A('s_mov_b32 s60, s18'); A('s_mov_b32 s61, s19'); A('s_mov_b32 s62, 0x4000000'); A('s_mov_b32 s63, 0x20000')
            A('s_lshl_b32 s50, s22, 24'); A('s_lshl_b32 s48, s23, 14'); A('s_add_u32 s50, s50, s48'); A(f's_add_u32 s50, s50, {61440*256}')
            A('s_sub_u32 s52, s3, 12')
            A('s_lshl_b32 s48, s52, 11'); A('s_add_u32 s51, s50, s48')
            A('s_lshl_b32 s48, s52, 12'); A('s_add_u32 s50, s50, s48')
            A(f's_add_u32 s48, s48, {L_B}')
            A('v_and_b32 v7, 0xfff, v2'); A('v_and_b32 v5, 2, v0'); A('v_lshl_add_u32 v7, v5, 12, v7')
            for j, (imm, adj) in enumerate(((0, 896), (128, 128), (1024, 896), (1152, 0))):
                A('s_mov_b32 m0, s48'); A(f's_add_u32 s48, s48, {adj}')
                A(f'buffer_load_dwordx4 v7, s[56:59], s51 offen offset:{imm} nt lds')
            A(f's_add_u32 s48, s48, {16384 - 1920}')
            A('s_mov_b32 m0, s48'); A('s_nop 0')
            for j in range(4):
                A(f'buffer_load_dwordx4 v1, s[60:63], s50 offen offset:{1024*j} nt lds')
                A('s_nop 0')
            self.stamp(10)
            self.lds_wait(F_QA, 1)
            A('s_waitcnt vmcnt(8)')
            A(f's_branch {wq}')
            self.lab(nod)
            A(f's_cmp_lg_u32 s3, {self.o["qw"]}'); A(f's_cbranch_scc1 {nq}')
            if self.o['qw'] >= 8:
                A('s_waitcnt lgkmcnt(0)'); self.tag()
            if self.o.get('qdelay'): A(f's_waitcnt vmcnt({16 - self.o["qdelay"]})')
            self.q_gather(0)
            A('s_setprio 2')
            self.stamp(9)
            if self.stamps:
                A('s_sub_u32 s88, 0x8001, s49'); A('s_mul_i32 s88, s88, 100'); A('s_add_u32 s88, s88, s68'); A('s_mov_b32 s89, s69')
            self.lab(nq)
            self.lds_wait(F_QA, 1)
            A('s_waitcnt vmcnt(0)')
            self.lab(wq)
            self.tag()
        for hf in range(2):
            A(f'ds_read_b128 v[{16+4*hf}:{19+4*hf}], v3 offset:{LQ + 128*hf}')
        A('s_waitcnt lgkmcnt(0)')
        if not isB: self.stamp(3)
        for hf in range(2):
            for n in range(8):
                r = 64 + 8 * n + 4 * hf
                c = '0' if hf == 0 else f'v[{32+4*n}:{35+4*n}]'
                A(f'v_mfma_f32_16x16x32_bf16 v[{32+4*n}:{35+4*n}], v[{r}:{r+3}], v[{16+4*hf}:{19+4*hf}], {c}')
        A('s_nop 0')
        for n in range(8):
            d = 32 + 4 * n
            A(f'v_cndmask_b32 v{d}, v{d+3}, v{d}, s[14:15]')
            A(f'v_cndmask_b32 v{d+1}, v{d+1}, v{d+2}, s[14:15]')
        for n in range(8):
            d = 32 + 4 * n
            A(f'v_add_f32_dpp v{24+n}, v{d+1}, v{d} row_ror:8 row_mask:0xf bank_mask:0xf')
        A('v_max3_f32 v8, v24, v25, v26')
        A('v_max3_f32 v9, v27, v28, v29')
        A('v_max3_f32 v8, v8, v30, v31')
        A('v_max_f32 v8, v8, v9')
        self.ror_reduce('v_max_f32', [8], 8)
        self.xg_reduce('v_max_f32', [8], [9])
        if isB:
            for n in range(16): A(f'ds_read_b128 v[{64+4*n}:{67+4*n}], v13 offset:{16384 + 1024*n}')
        else:
            A('s_mov_b64 exec, 0xff')
            A(f'ds_max_f32 v10, v8 offset:{L_MA}')
            A('s_mov_b64 exec, -1')
            self.lds_inc(C_M)
            self.stamp(4)
            young = self.newlab('Y'); nqb = self.newlab('NQB')
            A('s_cmp_lg_u32 s3, 5'); A(f's_cbranch_scc1 {nqb}')
            self.q_gather(1)
            A('s_setprio 2')
            self.stamp(9)
            self.lab(nqb)
            A('s_cmp_ge_u32 s3, 4')
            A(f's_cbranch_scc1 {young}')
            self.v_issue()
            self.lab(young)
        S = list(range(24, 32))
        for k in range(4): A(f'v_cvt_pk_bf16_f32 v{32+k}, v{S[2*k]}, v{S[2*k+1]}')
        for k in range(4):
            A(f'v_lshlrev_b32 v{S[2*k]}, 16, v{32+k}')
            A(f'v_and_b32 v{S[2*k+1]}, s100, v{32+k}')
        for x in S: A(f'v_mul_f32 v{x}, s101, v{x}')
        for k in range(4): A(f'v_cvt_pk_bf16_f32 v{32+k}, v{S[2*k]}, v{S[2*k+1]}')
        for k in range(4):
            A(f'v_lshlrev_b32 v{S[2*k]}, 16, v{32+k}')
            A(f'v_and_b32 v{S[2*k+1]}, s100, v{32+k}')
        if not isB:
            self.lds_wait(C_M, 16)
            self.stamp(5)
            A(f'ds_read_b32 v8, v10 offset:{L_MA}')
            A('s_waitcnt lgkmcnt(0)')
        A('v_cvt_pk_bf16_f32 v8, v8, v8')
        A('v_and_b32 v8, s100, v8')
        A('v_mul_f32 v8, s101, v8')
        A('v_cvt_pk_bf16_f32 v8, v8, v8')
        A('v_and_b32 v12, s100, v8')
        for x in S: A(f'v_sub_f32 v{x}, v{x}, v12')
        for x in S: A(f'v_mul_f32 v{x}, 0x3fb8aa3b, v{x}')
        for x in S: A(f'v_exp_f32 v{x}, v{x}')
        A('s_nop 0')
        for k in range(4): A(f'v_cvt_pk_bf16_f32 v{32+k}, v{S[2*k]}, v{S[2*k+1]}')
        for k in range(4): A(f'v_add_f32 v{36+k}, v{S[2*k]}, v{S[2*k+1]}')
        A('v_add_f32 v36, v36, v37'); A('v_add_f32 v38, v38, v39'); A('v_add_f32 v14, v36, v38')
        for k in range(4): A(f'v_cndmask_b32 v{16+k}, 0, v{32+k}, s[14:15]')
        for k in range(4): A(f'v_cndmask_b32 v{28+k}, v{32+k}, 0, s[14:15]')
        for k in range(4): A(f'v_mov_b32_dpp v{24+k}, v{16+k} row_ror:8 row_mask:0xf bank_mask:0xf')
        for k in range(4): A(f'v_mov_b32_dpp v{20+k}, v{28+k} row_ror:8 row_mask:0xf bank_mask:0xf')
        self.ror_reduce('v_add_f32', [14], 8)
        self.xg_reduce('v_add_f32', [14], [9])
        if not isB:
            nopub = self.newlab('NP')
            A('s_mov_b64 exec, 0xff')
            A(f'ds_add_f32 v10, v14 offset:{L_LA}')
            A('s_mov_b64 exec, -1')
            self.lds_inc_rtn(C_L)
            A('s_cmp_lg_u32 s48, 15')
            A(f's_cbranch_scc1 {nopub}')
            A(f'ds_read_b32 v14, v10 offset:{L_LA}')
            A('s_waitcnt lgkmcnt(0)')
            self.ml_store(0)
            self.lab(nopub)
        else:
            self.ml_store(1)
        A('v_mov_b32 v56, 0xffffff00')
        for x in range(32, 48): A(f'v_mov_b32 v{x}, 0')
        self.vS(58)
        self.op_offsets(1 if isB else 0)
        if not isB:
            old = self.newlab('O'); nsb = self.newlab('NSB')
            A('v_lshrrev_b32 v57, 10, v11')
            A('s_lshr_b32 s52, s3, 2')
            A('s_cmp_eq_u32 s52, 0')
            A(f's_cbranch_scc1 {old}')
            A('s_cmp_lg_u32 s52, 3'); A(f's_cbranch_scc1 {nsb}')
            A('s_waitcnt vmcnt(0)')
            self.lds_inc(C_B)
            for o in range(1, 4):
                A(f'v_add_u32 v{58+o}, {4096*o}, v11'); A(f'v_and_b32 v{58+o}, 0x3fff, v{58+o}')
            self.lab(nsb)
            self.v_issue()
            self.lds_wait(F_CH, 's52', areg=57)
            for q in range(4): A(f'ds_read_b128 v[{32+4*q}:{35+4*q}], v11 offset:{L_CH + 1024*q}')
            self.lab(old)
            self.stamp(6)
        A('s_waitcnt lgkmcnt(0)')
        tq = [48, 52]
        for T in range(2):
            if not isB: A(f's_waitcnt vmcnt({8 if T == 0 else 0})')
            src = 64 + 32 * T
            self.perm_tile(src, 0, tq[0])
            for tt in range(8):
                if tt < 7: self.perm_tile(src, tt + 1, tq[(tt + 1) & 1])
                else: A('s_nop 1')
                q = tq[tt & 1]
                d = 32 + 4 * (tt & 3)
                p = (16 if tt < 4 else 24) + 4 * T
                A(f'v_mfma_f32_16x16x32_bf16 v[{d}:{d+3}], v[{q}:{q+3}], v[{p}:{p+3}], v[{d}:{d+3}]')
        if isB:
            A('s_setprio 3')
            A('s_nop 6')
            self.embed(range(32, 48))
            for q in range(4):
                A(f'buffer_store_dwordx4 v[{32+4*q}:{35+4*q}], v58, s[44:47], s{56+q} offen sc1')
            return
        self.stamp(7)
        dep = self.newlab('DEP'); done = self.newlab('DN')
        A('s_cmp_lt_u32 s3, 12')
        A(f's_cbranch_scc1 {dep}')
        self.lds_inc_rtn(C_O)
        A('s_cmp_lg_u32 s48, 3')
        A(f's_cbranch_scc1 {dep}')
        A('s_setprio 3')
        self.lds_wait(C_D, 15, sleep=0)
        for o in range(1, 4):
            for q in range(4):
                r = 64 + 16 * (o - 1) + 4 * q
                A(f'ds_read_b128 v[{r}:{r+3}], v{58+o} offset:{L_CH + 1024*q}')
        for o in range(1, 4):
            for q in range(4):
                A(f's_waitcnt lgkmcnt({11 - 4*(o-1) - q})')
                r = 64 + 16 * (o - 1) + 4 * q
                for e in range(4): A(f'v_add_f32 v{32+4*q+e}, v{32+4*q+e}, v{r+e}')
                if o == 3: self.embed(range(32+4*q, 36+4*q))
        for q in range(4):
            A(f'buffer_store_dwordx4 v[{32+4*q}:{35+4*q}], v58, s[44:47], s{56+q} offen sc1')
        self.stamp(8)
        A(f's_branch {done}')
        self.lab(dep)
        A('s_nop 5')
        for q in range(4): A(f'ds_write_b128 v11, v[{32+4*q}:{35+4*q}] offset:{L_CH + 1024*q}')
        A('s_mov_b64 exec, 1')
        A(f'ds_add_u32 v57, v6 offset:{F_CH}')
        A(f'ds_add_u32 v4, v6 offset:{C_D}')
        A('s_mov_b64 exec, -1')
        self.lab(done)

    def proj_result(self):
        A = self.A
        for tt in (0, 4, 1, 5, 2, 6, 3, 7):
            A(f'v_mfma_f32_16x16x32_bf16 v[{24+4*tt}:{27+4*tt}], v[16:19], v[{96+4*tt}:{99+4*tt}], 0')
        A('s_nop 1')
        for k in range(4):
            d0 = 24 + 4 * k; d4 = 24 + 4 * (k + 4)
            A(f'v_cndmask_b32 v{d0+2}, v{d4+1}, v{d0}, s[14:15]')
            A(f'v_cndmask_b32 v{d0+3}, v{d0+1}, v{d4}, s[14:15]')
        A('s_mov_b64 exec, 0xffff')
        for k in range(4):
            d0 = 24 + 4 * k
            A(f'v_add_f32_dpp v{20+k}, v{d0+3}, v{d0+2} row_ror:8 row_mask:0xf bank_mask:0xf')
    def out_addr(self):
        A = self.A
        A('v_bfe_u32 v59, v0, 2, 1'); A(f'v_mul_u32_u24 v59, {IB}, v59')
        A('v_and_b32 v5, 3, v0'); A('v_lshl_add_u32 v59, v5, 5, v59')
        A('v_and_b32 v5, 8, v0'); A('v_lshl_add_u32 v59, v5, 1, v59')
        A('s_lshl_b32 s53, s20, 5'); A('s_lshl_b32 s48, s7, 4'); A('s_add_u32 s53, s53, s48'); A('s_lshl_b32 s48, s3, 1'); A('s_add_u32 s53, s53, s48')
        A(f's_mul_i32 s53, s53, {IB}'); A('s_lshl_b32 s48, s4, 7'); A('s_add_u32 s53, s53, s48'); A(f's_add_u32 s53, s53, {WS_I2}')

    def build(self):
        A = self.A; o = self.o
        L = self.L
        L.append(HEADER.rstrip())
        L.append(f'; @launch grid=(256,1,1) block=(1024,1,1) lds={LDS_BYTES}')
        L.append('.amdgcn_target "amdgcn-amd-amdhsa--gfx950"')
        L.append('.text')
        L.append(f'.globl {NAME}_kernel')
        L.append('.p2align 8')
        L.append(f'.type {NAME}_kernel,@function')
        L.append(f'{NAME}_kernel:')
        A('s_cmp_ge_u32 s2, 256')
        A('s_cbranch_scc1 L_end')
        A('s_load_dwordx16 s[4:19], s[0:1], 0')
        A('s_load_dwordx8 s[20:27], s[0:1], 64')
        A('s_load_dwordx2 s[28:29], s[0:1], 96')
        if self.stamps:
            for i in range(70, 96): A(f's_mov_b32 s{i}, 0')
        self.stamp(0)
        A('v_lshrrev_b32 v5, 6, v0')
        A('v_mov_b32 v4, 0')
        A('v_readfirstlane_b32 s3, v5')
        A('v_and_b32 v0, 63, v0')
        A('v_mov_b32 v6, 1')
        A('v_lshlrev_b32 v1, 4, v0')
        A('v_and_b32 v57, 3, v5')
        A('v_lshl_add_u32 v11, v57, 12, v1')
        A('v_lshrrev_b32 v8, 4, v0')
        A('v_and_b32 v9, 15, v0')
        A('v_and_b32 v12, 3, v0')
        A('v_lshrrev_b32 v13, 2, v9')
        dt = 19 if o['inter'] == 8 else 13
        A('v_and_b32 v2, 1, v0'); A('v_lshlrev_b32 v2, 4, v2')
        A('v_lshl_add_u32 v2, v13, 8, v2')
        A('v_lshl_add_u32 v2, v8, 5, v2')
        A('v_and_b32 v7, 2, v0')
        A(f'v_lshl_add_u32 v2, v7, {dt-1}, v2')
        A('v_and_b32 v7, 7, v0')
        A('v_lshlrev_b32 v10, 2, v7')
        A(f'v_mul_u32_u24 v3, {QSTR}, v7')
        A('v_lshl_add_u32 v3, v8, 5, v3')
        A('v_and_b32 v7, 8, v0')
        A('v_lshl_add_u32 v3, v7, 1, v3')
        A('s_setprio 2')
        A('s_mov_b32 s30, 0x05040100')
        A('s_mov_b32 s31, 0x07060302')
        A('s_mov_b32 s100, 0xffff0000')
        A('s_mov_b32 s101, 0x3db504f3')
        A('v_lshlrev_b32 v14, 15, v7'); A('v_lshl_add_u32 v14, v8, 16, v14'); A('v_lshl_add_u32 v14, v10, 2, v14')
        A('v_and_b32 v15, 1, v0'); A('v_lshlrev_b32 v15, 6, v15'); A('v_lshl_add_u32 v15, v8, 4, v15')
        A('s_and_b32 s49, s2, 1'); A('s_lshl_b32 s49, s49, 9'); A('s_lshl_b32 s48, s3, 6'); A('s_add_u32 s49, s49, s48')
        A('s_bfe_u32 s52, s2, 0x60001')
        A('s_lshl_b32 s48, s49, 13'); A('s_lshl_b32 s50, s52, 7'); A('s_add_u32 s48, s48, s50')
        A('s_lshl_b32 s49, s49, 1'); A('v_add_u32 v15, s49, v15')
        A('s_waitcnt lgkmcnt(0)')
        A('s_cmp_lt_u32 s2, 128')
        A('s_cselect_b32 s40, s10, s20'); A('s_cselect_b32 s41, s11, s21'); A('s_mov_b32 s42, 0x800000'); A('s_mov_b32 s43, 0x20000')
        A('s_cselect_b32 s66, s4, s14');  A('s_cselect_b32 s67, s5, s15')
        A('s_cselect_b32 s10, s12, s22'); A('s_cselect_b32 s11, s13, s23')
        A('s_cmp_ge_u32 s3, 8')
        A('s_cbranch_scc1 L_nowq')
        for j in range(8):
            A(f'buffer_load_dwordx4 v[{64+4*j}:{67+4*j}], v14, s[40:43], s48 offen nt')
            if j < 7: A('s_add_u32 s48, s48, 8192')
        A('global_load_dwordx4 v[16:19], v15, s[66:67]')
        self.lab('L_nowq')
        A('s_mov_b32 s32, s6');  A('s_mov_b32 s33, s7');  A('s_mov_b32 s34, 0x4000000'); A('s_mov_b32 s35, 0x20000')
        A('s_mov_b32 s36, s8');  A('s_mov_b32 s37, s9');  A('s_mov_b32 s38, 0x4000000'); A('s_mov_b32 s39, 0x20000')
        A('s_mov_b32 s44, s28'); A('s_mov_b32 s45, s29'); A(f's_mov_b32 s46, {WS_BYTES}'); A('s_mov_b32 s47, 0x20000')
        A('s_lshr_b32 s20, s2, 7')
        A('s_and_b32 s4, s2, 7'); A('s_bfe_u32 s7, s2, 0x30004'); A('s_lshl_b32 s7, s7, 3'); A('s_add_u32 s4, s4, s7')
        A('s_bfe_u32 s7, s2, 0x10003')
        A('s_lshr_b32 s22, s2, 6')
        A('s_and_b32 s23, s2, 63')
        A('s_mov_b32 s14, 0x00ff00ff'); A('s_mov_b32 s15, 0x00ff00ff')
        A('s_lshl_b32 s48, s23, 7')
        A(f's_mul_i32 s6, s22, {32*IB}'); A('s_add_u32 s6, s6, s48'); A(f's_add_u32 s6, s6, {WS_I1}')
        A(f's_mul_i32 s5, s22, {4*IB}'); A('s_add_u32 s5, s5, s48'); A(f's_add_u32 s5, s5, {WS_ML}')
        self.kv_offsets()
        A('s_cmp_ge_u32 s3, 8')
        A('s_cbranch_scc1 L_young0')
        A('s_load_dword s54, s[28:29], 0')
        A('s_lshr_b32 s56, s2, 5'); A(f's_mul_i32 s56, s56, {4*IB}'); A('s_and_b32 s48, s2, 1'); A('s_lshl_b32 s48, s48, 12'); A('s_add_u32 s56, s56, s48')
        A('s_and_b32 s48, s52, 15'); A('s_lshl_b32 s48, s48, 8'); A('s_add_u32 s56, s56, s48'); A(f's_add_u32 s56, s56, {WS_Q}')
        A(f'v_mul_u32_u24 v60, {IB}, v8'); A('v_lshl_add_u32 v60, v9, 4, v60')
        A('v_lshlrev_b32 v7, 3, v10'); A('v_and_b32 v5, 8, v0'); A('v_lshl_add_u32 v7, v5, 1, v7')
        A('s_lshl_b32 s48, s3, 8'); A('v_add_u32 v7, s48, v7')
        A('v_mov_b32 v56, 0xffffff00')
        A('s_barrier')
        A('s_waitcnt vmcnt(0)')
        for tt in range(8): self.perm_tile(64, tt, 96 + 4 * tt)
        A('s_nop 1')
        self.proj_result()
        A(f'ds_write_b128 v7, v[20:23] offset:{L_QS}')
        A('s_mov_b64 exec, -1')
        self.lds_inc_rtn(C_Q)
        self.stamp(1)
        self.tag()
        A('s_cmp_lg_u32 s48, 7')
        A('s_cbranch_scc1 L_task')
        A('s_setprio 3')
        for k in range(2): A(f'ds_read_b128 v[{32+4*k}:{35+4*k}], v1 offset:{L_QS + 1024*k}')
        A('s_waitcnt lgkmcnt(0)')
        for e in range(4): A(f'v_add_f32 v{32+e}, v{32+e}, v{36+e}')
        self.xg_reduce('v_add_f32', [32, 33, 34, 35], [36, 37, 38, 39])
        self.embed(range(32, 36))
        A('buffer_store_dwordx4 v[32:35], v60, s[44:47], s56 offen sc1')
        A('s_setprio 2')
        A('s_branch L_task')
        self.lab('L_young0')
        A('v_mov_b32 v5, 0xff800000')
        A('v_cmp_gt_u32 vcc, 16, v0')
        A('v_lshlrev_b32 v7, 2, v0')
        A('s_nop 0')
        A('v_cndmask_b32 v5, v4, v5, vcc')
        A(f'ds_write_b32 v7, v5 offset:{L_MISC}')
        A('s_waitcnt lgkmcnt(0)')
        A('s_barrier')
        A('s_load_dword s54, s[28:29], 0')
        self.lab('L_task')
        self.task(False)
        A('s_cmp_ge_u32 s3, 8')
        A('s_cbranch_scc1 L_tail_young')
        A('s_cmp_lg_u32 s3, 2')
        A('s_cbranch_scc1 L_wo')
        self.o['inB'] = 1
        self.task(True)
        self.o['inB'] = 0
        self.stamp(9)
        self.lab('L_wo')
        self.o['intail'] = 1
        A('s_mov_b32 s40, s10'); A('s_mov_b32 s41, s11')
        A('s_lshr_b32 s50, s4, 4'); A('s_lshl_b32 s50, s50, 10')
        A('s_and_b32 s51, s4, 3'); A('s_lshl_b32 s51, s51, 5'); A('s_add_u32 s50, s50, s51')
        A('s_bfe_u32 s51, s4, 0x20002'); A('s_add_u32 s50, s50, s51')
        A('s_lshl_b32 s50, s50, 11'); A('s_lshl_b32 s51, s7, 10'); A('s_add_u32 s50, s50, s51'); A('s_lshl_b32 s51, s3, 7'); A('s_add_u32 s50, s50, s51')
        A('v_lshrrev_b32 v8, 4, v0')
        A('v_lshlrev_b32 v58, 19, v8'); A('v_lshl_add_u32 v58, v10, 2, v58'); A('v_and_b32 v5, 8, v0'); A('v_lshl_add_u32 v58, v5, 10, v58')
        A('v_and_b32 v60, 1, v0'); A('v_lshlrev_b32 v60, 6, v60'); A('v_lshl_add_u32 v60, v8, 4, v60')
        self.out_addr()
        A('s_setprio 0')
        for j in range(8):
            A(f'buffer_load_dwordx4 v[{64+4*j}:{67+4*j}], v58, s[40:43], s50 offen nt')
            if j < 7: A(f's_add_u32 s50, s50, {16384 if j != 3 else (128 - 24) * 2048}')
        self.stamp(11)
        A('s_waitcnt vmcnt(0)')
        A('s_setprio 2')
        for tt in range(8): self.perm_tile(64, tt, 96 + 4 * tt)
        self.stamp(12)
        if o.get('notail'): A('s_branch L_fin')
        self.lds_wait(F_O, 2, sleep=0)
        A(f'ds_read_b128 v[16:19], v60 offset:{L_O}')
        A('s_waitcnt lgkmcnt(0)')
        self.proj_result()
        self.embed(range(20, 24))
        A('buffer_store_dwordx4 v[20:23], v59, s[44:47], s53 offen sc1')
        A('s_mov_b64 exec, -1')
        self.stamp(13)
        A('s_branch L_fin')
        self.lab('L_tail_young')
        if o.get('notail'):
            A('s_lshl_b32 s48, s2, 4'); A('s_add_u32 s48, s48, s3'); A('s_cmp_lg_u32 s48, 15'); A('s_cbranch_scc1 L_fin')
            A('v_mov_b32 v13, s55'); A('s_mov_b64 exec, 1'); A('global_store_dword v4, v13, s[28:29]'); A('s_mov_b64 exec, -1')
            A('s_branch L_fin')
        A('s_cmp_eq_u32 s3, 10')
        A('s_cbranch_scc1 L_red')
        A('s_cmp_ge_u32 s3, 10')
        A('s_cbranch_scc1 L_fin')
        A('s_lshr_b32 s40, s4, 4'); A('s_lshl_b32 s41, s20, 2'); A('s_add_u32 s40, s40, s41')
        A('s_lshl_b32 s41, s40, 2'); A('s_and_b32 s42, s2, 3'); A('s_add_u32 s41, s41, s42'); A(f's_mul_i32 s41, s41, {IB}'); A(f's_add_u32 s41, s41, {WS_ML}')
        A('s_lshl_b32 s40, s40, 5'); A('s_and_b32 s42, s4, 15'); A('s_lshl_b32 s42, s42, 1'); A('s_add_u32 s40, s40, s42')
        A('s_and_b32 s42, s3, 1'); A('s_add_u32 s40, s40, s42'); A(f's_mul_i32 s40, s40, {IB}'); A(f's_add_u32 s40, s40, {WS_I1}')
        A('s_lshl_b32 s42, s42, 6'); A('v_lshlrev_b32 v12, 3, v0'); A('v_add_u32 v12, s42, v12')
        A('s_cmp_eq_u32 s3, 9'); A('s_cbranch_scc1 L_w9')
        self.gather(96, 's41', 8, True)
        self.stamp(9)
        M = [96 + 4 * k for k in range(8)]
        A(f'v_max3_f32 v32, v{M[0]}, v{M[1]}, v{M[2]}'); A(f'v_max3_f32 v32, v32, v{M[3]}, v{M[4]}'); A(f'v_max3_f32 v32, v32, v{M[5]}, v{M[6]}'); A(f'v_max_f32 v32, v32, v{M[7]}')
        self.ror_reduce('v_max_f32', [32], 8)
        self.xg_reduce('v_max_f32', [32], [33])
        for k in range(8): A(f'v_sub_f32 v{M[k]}, v{M[k]}, v32')
        for k in range(8): A(f'v_mul_f32 v{M[k]}, 0x3fb8aa3b, v{M[k]}')
        for k in range(8): A(f'v_exp_f32 v{M[k]}, v{M[k]}')
        A('s_nop 0')
        A(f'v_mul_f32 v32, v{M[0]}, v{M[0]+2}')
        for k in range(1, 8): A(f'v_fmac_f32 v32, v{M[k]}, v{M[k]+2}')
        self.ror_reduce('v_add_f32', [32], 8)
        self.xg_reduce('v_add_f32', [32], [33])
        A('v_rcp_f32 v33, v32')
        A('s_nop 0')
        A('v_fma_f32 v34, -v32, v33, 1.0')
        A('v_fma_f32 v33, v34, v33, v33')
        for k in range(8): A(f'v_mul_f32 v{16+k}, v{M[k]}, v33')
        A(f'ds_write_b128 v1, v[16:19] offset:{L_QS}'); A(f'ds_write_b128 v1, v[20:23] offset:{L_QS+1024}')
        A(f'ds_write_b32 v4, v6 offset:{F_W}')
        A('s_branch L_w8')
        self.lab('L_w9')
        self.lds_wait(F_W, 1)
        A(f'ds_read_b128 v[16:19], v1 offset:{L_QS}'); A(f'ds_read_b128 v[20:23], v1 offset:{L_QS+1024}')
        A('s_waitcnt lgkmcnt(0)')
        self.lab('L_w8')
        M = [16 + k for k in range(8)]
        nw = self.newlab('NW')
        A('s_cmp_lg_u32 s20, 0'); A(f's_cbranch_scc1 {nw}')
        self.lds_wait(C_O, 4)
        self.lab(nw)
        self.stamp(11)
        self.gather(64, 's40', 8, False)
        self.stamp(12)
        for e in range(4): A(f'v_mul_f32 v{32+e}, v{M[0]}, v{64+e}')
        for k in range(1, 8):
            for e in range(4): A(f'v_fmac_f32 v{32+e}, v{M[k]}, v{64+4*k+e}')
        self.ror_reduce('v_add_f32', [32, 33, 34, 35], 8)
        self.xg_reduce('v_add_f32', [32, 33, 34, 35], [36, 37, 38, 39])
        A('v_cvt_pk_bf16_f32 v32, v32, v33'); A('v_cvt_pk_bf16_f32 v33, v34, v35')
        A('s_mov_b64 exec, 0xff')
        A(f'ds_write_b64 v12, v[32:33] offset:{L_O}')
        A('s_mov_b64 exec, 1')
        A(f'ds_add_u32 v4, v6 offset:{F_O}')
        A('s_mov_b64 exec, -1')
        self.stamp(13)
        A('s_branch L_fin')
        self.lab('L_red')
        A('s_bfe_u32 s40, s2, 0x20003'); A('s_cmp_lg_u32 s40, 0')
        A('s_cbranch_scc1 L_fin')
        A('s_lshr_b32 s40, s2, 5'); A('s_lshl_b32 s40, s40, 3'); A('s_and_b32 s41, s2, 7'); A('s_add_u32 s40, s40, s41')
        A('s_lshl_b32 s42, s40, 6'); A('v_lshlrev_b32 v12, 3, v0'); A('v_add_u32 v12, s42, v12')
        A(f's_mul_i32 s40, s40, {IB}'); A(f's_add_u32 s40, s40, {WS_I2}')
        A('v_mov_b32 v13, s55')
        self.lds_wait(F_O, 2)
        self.stamp(11)
        self.gather(64, 's40', 8, False)
        self.stamp(12)
        for k in range(4):
            for e in range(4): A(f'v_add_f32 v{64+4*k+e}, v{64+4*k+e}, v{80+4*k+e}')
        for k in range(2):
            for e in range(4): A(f'v_add_f32 v{64+4*k+e}, v{64+4*k+e}, v{72+4*k+e}')
        for e in range(4): A(f'v_add_f32 v{64+e}, v{64+e}, v{68+e}')
        self.ror_reduce('v_add_f32', [64, 65, 66, 67], 8)
        self.xg_reduce('v_add_f32', [64, 65, 66, 67], [36, 37, 38, 39])
        A('v_cvt_pk_bf16_f32 v32, v64, v65'); A('v_cvt_pk_bf16_f32 v33, v66, v67')
        A('s_mov_b64 exec, 0xff')
        A('global_store_dwordx2 v12, v[32:33], s[24:25]')
        A('s_cmp_lg_u32 s2, 0')
        A('s_cbranch_scc1 L_nogen')
        A('s_mov_b64 exec, 1')
        A('global_store_dword v4, v13, s[28:29]')
        self.lab('L_nogen')
        A('s_mov_b64 exec, -1')
        self.stamp(13)
        self.lab('L_fin')
        if self.stamps:
            A('s_waitcnt vmcnt(0) lgkmcnt(0)')
            A('s_getreg_b32 s48, hwreg(HW_REG_XCC_ID)')
            A('s_getreg_b32 s49, hwreg(HW_REG_HW_ID)')
            for i in range(28): A(f'v_writelane_b32 v20, s{68+i}, {i}')
            A('v_writelane_b32 v20, s48, 28')
            A('v_writelane_b32 v20, s49, 29')
            A('s_lshl_b32 s48, s2, 4'); A('s_add_u32 s48, s48, s3'); A('s_lshl_b32 s48, s48, 7'); A(f's_add_u32 s48, s48, {STAMP_OFF}')
            A('v_lshlrev_b32 v7, 2, v0'); A('v_add_u32 v7, s48, v7')
            A('s_mov_b64 exec, 0xffffffff')
            A('global_store_dword v7, v20, s[28:29]')
        self.lab('L_end')
        A('s_endpgm')
        L.append('.section .rodata,"a"')
        L.append('.p2align 6')
        L.append(f'.amdhsa_kernel {NAME}_kernel')
        L.append('  .amdhsa_next_free_vgpr 128')
        L.append('  .amdhsa_next_free_sgpr 102')
        L.append('  .amdhsa_accum_offset 128')
        L.append('  .amdhsa_group_segment_fixed_size 0')
        L.append('  .amdhsa_kernarg_size 104')
        L.append('  .amdhsa_user_sgpr_count 2')
        L.append('  .amdhsa_user_sgpr_kernarg_segment_ptr 1')
        L.append('  .amdhsa_system_sgpr_workgroup_id_x 1')
        L.append('.end_amdhsa_kernel')
        return '\n'.join(L) + '\n'

    def kv_offsets(self):
        A = self.A; o = self.o
        A('s_lshl_b32 s96, s22, 24')
        if o['inter'] == 8:
            A('s_lshl_b32 s48, s3, 20'); A('s_add_u32 s96, s96, s48')
            A('s_lshl_b32 s48, s23, 13'); A('s_add_u32 s96, s96, s48')
            A('s_add_u32 s97, s96, 4096'); A('s_add_u32 s98, s96, 0x80000'); A('s_add_u32 s99, s98, 4096')
        elif o['inter'] == 16:
            A('s_lshl_b32 s48, s3, 20'); A('s_add_u32 s96, s96, s48')
            A('s_lshl_b32 s48, s23, 14'); A('s_add_u32 s96, s96, s48')
            A('s_add_u32 s97, s96, 4096'); A('s_add_u32 s98, s96, 8192'); A('s_add_u32 s99, s96, 12288')
        else:
            A('s_lshl_b32 s48, s3, 14'); A('s_add_u32 s96, s96, s48')
            A('s_lshl_b32 s48, s23, 18'); A('s_add_u32 s96, s96, s48')
            A('s_add_u32 s97, s96, 4096'); A('s_add_u32 s98, s96, 8192'); A('s_add_u32 s99, s96, 12288')

if __name__ == '__main__':
    out = sys.argv[1]
    stamps = 'stamps' in sys.argv[2:]
    opts = {}
    for a in sys.argv[2:]:
        if '=' in a:
            k, v = a.split('='); opts[k] = int(v)
    open(out, 'w').write(Gen(stamps, opts).build())
```

```python
import sys
NAME = 'concat_heads__gqa_block_cached__sliding_block_cached__decode'

HEADER = open('cdna_kernels/' + NAME + '.s.ref').read().split('; Override launch')[0]

IB = 8448
WS_Q = 0x4000
WS_ML = 0x50000
WS_I1 = 0xA0000
WS_I2 = 0x2C0000
WS_BYTES = 0x400000
STAMP_OFF = 0x10000000
L_CH, L_QS, L_QA, L_QB, L_MISC = 0, 16384, 20480, 22784, 25088
QSTR = 272
L_MA, L_LA = L_MISC, L_MISC + 64
L_C = L_MISC + 128
C_Q, C_M, C_O, C_L, F_QA, F_QB, F_O, C_B, C_D, F_W, F_X2, F_X3, F_CH = [L_C + 4 * i for i in range(13)]
L_O = L_MISC + 256
L_B = 25600
LDS_BYTES = L_B + 32768

class Gen:
    def __init__(self, stamps=False, opts=None):
        self.L = []
        self.stamps = stamps
        self.nlab = 0
        self.o = dict(inter=8, qw=4)
        if opts: self.o.update(opts)
    def A(self, s):
        if self.o.get('pure') and s.startswith('buffer_store'): return
        dr = self.o.get('drop', 0)
        if s.startswith('buffer_store'):
            if 'v58' in s and self.o.get('inB') and dr & 1: return
            if 'v58' in s and not self.o.get('inB') and dr & 2: return
            if 'v[12:15]' in s and dr & 4: return
            if 'v58' in s and dr & 8: s = s.replace(' sc1', '')
            if 'v58' in s and dr & 16: s = s.replace(' sc1', ' sc1 nt')
        self.L.append('    ' + s)
    def lab(self, s): self.L.append(s + ':')
    def newlab(self, p='L'):
        self.nlab += 1
        return f'{p}_{self.nlab}'
    def stamp(self, i):
        if self.o.get('lite') and i not in (0, 13): return
        if self.stamps: self.A(f's_memrealtime s[{68+2*i}:{69+2*i}]')

    def lds_wait(self, addr, val, sleep=1, areg=4):
        A = self.A
        l = self.newlab('W'); d = self.newlab('D')
        A('s_mov_b32 s49, 0x40000')
        self.lab(l)
        A(f'ds_read_b32 v5, v{areg} offset:{addr}')
        A('s_waitcnt lgkmcnt(0)')
        A('v_readfirstlane_b32 s48, v5')
        A(f's_cmp_ge_u32 s48, {val}')
        A(f's_cbranch_scc1 {d}')
        if sleep: A(f's_sleep {sleep}')
        A('s_sub_u32 s49, s49, 1')
        A(f's_cbranch_scc0 {l}')
        self.lab(d)
    def lds_inc(self, addr, areg=4):
        A = self.A
        A('s_mov_b64 exec, 1')
        A(f'ds_add_u32 v{areg}, v6 offset:{addr}')
        A('s_mov_b64 exec, -1')
    def lds_inc_rtn(self, addr):
        A = self.A
        A('s_mov_b64 exec, 1')
        A(f'ds_add_rtn_u32 v5, v4, v6 offset:{addr}')
        A('s_mov_b64 exec, -1')
        A('s_waitcnt lgkmcnt(0)')
        A('v_readfirstlane_b32 s48, v5')
    def tag(self):
        A = self.A
        A('s_and_b32 s55, s54, 0x7f7f7f7f'); A('s_add_u32 s55, s55, 0x35172b4d'); A('s_and_b32 s8, s54, 0x80808080'); A('s_xor_b32 s55, s55, s8')
        A('s_and_b32 s8, s55, 0xff'); A('s_bfe_u32 s9, s55, 0x80008'); A('s_bfe_u32 s12, s55, 0x80010'); A('s_lshr_b32 s13, s55, 24')
    TB = ['s8', 's9', 's12', 's13']
    def embed(self, regs):
        for r in regs: self.A(f'v_and_or_b32 v{r}, v{r}, v56, {self.TB[r & 3]}')

    def perm_tile(self, src, tt, dst):
        i, h = tt >> 1, tt & 1
        sel = 's31' if h else 's30'
        for jp in range(4):
            self.A(f'v_perm_b32 v{dst+jp}, v{src+4*(2*jp+1)+i}, v{src+4*(2*jp)+i}, {sel}')

    def xg_reduce(self, op, regs, tmps):
        A = self.A
        for sw in ('v_permlane16_swap_b32', 'v_permlane32_swap_b32'):
            for r, t in zip(regs, tmps): A(f'v_mov_b32 v{t}, v{r}')
            A('s_nop 1')
            for r, t in zip(regs, tmps): A(f'{sw} v{r}, v{t}')
            A('s_nop 1')
            for r, t in zip(regs, tmps): A(f'{op} v{r}, v{r}, v{t}')
    def ror_reduce(self, op, regs, n):
        A = self.A
        A('s_nop 1')
        for r in regs: A(f'{op}_dpp v{r}, v{r}, v{r} row_ror:{n} row_mask:0xf bank_mask:0xf')

    def gather(self, dst, sbase, N, tagged):
        A = self.A
        l = self.newlab('G'); d = self.newlab('GD')
        A('s_setprio 3')
        A(f's_add_u32 s51, {sbase}, 4096')
        A('s_mov_b32 s49, 0x8000')
        self.lab(l)
        for k in range(N):
            r = dst + 4 * k
            A(f'buffer_load_dwordx4 v[{r}:{r+3}], v1, s[44:47], {sbase if k < 4 else "s51"} offen offset:{1024*(k&3)} sc1')
        for k in range(N):
            r = dst + 4 * k
            A(f's_waitcnt vmcnt({N-1-k})')
            if tagged:
                if k == 0:
                    A(f'v_min_u32 v5, v{r+1}, v{r+3}'); A(f'v_max_u32 v7, v{r+1}, v{r+3}')
                else:
                    A(f'v_min3_u32 v5, v5, v{r+1}, v{r+3}'); A(f'v_max3_u32 v7, v7, v{r+1}, v{r+3}')
            else:
                if k == 0:
                    A(f'v_xor_b32 v5, s8, v{r}'); A(f'v_xor_b32 v7, s9, v{r+1}')
                else:
                    A(f'v_bitop3_b32 v5, s8, v5, v{r} bitop3:0xde'); A(f'v_bitop3_b32 v7, s9, v7, v{r+1} bitop3:0xde')
                A(f'v_bitop3_b32 v5, s12, v5, v{r+2} bitop3:0xde'); A(f'v_bitop3_b32 v7, s13, v7, v{r+3} bitop3:0xde')
        if tagged:
            A('v_cmp_ne_u32 vcc, s55, v5')
            A('v_cmp_ne_u32 s[66:67], s55, v7')
            A('s_or_b64 s[66:67], s[66:67], vcc')
            A(f's_cbranch_scc0 {d}')
        else:
            A('v_or_b32 v5, v5, v7')
            A('v_and_b32 v5, 0xff, v5')
            A('v_cmp_ne_u32 vcc, 0, v5')
            A(f's_cbranch_vccz {d}')
        A('s_sub_u32 s49, s49, 1')
        A(f's_cbranch_scc0 {l}')
        self.lab(d)

    def q_gather(self, br):
        A = self.A
        if self.o.get('pure'):
            A(f'ds_write_b32 v4, v6 offset:{F_QB if br else F_QA}')
            return
        A('v_lshrrev_b32 v8, 5, v0'); A('v_and_b32 v5, 31, v0')
        A(f'v_mul_u32_u24 v8, {QSTR}, v8'); A('v_lshl_add_u32 v8, v5, 3, v8')
        A('s_lshl_b32 s52, s22, 2'); A('s_and_b32 s51, s2, 3'); A('s_add_u32 s52, s52, s51')
        A(f's_mul_i32 s52, s52, {IB}'); A(f's_add_u32 s52, s52, {WS_Q + br * 16 * IB}')
        if not br and self.o.get('hint'):
            l = self.newlab('H'); d = self.newlab('HD')
            R = list(range(56, 66)) + list(range(74, 96))
            A('s_add_u32 s66, s28, s52'); A('s_addc_u32 s67, s29, 0')
            A('s_mov_b32 s49, 0x8000')
            self.lab(l)
            for k in range(32): A(f's_load_dword s{R[k]}, s[66:67], {256*k} glc')
            A('s_waitcnt lgkmcnt(0)')
            A('s_mov_b32 s50, s8'); A('s_mov_b32 s51, s8')
            for k in range(0, 32, 2): A(f's_xor_b64 s[{R[k]}:{R[k]+1}], s[{R[k]}:{R[k]+1}], s[50:51]')
            for k in range(2, 32, 2): A(f's_or_b64 s[56:57], s[56:57], s[{R[k]}:{R[k]+1}]')
            A('s_or_b32 s56, s56, s57'); A('s_and_b32 s56, s56, 0xff')
            A(f's_cbranch_scc0 {d}')
            A('s_sub_u32 s49, s49, 1')
            A(f's_cbranch_scc0 {l}')
            self.lab(d)
            if self.stamps:
                for i in range(74, 96): A(f's_mov_b32 s{i}, 0')
            self.stamp(10)
        self.gather(32, 's52', 8, False)
        for k in range(4):
            r = 32 + 4 * k
            for e in range(4): A(f'v_add_f32 v{r+e}, v{r+e}, v{r+16+e}')
            A(f'v_cvt_pk_bf16_f32 v{r}, v{r}, v{r+1}'); A(f'v_cvt_pk_bf16_f32 v{r+1}, v{r+2}, v{r+3}')
            A(f'ds_write_b64 v8, v[{r}:{r+1}] offset:{(L_QB if br else L_QA) + 2*QSTR*k}')
        A(f'ds_write_b32 v4, v6 offset:{F_QB if br else F_QA}')

    def k_loads(self):
        for n in range(8):
            for hf in range(2):
                r = 64 + 8 * n + 4 * hf
                self.A(f'buffer_load_dwordx4 v[{r}:{r+3}], v2, s[32:35], s{96+(n>>2)} offen offset:{1024*(n&3)+128*hf} nt')
                self.A('s_nop 0')
    def v_issue(self):
        self.A('s_setprio 1')
        for t in range(4):
            for j in range(4):
                r = 64 + 16 * t + 4 * j
                self.A(f'buffer_load_dwordx4 v[{r}:{r+3}], v1, s[36:39], s{96+t} offen offset:{1024*j} nt')
                self.A('s_nop 0')
        self.A('s_setprio 2')
    def vS(self, reg):
        A = self.A
        A(f'v_lshrrev_b32 v{reg}, 3, v0'); A(f'v_mul_u32_u24 v{reg}, {IB}, v{reg}'); A(f'v_lshl_add_u32 v{reg}, v10, 2, v{reg}')
    def ml_store(self, br):
        A = self.A
        A('s_setprio 3')
        A('v_mov_b32 v13, s55'); A('v_mov_b32 v15, s55')
        self.vS(7)
        if br: A(f's_add_u32 s5, s5, {16*IB}')
        A('s_mov_b64 exec, 0xffffffff')
        A(f'buffer_store_dwordx4 v[12:15], v7, s[44:47], s5 offen sc1')
        A('s_mov_b64 exec, -1')
        A('s_setprio 2')
    def op_offsets(self, br):
        A = self.A
        for q in range(4): A(f's_add_u32 s{56+q}, s6, {br * 128 * IB + 8 * q * IB}')

    def task(self, isB):
        A = self.A
        LQ = L_QB if isB else L_QA
        if isB:
            A(f'v_add_u32 v13, {L_B}, v1')
            self.lds_wait(C_B, 4)
            for n in range(16): A(f'ds_read_b128 v[{64+4*n}:{67+4*n}], v13 offset:{1024*n}')
            self.lds_wait(F_QB, 1)
        else:
            self.k_loads()
            self.stamp(2)
            nod = self.newlab('NOD'); wq = self.newlab('WQ'); nq = self.newlab('NQ')
            A('s_cmp_lt_u32 s3, 12'); A(f's_cbranch_scc1 {nod}')
            A('s_mov_b32 s56, s16'); A('s_mov_b32 s57, s17'); A('s_mov_b32 s58, 0x4000000'); A('s_mov_b32 s59, 0x20000')
            A('s_mov_b32 s60, s18'); A('s_mov_b32 s61, s19'); A('s_mov_b32 s62, 0x4000000'); A('s_mov_b32 s63, 0x20000')
            A('s_lshl_b32 s50, s22, 24'); A('s_lshl_b32 s48, s23, 14'); A('s_add_u32 s50, s50, s48'); A(f's_add_u32 s50, s50, {61440*256}')
            A('s_sub_u32 s52, s3, 12')
            A('s_lshl_b32 s48, s52, 11'); A('s_add_u32 s51, s50, s48')
            A('s_lshl_b32 s48, s52, 12'); A('s_add_u32 s50, s50, s48')
            A(f's_add_u32 s48, s48, {L_B}')
            A('v_and_b32 v7, 0xfff, v2'); A('v_and_b32 v5, 2, v0'); A('v_lshl_add_u32 v7, v5, 12, v7')
            for j, (imm, adj) in enumerate(((0, 896), (128, 128), (1024, 896), (1152, 0))):
                A('s_mov_b32 m0, s48'); A(f's_add_u32 s48, s48, {adj}')
                A(f'buffer_load_dwordx4 v7, s[56:59], s51 offen offset:{imm} nt lds')
            A(f's_add_u32 s48, s48, {16384 - 1920}')
            A('s_mov_b32 m0, s48'); A('s_nop 0')
            for j in range(4):
                A(f'buffer_load_dwordx4 v1, s[60:63], s50 offen offset:{1024*j} nt lds')
                A('s_nop 0')
            self.stamp(10)
            self.lds_wait(F_QA, 1)
            A('s_waitcnt vmcnt(8)')
            A(f's_branch {wq}')
            self.lab(nod)
            A(f's_cmp_lg_u32 s3, {self.o["qw"]}'); A(f's_cbranch_scc1 {nq}')
            if self.o['qw'] >= 8:
                A('s_waitcnt lgkmcnt(0)'); self.tag()
            if self.o.get('qdelay'): A(f's_waitcnt vmcnt({16 - self.o["qdelay"]})')
            self.q_gather(0)
            A('s_setprio 2')
            self.stamp(9)
            if self.stamps:
                A('s_sub_u32 s88, 0x8001, s49'); A('s_mul_i32 s88, s88, 100'); A('s_add_u32 s88, s88, s68'); A('s_mov_b32 s89, s69')
            self.lab(nq)
            self.lds_wait(F_QA, 1)
            A('s_waitcnt vmcnt(0)')
            self.lab(wq)
            self.tag()
        for hf in range(2):
            A(f'ds_read_b128 v[{16+4*hf}:{19+4*hf}], v3 offset:{LQ + 128*hf}')
        A('s_waitcnt lgkmcnt(0)')
        if not isB: self.stamp(3)
        for hf in range(2):
            for n in range(8):
                r = 64 + 8 * n + 4 * hf
                c = '0' if hf == 0 else f'v[{32+4*n}:{35+4*n}]'
                A(f'v_mfma_f32_16x16x32_bf16 v[{32+4*n}:{35+4*n}], v[{r}:{r+3}], v[{16+4*hf}:{19+4*hf}], {c}')
        A('s_nop 0')
        for n in range(8):
            d = 32 + 4 * n
            A(f'v_cndmask_b32 v{d}, v{d+3}, v{d}, s[14:15]')
            A(f'v_cndmask_b32 v{d+1}, v{d+1}, v{d+2}, s[14:15]')
        for n in range(8):
            d = 32 + 4 * n
            A(f'v_add_f32_dpp v{24+n}, v{d+1}, v{d} row_ror:8 row_mask:0xf bank_mask:0xf')
        A('v_max3_f32 v8, v24, v25, v26')
        A('v_max3_f32 v9, v27, v28, v29')
        A('v_max3_f32 v8, v8, v30, v31')
        A('v_max_f32 v8, v8, v9')
        self.ror_reduce('v_max_f32', [8], 8)
        self.xg_reduce('v_max_f32', [8], [9])
        if isB:
            for n in range(16): A(f'ds_read_b128 v[{64+4*n}:{67+4*n}], v13 offset:{16384 + 1024*n}')
        else:
            A('s_mov_b64 exec, 0xff')
            A(f'ds_max_f32 v10, v8 offset:{L_MA}')
            A('s_mov_b64 exec, -1')
            self.lds_inc(C_M)
            self.stamp(4)
            young = self.newlab('Y'); nqb = self.newlab('NQB')
            A('s_cmp_lg_u32 s3, 5'); A(f's_cbranch_scc1 {nqb}')
            self.q_gather(1)
            A('s_setprio 2')
            self.stamp(9)
            self.lab(nqb)
            A('s_cmp_ge_u32 s3, 4')
            A(f's_cbranch_scc1 {young}')
            self.v_issue()
            self.lab(young)
        S = list(range(24, 32))
        for k in range(4): A(f'v_cvt_pk_bf16_f32 v{32+k}, v{S[2*k]}, v{S[2*k+1]}')
        for k in range(4):
            A(f'v_lshlrev_b32 v{S[2*k]}, 16, v{32+k}')
            A(f'v_and_b32 v{S[2*k+1]}, s100, v{32+k}')
        for x in S: A(f'v_mul_f32 v{x}, s101, v{x}')
        for k in range(4): A(f'v_cvt_pk_bf16_f32 v{32+k}, v{S[2*k]}, v{S[2*k+1]}')
        for k in range(4):
            A(f'v_lshlrev_b32 v{S[2*k]}, 16, v{32+k}')
            A(f'v_and_b32 v{S[2*k+1]}, s100, v{32+k}')
        if not isB:
            self.lds_wait(C_M, 16)
            self.stamp(5)
            A(f'ds_read_b32 v8, v10 offset:{L_MA}')
            A('s_waitcnt lgkmcnt(0)')
        A('v_cvt_pk_bf16_f32 v8, v8, v8')
        A('v_and_b32 v8, s100, v8')
        A('v_mul_f32 v8, s101, v8')
        A('v_cvt_pk_bf16_f32 v8, v8, v8')
        A('v_and_b32 v12, s100, v8')
        for x in S: A(f'v_sub_f32 v{x}, v{x}, v12')
        for x in S: A(f'v_mul_f32 v{x}, 0x3fb8aa3b, v{x}')
        for x in S: A(f'v_exp_f32 v{x}, v{x}')
        A('s_nop 0')
        for k in range(4): A(f'v_cvt_pk_bf16_f32 v{32+k}, v{S[2*k]}, v{S[2*k+1]}')
        for k in range(4): A(f'v_add_f32 v{36+k}, v{S[2*k]}, v{S[2*k+1]}')
        A('v_add_f32 v36, v36, v37'); A('v_add_f32 v38, v38, v39'); A('v_add_f32 v14, v36, v38')
        for k in range(4): A(f'v_cndmask_b32 v{16+k}, 0, v{32+k}, s[14:15]')
        for k in range(4): A(f'v_cndmask_b32 v{28+k}, v{32+k}, 0, s[14:15]')
        for k in range(4): A(f'v_mov_b32_dpp v{24+k}, v{16+k} row_ror:8 row_mask:0xf bank_mask:0xf')
        for k in range(4): A(f'v_mov_b32_dpp v{20+k}, v{28+k} row_ror:8 row_mask:0xf bank_mask:0xf')
        self.ror_reduce('v_add_f32', [14], 8)
        self.xg_reduce('v_add_f32', [14], [9])
        if not isB:
            nopub = self.newlab('NP')
            A('s_mov_b64 exec, 0xff')
            A(f'ds_add_f32 v10, v14 offset:{L_LA}')
            A('s_mov_b64 exec, -1')
            self.lds_inc_rtn(C_L)
            A('s_cmp_lg_u32 s48, 15')
            A(f's_cbranch_scc1 {nopub}')
            A(f'ds_read_b32 v14, v10 offset:{L_LA}')
            A('s_waitcnt lgkmcnt(0)')
            self.ml_store(0)
            self.lab(nopub)
        else:
            self.ml_store(1)
        A('v_mov_b32 v56, 0xffffff00')
        for x in range(32, 48): A(f'v_mov_b32 v{x}, 0')
        self.vS(58)
        self.op_offsets(1 if isB else 0)
        if not isB:
            old = self.newlab('O'); nsb = self.newlab('NSB')
            A('v_lshrrev_b32 v57, 10, v11')
            A('s_lshr_b32 s52, s3, 2')
            A('s_cmp_eq_u32 s52, 0')
            A(f's_cbranch_scc1 {old}')
            A('s_cmp_lg_u32 s52, 3'); A(f's_cbranch_scc1 {nsb}')
            A('s_waitcnt vmcnt(0)')
            self.lds_inc(C_B)
            for o in range(1, 4):
                A(f'v_add_u32 v{58+o}, {4096*o}, v11'); A(f'v_and_b32 v{58+o}, 0x3fff, v{58+o}')
            self.lab(nsb)
            self.v_issue()
            self.lds_wait(F_CH, 's52', areg=57)
            for q in range(4): A(f'ds_read_b128 v[{32+4*q}:{35+4*q}], v11 offset:{L_CH + 1024*q}')
            self.lab(old)
            self.stamp(6)
        A('s_waitcnt lgkmcnt(0)')
        tq = [48, 52]
        for T in range(2):
            if not isB: A(f's_waitcnt vmcnt({8 if T == 0 else 0})')
            src = 64 + 32 * T
            self.perm_tile(src, 0, tq[0])
            for tt in range(8):
                if tt < 7: self.perm_tile(src, tt + 1, tq[(tt + 1) & 1])
                else: A('s_nop 1')
                q = tq[tt & 1]
                d = 32 + 4 * (tt & 3)
                p = (16 if tt < 4 else 24) + 4 * T
                A(f'v_mfma_f32_16x16x32_bf16 v[{d}:{d+3}], v[{q}:{q+3}], v[{p}:{p+3}], v[{d}:{d+3}]')
        if isB:
            A('s_setprio 3')
            A('s_nop 6')
            self.embed(range(32, 48))
            for q in range(4):
                A(f'buffer_store_dwordx4 v[{32+4*q}:{35+4*q}], v58, s[44:47], s{56+q} offen sc1')
            return
        self.stamp(7)
        dep = self.newlab('DEP'); done = self.newlab('DN')
        A('s_cmp_lt_u32 s3, 12')
        A(f's_cbranch_scc1 {dep}')
        self.lds_inc_rtn(C_O)
        A('s_cmp_lg_u32 s48, 3')
        A(f's_cbranch_scc1 {dep}')
        A('s_setprio 3')
        self.lds_wait(C_D, 15, sleep=0)
        for o in range(1, 4):
            for q in range(4):
                r = 64 + 16 * (o - 1) + 4 * q
                A(f'ds_read_b128 v[{r}:{r+3}], v{58+o} offset:{L_CH + 1024*q}')
        for o in range(1, 4):
            for q in range(4):
                A(f's_waitcnt lgkmcnt({11 - 4*(o-1) - q})')
                r = 64 + 16 * (o - 1) + 4 * q
                for e in range(4): A(f'v_add_f32 v{32+4*q+e}, v{32+4*q+e}, v{r+e}')
                if o == 3: self.embed(range(32+4*q, 36+4*q))
        for q in range(4):
            A(f'buffer_store_dwordx4 v[{32+4*q}:{35+4*q}], v58, s[44:47], s{56+q} offen sc1')
        self.stamp(8)
        A(f's_branch {done}')
        self.lab(dep)
        A('s_nop 5')
        for q in range(4): A(f'ds_write_b128 v11, v[{32+4*q}:{35+4*q}] offset:{L_CH + 1024*q}')
        A('s_mov_b64 exec, 1')
        A(f'ds_add_u32 v57, v6 offset:{F_CH}')
        A(f'ds_add_u32 v4, v6 offset:{C_D}')
        A('s_mov_b64 exec, -1')
        self.lab(done)

    def proj_result(self):
        A = self.A
        for tt in (0, 4, 1, 5, 2, 6, 3, 7):
            A(f'v_mfma_f32_16x16x32_bf16 v[{24+4*tt}:{27+4*tt}], v[16:19], v[{96+4*tt}:{99+4*tt}], 0')
        A('s_nop 1')
        for k in range(4):
            d0 = 24 + 4 * k; d4 = 24 + 4 * (k + 4)
            A(f'v_cndmask_b32 v{d0+2}, v{d4+1}, v{d0}, s[14:15]')
            A(f'v_cndmask_b32 v{d0+3}, v{d0+1}, v{d4}, s[14:15]')
        A('s_mov_b64 exec, 0xffff')
        for k in range(4):
            d0 = 24 + 4 * k
            A(f'v_add_f32_dpp v{20+k}, v{d0+3}, v{d0+2} row_ror:8 row_mask:0xf bank_mask:0xf')
    def out_addr(self):
        A = self.A
        A('v_bfe_u32 v59, v0, 2, 1'); A(f'v_mul_u32_u24 v59, {IB}, v59')
        A('v_and_b32 v5, 3, v0'); A('v_lshl_add_u32 v59, v5, 5, v59')
        A('v_and_b32 v5, 8, v0'); A('v_lshl_add_u32 v59, v5, 1, v59')
        A('s_lshl_b32 s53, s20, 5'); A('s_lshl_b32 s48, s7, 4'); A('s_add_u32 s53, s53, s48'); A('s_lshl_b32 s48, s3, 1'); A('s_add_u32 s53, s53, s48')
        A(f's_mul_i32 s53, s53, {IB}'); A('s_lshl_b32 s48, s4, 7'); A('s_add_u32 s53, s53, s48'); A(f's_add_u32 s53, s53, {WS_I2}')

    def build(self):
        A = self.A; o = self.o
        L = self.L
        L.append(HEADER.rstrip())
        L.append(f'; @launch grid=(256,1,1) block=(1024,1,1) lds={LDS_BYTES}')
        L.append('.amdgcn_target "amdgcn-amd-amdhsa--gfx950"')
        L.append('.text')
        L.append(f'.globl {NAME}_kernel')
        L.append('.p2align 8')
        L.append(f'.type {NAME}_kernel,@function')
        L.append(f'{NAME}_kernel:')
        A('s_cmp_ge_u32 s2, 256')
        A('s_cbranch_scc1 L_end')
        A('s_load_dwordx16 s[4:19], s[0:1], 0')
        A('s_load_dwordx8 s[20:27], s[0:1], 64')
        A('s_load_dwordx2 s[28:29], s[0:1], 96')
        if self.stamps:
            for i in range(70, 96): A(f's_mov_b32 s{i}, 0')
        self.stamp(0)
        A('v_lshrrev_b32 v5, 6, v0')
        A('v_mov_b32 v4, 0')
        A('v_readfirstlane_b32 s3, v5')
        A('v_and_b32 v0, 63, v0')
        A('v_mov_b32 v6, 1')
        A('v_lshlrev_b32 v1, 4, v0')
        A('v_and_b32 v57, 3, v5')
        A('v_lshl_add_u32 v11, v57, 12, v1')
        A('v_lshrrev_b32 v8, 4, v0')
        A('v_and_b32 v9, 15, v0')
        A('v_and_b32 v12, 3, v0')
        A('v_lshrrev_b32 v13, 2, v9')
        dt = 19 if o['inter'] == 8 else 13
        A('v_and_b32 v2, 1, v0'); A('v_lshlrev_b32 v2, 4, v2')
        A('v_lshl_add_u32 v2, v13, 8, v2')
        A('v_lshl_add_u32 v2, v8, 5, v2')
        A('v_and_b32 v7, 2, v0')
        A(f'v_lshl_add_u32 v2, v7, {dt-1}, v2')
        A('v_and_b32 v7, 7, v0')
        A('v_lshlrev_b32 v10, 2, v7')
        A(f'v_mul_u32_u24 v3, {QSTR}, v7')
        A('v_lshl_add_u32 v3, v8, 5, v3')
        A('v_and_b32 v7, 8, v0')
        A('v_lshl_add_u32 v3, v7, 1, v3')
        A('s_setprio 2')
        A('s_mov_b32 s30, 0x05040100')
        A('s_mov_b32 s31, 0x07060302')
        A('s_mov_b32 s100, 0xffff0000')
        A('s_mov_b32 s101, 0x3db504f3')
        A('v_lshlrev_b32 v14, 15, v7'); A('v_lshl_add_u32 v14, v8, 16, v14'); A('v_lshl_add_u32 v14, v10, 2, v14')
        A('v_and_b32 v15, 1, v0'); A('v_lshlrev_b32 v15, 6, v15'); A('v_lshl_add_u32 v15, v8, 4, v15')
        A('s_and_b32 s49, s2, 1'); A('s_lshl_b32 s49, s49, 9'); A('s_lshl_b32 s48, s3, 6'); A('s_add_u32 s49, s49, s48')
        A('s_bfe_u32 s52, s2, 0x60001')
        A('s_lshl_b32 s48, s49, 13'); A('s_lshl_b32 s50, s52, 7'); A('s_add_u32 s48, s48, s50')
        A('s_lshl_b32 s49, s49, 1'); A('v_add_u32 v15, s49, v15')
        A('s_waitcnt lgkmcnt(0)')
        A('s_cmp_lt_u32 s2, 128')
        A('s_cselect_b32 s40, s10, s20'); A('s_cselect_b32 s41, s11, s21'); A('s_mov_b32 s42, 0x800000'); A('s_mov_b32 s43, 0x20000')
        A('s_cselect_b32 s66, s4, s14');  A('s_cselect_b32 s67, s5, s15')
        A('s_cselect_b32 s10, s12, s22'); A('s_cselect_b32 s11, s13, s23')
        A('s_cmp_ge_u32 s3, 8')
        A('s_cbranch_scc1 L_nowq')
        for j in range(8):
            A(f'buffer_load_dwordx4 v[{64+4*j}:{67+4*j}], v14, s[40:43], s48 offen nt')
            if j < 7: A('s_add_u32 s48, s48, 8192')
        A('global_load_dwordx4 v[16:19], v15, s[66:67]')
        self.lab('L_nowq')
        A('s_mov_b32 s32, s6');  A('s_mov_b32 s33, s7');  A('s_mov_b32 s34, 0x4000000'); A('s_mov_b32 s35, 0x20000')
        A('s_mov_b32 s36, s8');  A('s_mov_b32 s37, s9');  A('s_mov_b32 s38, 0x4000000'); A('s_mov_b32 s39, 0x20000')
        A('s_mov_b32 s44, s28'); A('s_mov_b32 s45, s29'); A(f's_mov_b32 s46, {WS_BYTES}'); A('s_mov_b32 s47, 0x20000')
        A('s_lshr_b32 s20, s2, 7')
        A('s_and_b32 s4, s2, 7'); A('s_bfe_u32 s7, s2, 0x30004'); A('s_lshl_b32 s7, s7, 3'); A('s_add_u32 s4, s4, s7')
        A('s_bfe_u32 s7, s2, 0x10003')
        A('s_lshr_b32 s22, s2, 6')
        A('s_and_b32 s23, s2, 63')
        A('s_mov_b32 s14, 0x00ff00ff'); A('s_mov_b32 s15, 0x00ff00ff')
        A('s_lshl_b32 s48, s23, 7')
        A(f's_mul_i32 s6, s22, {32*IB}'); A('s_add_u32 s6, s6, s48'); A(f's_add_u32 s6, s6, {WS_I1}')
        A(f's_mul_i32 s5, s22, {4*IB}'); A('s_add_u32 s5, s5, s48'); A(f's_add_u32 s5, s5, {WS_ML}')
        self.kv_offsets()
        A('s_cmp_ge_u32 s3, 8')
        A('s_cbranch_scc1 L_young0')
        A('s_load_dword s54, s[28:29], 0')
        A('s_lshr_b32 s56, s2, 5'); A(f's_mul_i32 s56, s56, {4*IB}'); A('s_and_b32 s48, s2, 1'); A('s_lshl_b32 s48, s48, 12'); A('s_add_u32 s56, s56, s48')
        A('s_and_b32 s48, s52, 15'); A('s_lshl_b32 s48, s48, 8'); A('s_add_u32 s56, s56, s48'); A(f's_add_u32 s56, s56, {WS_Q}')
        A(f'v_mul_u32_u24 v60, {IB}, v8'); A('v_lshl_add_u32 v60, v9, 4, v60')
        A('v_lshlrev_b32 v7, 3, v10'); A('v_and_b32 v5, 8, v0'); A('v_lshl_add_u32 v7, v5, 1, v7')
        A('s_lshl_b32 s48, s3, 8'); A('v_add_u32 v7, s48, v7')
        A('v_mov_b32 v56, 0xffffff00')
        A('s_barrier')
        A('s_waitcnt vmcnt(0)')
        for tt in range(8): self.perm_tile(64, tt, 96 + 4 * tt)
        A('s_nop 1')
        self.proj_result()
        A(f'ds_write_b128 v7, v[20:23] offset:{L_QS}')
        A('s_mov_b64 exec, -1')
        self.lds_inc_rtn(C_Q)
        self.stamp(1)
        self.tag()
        A('s_cmp_lg_u32 s48, 7')
        A('s_cbranch_scc1 L_task')
        A('s_setprio 3')
        for k in range(2): A(f'ds_read_b128 v[{32+4*k}:{35+4*k}], v1 offset:{L_QS + 1024*k}')
        A('s_waitcnt lgkmcnt(0)')
        for e in range(4): A(f'v_add_f32 v{32+e}, v{32+e}, v{36+e}')
        self.xg_reduce('v_add_f32', [32, 33, 34, 35], [36, 37, 38, 39])
        self.embed(range(32, 36))
        A('buffer_store_dwordx4 v[32:35], v60, s[44:47], s56 offen sc1')
        A('s_setprio 2')
        A('s_branch L_task')
        self.lab('L_young0')
        A('v_mov_b32 v5, 0xff800000')
        A('v_cmp_gt_u32 vcc, 16, v0')
        A('v_lshlrev_b32 v7, 2, v0')
        A('s_nop 0')
        A('v_cndmask_b32 v5, v4, v5, vcc')
        A(f'ds_write_b32 v7, v5 offset:{L_MISC}')
        A('s_waitcnt lgkmcnt(0)')
        A('s_barrier')
        A('s_load_dword s54, s[28:29], 0')
        self.lab('L_task')
        self.task(False)
        A('s_cmp_ge_u32 s3, 8')
        A('s_cbranch_scc1 L_tail_young')
        A('s_cmp_lg_u32 s3, 2')
        A('s_cbranch_scc1 L_wo')
        self.o['inB'] = 1
        self.task(True)
        self.o['inB'] = 0
        self.stamp(9)
        self.lab('L_wo')
        self.o['intail'] = 1
        A('s_mov_b32 s40, s10'); A('s_mov_b32 s41, s11')
        A('s_lshr_b32 s50, s4, 4'); A('s_lshl_b32 s50, s50, 10')
        A('s_and_b32 s51, s4, 3'); A('s_lshl_b32 s51, s51, 5'); A('s_add_u32 s50, s50, s51')
        A('s_bfe_u32 s51, s4, 0x20002'); A('s_add_u32 s50, s50, s51')
        A('s_lshl_b32 s50, s50, 11'); A('s_lshl_b32 s51, s7, 10'); A('s_add_u32 s50, s50, s51'); A('s_lshl_b32 s51, s3, 7'); A('s_add_u32 s50, s50, s51')
        A('v_lshrrev_b32 v8, 4, v0')
        A('v_lshlrev_b32 v58, 19, v8'); A('v_lshl_add_u32 v58, v10, 2, v58'); A('v_and_b32 v5, 8, v0'); A('v_lshl_add_u32 v58, v5, 10, v58')
        A('v_and_b32 v60, 1, v0'); A('v_lshlrev_b32 v60, 6, v60'); A('v_lshl_add_u32 v60, v8, 4, v60')
        self.out_addr()
        A('s_setprio 0')
        for j in range(8):
            A(f'buffer_load_dwordx4 v[{64+4*j}:{67+4*j}], v58, s[40:43], s50 offen nt')
            if j < 7: A(f's_add_u32 s50, s50, {16384 if j != 3 else (128 - 24) * 2048}')
        self.stamp(11)
        A('s_waitcnt vmcnt(0)')
        A('s_setprio 2')
        for tt in range(8): self.perm_tile(64, tt, 96 + 4 * tt)
        self.stamp(12)
        if o.get('notail'): A('s_branch L_fin')
        self.lds_wait(F_O, 2, sleep=0)
        A(f'ds_read_b128 v[16:19], v60 offset:{L_O}')
        A('s_waitcnt lgkmcnt(0)')
        self.proj_result()
        self.embed(range(20, 24))
        A('buffer_store_dwordx4 v[20:23], v59, s[44:47], s53 offen sc1')
        A('s_mov_b64 exec, -1')
        self.stamp(13)
        A('s_branch L_fin')
        self.lab('L_tail_young')
        if o.get('notail'):
            A('s_lshl_b32 s48, s2, 4'); A('s_add_u32 s48, s48, s3'); A('s_cmp_lg_u32 s48, 15'); A('s_cbranch_scc1 L_fin')
            A('v_mov_b32 v13, s55'); A('s_mov_b64 exec, 1'); A('global_store_dword v4, v13, s[28:29]'); A('s_mov_b64 exec, -1')
            A('s_branch L_fin')
        A('s_cmp_eq_u32 s3, 10')
        A('s_cbranch_scc1 L_red')
        A('s_cmp_ge_u32 s3, 10')
        A('s_cbranch_scc1 L_fin')
        A('s_lshr_b32 s40, s4, 4'); A('s_lshl_b32 s41, s20, 2'); A('s_add_u32 s40, s40, s41')
        A('s_lshl_b32 s41, s40, 2'); A('s_and_b32 s42, s2, 3'); A('s_add_u32 s41, s41, s42'); A(f's_mul_i32 s41, s41, {IB}'); A(f's_add_u32 s41, s41, {WS_ML}')
        A('s_lshl_b32 s40, s40, 5'); A('s_and_b32 s42, s4, 15'); A('s_lshl_b32 s42, s42, 1'); A('s_add_u32 s40, s40, s42')
        A('s_and_b32 s42, s3, 1'); A('s_add_u32 s40, s40, s42'); A(f's_mul_i32 s40, s40, {IB}'); A(f's_add_u32 s40, s40, {WS_I1}')
        A('s_lshl_b32 s42, s42, 6'); A('v_lshlrev_b32 v12, 3, v0'); A('v_add_u32 v12, s42, v12')
        A('s_cmp_eq_u32 s3, 9'); A('s_cbranch_scc1 L_w9')
        self.gather(96, 's41', 8, True)
        self.stamp(9)
        M = [96 + 4 * k for k in range(8)]
        A(f'v_max3_f32 v32, v{M[0]}, v{M[1]}, v{M[2]}'); A(f'v_max3_f32 v32, v32, v{M[3]}, v{M[4]}'); A(f'v_max3_f32 v32, v32, v{M[5]}, v{M[6]}'); A(f'v_max_f32 v32, v32, v{M[7]}')
        self.ror_reduce('v_max_f32', [32], 8)
        self.xg_reduce('v_max_f32', [32], [33])
        for k in range(8): A(f'v_sub_f32 v{M[k]}, v{M[k]}, v32')
        for k in range(8): A(f'v_mul_f32 v{M[k]}, 0x3fb8aa3b, v{M[k]}')
        for k in range(8): A(f'v_exp_f32 v{M[k]}, v{M[k]}')
        A('s_nop 0')
        A(f'v_mul_f32 v32, v{M[0]}, v{M[0]+2}')
        for k in range(1, 8): A(f'v_fmac_f32 v32, v{M[k]}, v{M[k]+2}')
        self.ror_reduce('v_add_f32', [32], 8)
        self.xg_reduce('v_add_f32', [32], [33])
        A('v_rcp_f32 v33, v32')
        A('s_nop 0')
        A('v_fma_f32 v34, -v32, v33, 1.0')
        A('v_fma_f32 v33, v34, v33, v33')
        for k in range(8): A(f'v_mul_f32 v{16+k}, v{M[k]}, v33')
        A(f'ds_write_b128 v1, v[16:19] offset:{L_QS}'); A(f'ds_write_b128 v1, v[20:23] offset:{L_QS+1024}')
        A(f'ds_write_b32 v4, v6 offset:{F_W}')
        A('s_branch L_w8')
        self.lab('L_w9')
        self.lds_wait(F_W, 1)
        A(f'ds_read_b128 v[16:19], v1 offset:{L_QS}'); A(f'ds_read_b128 v[20:23], v1 offset:{L_QS+1024}')
        A('s_waitcnt lgkmcnt(0)')
        self.lab('L_w8')
        M = [16 + k for k in range(8)]
        nw = self.newlab('NW')
        A('s_cmp_lg_u32 s20, 0'); A(f's_cbranch_scc1 {nw}')
        self.lds_wait(C_O, 4)
        self.lab(nw)
        self.stamp(11)
        self.gather(64, 's40', 8, False)
        self.stamp(12)
        for e in range(4): A(f'v_mul_f32 v{32+e}, v{M[0]}, v{64+e}')
        for k in range(1, 8):
            for e in range(4): A(f'v_fmac_f32 v{32+e}, v{M[k]}, v{64+4*k+e}')
        self.ror_reduce('v_add_f32', [32, 33, 34, 35], 8)
        self.xg_reduce('v_add_f32', [32, 33, 34, 35], [36, 37, 38, 39])
        A('v_cvt_pk_bf16_f32 v32, v32, v33'); A('v_cvt_pk_bf16_f32 v33, v34, v35')
        A('s_mov_b64 exec, 0xff')
        A(f'ds_write_b64 v12, v[32:33] offset:{L_O}')
        A('s_mov_b64 exec, 1')
        A(f'ds_add_u32 v4, v6 offset:{F_O}')
        A('s_mov_b64 exec, -1')
        self.stamp(13)
        A('s_branch L_fin')
        self.lab('L_red')
        A('s_bfe_u32 s40, s2, 0x20003'); A('s_cmp_lg_u32 s40, 0')
        A('s_cbranch_scc1 L_fin')
        A('s_lshr_b32 s40, s2, 5'); A('s_lshl_b32 s40, s40, 3'); A('s_and_b32 s41, s2, 7'); A('s_add_u32 s40, s40, s41')
        A('s_lshl_b32 s42, s40, 6'); A('v_lshlrev_b32 v12, 3, v0'); A('v_add_u32 v12, s42, v12')
        A(f's_mul_i32 s40, s40, {IB}'); A(f's_add_u32 s40, s40, {WS_I2}')
        A('v_mov_b32 v13, s55')
        self.lds_wait(F_O, 2)
        self.stamp(11)
        self.gather(64, 's40', 8, False)
        self.stamp(12)
        for k in range(4):
            for e in range(4): A(f'v_add_f32 v{64+4*k+e}, v{64+4*k+e}, v{80+4*k+e}')
        for k in range(2):
            for e in range(4): A(f'v_add_f32 v{64+4*k+e}, v{64+4*k+e}, v{72+4*k+e}')
        for e in range(4): A(f'v_add_f32 v{64+e}, v{64+e}, v{68+e}')
        self.ror_reduce('v_add_f32', [64, 65, 66, 67], 8)
        self.xg_reduce('v_add_f32', [64, 65, 66, 67], [36, 37, 38, 39])
        A('v_cvt_pk_bf16_f32 v32, v64, v65'); A('v_cvt_pk_bf16_f32 v33, v66, v67')
        A('s_mov_b64 exec, 0xff')
        A('global_store_dwordx2 v12, v[32:33], s[24:25]')
        A('s_cmp_lg_u32 s2, 0')
        A('s_cbranch_scc1 L_nogen')
        A('s_mov_b64 exec, 1')
        A('global_store_dword v4, v13, s[28:29]')
        self.lab('L_nogen')
        A('s_mov_b64 exec, -1')
        self.stamp(13)
        if o.get('dbgt'):
            A('s_load_dwordx2 s[60:61], s[0:1], 88')
            A('s_waitcnt lgkmcnt(0)')
            A('s_sub_u32 s48, s94, s68'); A('v_mov_b32 v20, s48')
            A('s_lshr_b32 s48, s2, 5'); A('s_lshl_b32 s48, s48, 1'); A('s_and_b32 s49, s2, 7'); A('s_cmp_ge_u32 s49, 2'); A('s_cbranch_scc1 L_end')
            A('s_add_u32 s48, s48, s49'); A('s_lshl_b32 s48, s48, 2'); A('v_mov_b32 v7, s48')
            A('s_mov_b64 exec, 1')
            A('global_store_dword v7, v20, s[60:61]')
            A('s_branch L_end')
        if not o.get('lite'): self.lab('L_fin')
        if self.stamps:
            A('s_waitcnt vmcnt(0) lgkmcnt(0)')
            A('s_getreg_b32 s48, hwreg(HW_REG_XCC_ID)')
            A('s_getreg_b32 s49, hwreg(HW_REG_HW_ID)')
            for i in range(28): A(f'v_writelane_b32 v20, s{68+i}, {i}')
            A('v_writelane_b32 v20, s48, 28')
            A('v_writelane_b32 v20, s49, 29')
            A('s_lshl_b32 s48, s2, 4'); A('s_add_u32 s48, s48, s3'); A('s_lshl_b32 s48, s48, 7'); A(f's_add_u32 s48, s48, {STAMP_OFF}')
            A('v_lshlrev_b32 v7, 2, v0'); A('v_add_u32 v7, s48, v7')
            A('s_mov_b64 exec, 0xffffffff')
            A('global_store_dword v7, v20, s[28:29]')
        if o.get('lite'): self.lab('L_fin')
        self.lab('L_end')
        A('s_endpgm')
        L.append('.section .rodata,"a"')
        L.append('.p2align 6')
        L.append(f'.amdhsa_kernel {NAME}_kernel')
        L.append('  .amdhsa_next_free_vgpr 128')
        L.append('  .amdhsa_next_free_sgpr 102')
        L.append('  .amdhsa_accum_offset 128')
        L.append('  .amdhsa_group_segment_fixed_size 0')
        L.append('  .amdhsa_kernarg_size 104')
        L.append('  .amdhsa_user_sgpr_count 2')
        L.append('  .amdhsa_user_sgpr_kernarg_segment_ptr 1')
        L.append('  .amdhsa_system_sgpr_workgroup_id_x 1')
        L.append('.end_amdhsa_kernel')
        return '\n'.join(L) + '\n'

    def kv_offsets(self):
        A = self.A; o = self.o
        A('s_lshl_b32 s96, s22, 24')
        if o['inter'] == 8:
            A('s_lshl_b32 s48, s3, 20'); A('s_add_u32 s96, s96, s48')
            A('s_lshl_b32 s48, s23, 13'); A('s_add_u32 s96, s96, s48')
            A('s_add_u32 s97, s96, 4096'); A('s_add_u32 s98, s96, 0x80000'); A('s_add_u32 s99, s98, 4096')
        elif o['inter'] == 16:
            A('s_lshl_b32 s48, s3, 20'); A('s_add_u32 s96, s96, s48')
            A('s_lshl_b32 s48, s23, 14'); A('s_add_u32 s96, s96, s48')
            A('s_add_u32 s97, s96, 4096'); A('s_add_u32 s98, s96, 8192'); A('s_add_u32 s99, s96, 12288')
        else:
            A('s_lshl_b32 s48, s3, 14'); A('s_add_u32 s96, s96, s48')
            A('s_lshl_b32 s48, s23, 18'); A('s_add_u32 s96, s96, s48')
            A('s_add_u32 s97, s96, 4096'); A('s_add_u32 s98, s96, 8192'); A('s_add_u32 s99, s96, 12288')

if __name__ == '__main__':
    out = sys.argv[1]
    stamps = 'stamps' in sys.argv[2:]
    opts = {}
    for a in sys.argv[2:]:
        if '=' in a:
            k, v = a.split('='); opts[k] = int(v)
    open(out, 'w').write(Gen(stamps, opts).build())
```

```python
import sys
NAME = 'concat_heads__gqa_block_cached__sliding_block_cached__decode'

HEADER = open('cdna_kernels/' + NAME + '.s.ref').read().split('; Override launch')[0]

IB = 8448
WS_T = 0x1000
WS_Q = 0x4000
WS_ML = 0x50000
WS_I1 = 0xA0000
WS_I2 = 0x2C0000
WS_BYTES = 0x400000
STAMP_OFF = 0x10000000
L_CH, L_QS, L_QA, L_QB, L_MISC = 0, 16384, 20480, 22784, 25088
QSTR = 272
L_MA, L_LA = L_MISC, L_MISC + 64
L_C = L_MISC + 128
C_Q, C_M, C_O, C_L, F_QA, F_QB, F_O, C_B, C_D, C_W, F_X2, F_X3, F_CH = [L_C + 4 * i for i in range(13)]
F_EX = L_C + 64
L_O = L_MISC + 256
L_M4 = L_MISC + 384
L_B = 26112
L_KD = L_B + 32768
LDS_BYTES = L_KD + 4 * 3 * 4096

class Gen:
    def __init__(self, stamps=False, opts=None):
        self.L = []
        self.stamps = stamps
        self.nlab = 0
        self.o = dict(qw=4, oldv=4, ns=12, woe=0)
        if opts: self.o.update(opts)
    def A(self, s):
        dr = self.o.get('drop', 0)
        if s.startswith('buffer_store'):
            if 'v58' in s and self.o.get('inB') and dr & 1: return
            if 'v58' in s and not self.o.get('inB') and dr & 2: return
            if 'v[12:15]' in s and dr & 4: return
            if 'v60' in s and dr & 8: return
        if s: self.L.append('    ' + s)
    def lab(self, s): self.L.append(s + ':')
    def newlab(self, p='L'):
        self.nlab += 1
        return f'{p}_{self.nlab}'
    def stamp(self, i):
        if self.o.get('lite') and i not in (0, 13): return
        if self.stamps: self.A(f's_memrealtime s[{68+2*i}:{69+2*i}]')

    def lds_wait(self, addr, val, sleep=1, areg=4):
        A = self.A
        l = self.newlab('W'); d = self.newlab('D')
        A('s_mov_b32 s49, 0x40000')
        self.lab(l)
        A(f'ds_read_b32 v5, v{areg} offset:{addr}')
        A('s_waitcnt lgkmcnt(0)')
        A('v_readfirstlane_b32 s48, v5')
        A(f's_cmp_ge_u32 s48, {val}')
        A(f's_cbranch_scc1 {d}')
        if sleep: A(f's_sleep {sleep}')
        A('s_sub_u32 s49, s49, 1')
        A(f's_cbranch_scc0 {l}')
        self.lab(d)
    def lds_inc(self, addr, areg=4):
        A = self.A
        A('s_mov_b64 exec, 1')
        A(f'ds_add_u32 v{areg}, v6 offset:{addr}')
        A('s_mov_b64 exec, -1')
    def lds_inc_rtn(self, addr):
        A = self.A
        A('s_mov_b64 exec, 1')
        A(f'ds_add_rtn_u32 v5, v4, v6 offset:{addr}')
        A('s_mov_b64 exec, -1')
        A('s_waitcnt lgkmcnt(0)')
        A('v_readfirstlane_b32 s48, v5')
    def tag(self):
        A = self.A
        A('s_and_b32 s55, s54, 0x7f7f7f7f'); A('s_add_u32 s55, s55, 0x35172b4d'); A('s_and_b32 s8, s54, 0x80808080'); A('s_xor_b32 s55, s55, s8')
        A('s_and_b32 s8, s55, 0xff'); A('s_bfe_u32 s9, s55, 0x80008'); A('s_bfe_u32 s12, s55, 0x80010'); A('s_lshr_b32 s13, s55, 24')
    TB = ['s8', 's9', 's12', 's13']
    def embed(self, regs):
        for r in regs: self.A(f'v_and_or_b32 v{r}, v{r}, v56, {self.TB[r & 3]}')

    def perm_tile(self, src, tt, dst):
        i, h = tt >> 1, tt & 1
        sel = 's31' if h else 's30'
        for jp in range(4):
            self.A(f'v_perm_b32 v{dst+jp}, v{src+4*(2*jp+1)+i}, v{src+4*(2*jp)+i}, {sel}')

    def xg_reduce(self, op, regs, tmps):
        A = self.A
        for sw in ('v_permlane16_swap_b32', 'v_permlane32_swap_b32'):
            for r, t in zip(regs, tmps): A(f'v_mov_b32 v{t}, v{r}')
            A('s_nop 1')
            for r, t in zip(regs, tmps): A(f'{sw} v{r}, v{t}')
            A('s_nop 1')
            for r, t in zip(regs, tmps): A(f'{op} v{r}, v{r}, v{t}')
    def ror_reduce(self, op, regs, n):
        A = self.A
        A('s_nop 1')
        for r in regs: A(f'{op}_dpp v{r}, v{r}, v{r} row_ror:{n} row_mask:0xf bank_mask:0xf')

    def gather(self, dst, sbase, N, tagged):
        A = self.A
        l = self.newlab('G'); d = self.newlab('GD')
        A('s_setprio 3')
        A(f's_add_u32 s51, {sbase}, 4096')
        A('s_mov_b32 s49, 0x8000')
        self.lab(l)
        for k in range(N):
            r = dst + 4 * k
            A(f'buffer_load_dwordx4 v[{r}:{r+3}], v1, s[44:47], {sbase if k < 4 else "s51"} offen offset:{1024*(k&3)} sc1')
        for k in range(N):
            r = dst + 4 * k
            A(f's_waitcnt vmcnt({N-1-k})')
            if tagged:
                if k == 0:
                    A(f'v_min_u32 v5, v{r+1}, v{r+3}'); A(f'v_max_u32 v7, v{r+1}, v{r+3}')
                else:
                    A(f'v_min3_u32 v5, v5, v{r+1}, v{r+3}'); A(f'v_max3_u32 v7, v7, v{r+1}, v{r+3}')
            else:
                if k == 0:
                    A(f'v_xor_b32 v5, s8, v{r}'); A(f'v_xor_b32 v7, s9, v{r+1}')
                else:
                    A(f'v_bitop3_b32 v5, s8, v5, v{r} bitop3:0xde'); A(f'v_bitop3_b32 v7, s9, v7, v{r+1} bitop3:0xde')
                A(f'v_bitop3_b32 v5, s12, v5, v{r+2} bitop3:0xde'); A(f'v_bitop3_b32 v7, s13, v7, v{r+3} bitop3:0xde')
        if tagged:
            A('v_cmp_ne_u32 vcc, s55, v5')
            A('v_cmp_ne_u32 s[66:67], s55, v7')
            A('s_or_b64 s[66:67], s[66:67], vcc')
            A(f's_cbranch_scc0 {d}')
        else:
            A('v_or_b32 v5, v5, v7')
            A('v_and_b32 v5, 0xff, v5')
            A('v_cmp_ne_u32 vcc, 0, v5')
            A(f's_cbranch_vccz {d}')
        A('s_sub_u32 s49, s49, 1')
        A(f's_cbranch_scc0 {l}')
        self.lab(d)

    MK = [50, 52, 56, 58, 60, 62, 64, 66]
    def mgather(self, sets):
        A = self.A
        l = self.newlab('MG'); d = self.newlab('MGD')
        A('s_setprio 3')
        for k in range(8):
            for dst, lo, hi, tg in sets:
                A(f'buffer_load_dwordx4 v[{dst+4*k}:{dst+4*k+3}], v1, s[44:47], {lo if k < 4 else hi} offen offset:{1024*(k&3)} sc1')
        def check(k):
            first = True
            for dst, lo, hi, tg in sets:
                r = dst + 4 * k
                if tg:
                    A(f'v_xor_b32 v7, s55, v{r+1}'); A(f'v_bitop3_b32 v7, s55, v7, v{r+3} bitop3:0xde')
                else:
                    A(f'v_xor_b32 v5, s8, v{r}'); A(f'v_bitop3_b32 v5, s9, v5, v{r+1} bitop3:0xde')
                    A(f'v_bitop3_b32 v5, s12, v5, v{r+2} bitop3:0xde'); A(f'v_bitop3_b32 v5, s13, v5, v{r+3} bitop3:0xde')
            if len(sets) == 2: A('v_and_or_b32 v5, v5, v15, v7')
            else: A('v_and_b32 v5, v5, v15')
            m = self.MK[k]
            A(f'v_cmp_ne_u32 s[{m}:{m+1}], 0, v5')
        n = len(sets)
        for k in range(8):
            A(f's_waitcnt vmcnt({(7-k)*n})')
            check(k)
        A('s_mov_b32 s49, 0x10000')
        self.lab(l)
        A('s_or_b64 vcc, s[50:51], s[52:53]')
        for k in range(2, 8): A(f's_or_b64 vcc, vcc, s[{self.MK[k]}:{self.MK[k]+1}]')
        A(f's_cbranch_scc0 {d}')
        for k in range(8):
            sk = self.newlab('MS'); m = self.MK[k]
            A(f's_mov_b64 exec, s[{m}:{m+1}]')
            A(f's_cbranch_execz {sk}')
            for dst, lo, hi, tg in sets:
                A(f'buffer_load_dwordx4 v[{dst+4*k}:{dst+4*k+3}], v1, s[44:47], {lo if k < 4 else hi} offen offset:{1024*(k&3)} sc1')
            self.lab(sk)
        A('s_mov_b64 exec, -1')
        A('s_waitcnt vmcnt(0)')
        for k in range(8):
            sk = self.newlab('MC'); m = self.MK[k]
            A(f's_cmp_eq_u64 s[{m}:{m+1}], 0')
            A(f's_cbranch_scc1 {sk}')
            check(k)
            self.lab(sk)
        A('s_sub_u32 s49, s49, 1')
        A(f's_cbranch_scc0 {l}')
        self.lab(d)

    def q_gather(self, br):
        A = self.A
        if self.o.get('drop', 0) & 8 or (br and self.o.get('drop', 0) & 16):
            A(f'ds_write_b32 v4, v6 offset:{F_QB if br else F_QA}')
            return
        A('v_lshrrev_b32 v8, 5, v0'); A('v_and_b32 v5, 31, v0')
        A(f'v_mul_u32_u24 v8, {QSTR}, v8'); A('v_lshl_add_u32 v8, v5, 3, v8')
        A('s_lshl_b32 s52, s22, 2'); A('s_and_b32 s51, s2, 3'); A('s_add_u32 s52, s52, s51')
        A(f's_mul_i32 s52, s52, {IB}'); A(f's_add_u32 s52, s52, {WS_Q + br * 16 * IB}')
        self.gather(32, 's52', 8, False)
        for k in range(4):
            r = 32 + 4 * k
            for e in range(4): A(f'v_add_f32 v{r+e}, v{r+e}, v{r+16+e}')
            A(f'v_cvt_pk_bf16_f32 v{r}, v{r}, v{r+1}'); A(f'v_cvt_pk_bf16_f32 v{r+1}, v{r+2}, v{r+3}')
            A(f'ds_write_b64 v8, v[{r}:{r+1}] offset:{(L_QB if br else L_QA) + 2*QSTR*k}')
        A(f'ds_write_b32 v4, v6 offset:{F_QB if br else F_QA}')
        A('s_setprio 2')

    def k_quarter(self, i, soff):
        for nn in range(2):
            for hf in range(2):
                r = 64 + 16 * i + 8 * nn + 4 * hf
                self.A(f'buffer_load_dwordx4 v[{r}:{r+3}], v2, s[32:35], {soff} offen offset:{1024*nn+128*hf} nt')
                self.A('s_nop 0')
    def v_issue(self):
        for T in range(2):
            for j in range(8):
                r = 64 + 32 * T + 4 * j
                self.A(f'buffer_load_dwordx4 v[{r}:{r+3}], v1, s[36:39], s{96+(j>>1)} offen offset:{2048*T+1024*(j&1)} nt')
                self.A('s_nop 0')
    def v_from_lds(self, areg, base, quarters):
        for i in quarters:
            for T in range(2):
                for nn in range(2):
                    r = 64 + 32 * T + 4 * (2 * (i & 3) + nn)
                    self.A(f'ds_read_b128 v[{r}:{r+3}], v{areg} offset:{base + 4096*i + 2048*T + 1024*nn}')
    def vS(self, reg):
        A = self.A
        A(f'v_lshrrev_b32 v{reg}, 3, v0'); A(f'v_mul_u32_u24 v{reg}, {IB}, v{reg}'); A(f'v_lshl_add_u32 v{reg}, v10, 2, v{reg}')
    def ml_store(self, br):
        A = self.A
        A('s_setprio 3')
        A('v_mov_b32 v13, s55'); A('v_mov_b32 v15, s55')
        self.vS(7)
        if br: A(f's_add_u32 s5, s5, {16*IB}')
        A('s_mov_b64 exec, 0xffffffff')
        A(f'buffer_store_dwordx4 v[12:15], v7, s[44:47], s5 offen sc1')
        A('s_mov_b64 exec, -1')
        A('s_setprio 2')
    def op_offsets(self, br):
        for q in range(4): self.A(f's_add_u32 s{56+q}, s6, {br * 128 * IB + 8 * q * IB}')
    def read_q(self, LQ):
        for hf in range(2):
            self.A(f'ds_read_b128 v[{16+4*hf}:{19+4*hf}], v3 offset:{LQ + 128*hf}')
        self.A('s_waitcnt lgkmcnt(0)')
    def qk(self, blocks, D0, R):
        A = self.A
        N = len(blocks)
        for hf in range(2):
            for i, n in enumerate(blocks):
                r = 64 + 8 * n + 4 * hf; d = D0 + 4 * i
                c = '0' if hf == 0 else f'v[{d}:{d+3}]'
                A(f'v_mfma_f32_16x16x32_bf16 v[{d}:{d+3}], v[{r}:{r+3}], v[{16+4*hf}:{19+4*hf}], {c}')
        A(f's_nop {max(0, 8 - N)}')
        for i in range(N):
            d = D0 + 4 * i
            A(f'v_cndmask_b32 v{d}, v{d+3}, v{d}, s[14:15]')
            A(f'v_cndmask_b32 v{d+1}, v{d+1}, v{d+2}, s[14:15]')
        if N < 3: A('s_nop 1')
        for i in range(N):
            d = D0 + 4 * i
            A(f'v_add_f32_dpp v{R[i]}, v{d+1}, v{d} row_ror:8 row_mask:0xf bank_mask:0xf')
    def rowmax(self, S):
        A = self.A
        A(f'v_max3_f32 v8, v{S[0]}, v{S[1]}, v{S[2]}')
        for k in range(3, len(S) - 1, 2): A(f'v_max3_f32 v8, v8, v{S[k]}, v{S[k+1]}')
        A(f'v_max_f32 v8, v8, v{S[-1]}')
        self.ror_reduce('v_max_f32', [8], 8)
        self.xg_reduce('v_max_f32', [8], [9])
    def post_max(self):
        A = self.A
        A('s_mov_b64 exec, 0xff')
        A(f'ds_max_f32 v10, v8 offset:{L_MA}')
        A('s_mov_b64 exec, 1')
        A(f'ds_add_u32 v4, v6 offset:{C_M}')
        A('s_mov_b64 exec, -1')
    def round_chain(self, S, T):
        A = self.A
        n = len(S) // 2
        for rep in range(2):
            for k in range(n): A(f'v_cvt_pk_bf16_f32 v{T+k}, v{S[2*k]}, v{S[2*k+1]}')
            for k in range(n):
                A(f'v_lshlrev_b32 v{S[2*k]}, 16, v{T+k}')
                A(f'v_and_b32 v{S[2*k+1]}, s100, v{T+k}')
            if rep == 0:
                for x in S: A(f'v_mul_f32 v{x}, s101, v{x}')
    def softmax(self, S, PK, shared):
        A = self.A
        if shared:
            self.lds_wait(C_M, self.o['ns'])
            self.stamp(5)
            A(f'ds_read_b32 v8, v10 offset:{L_MA}')
            A('s_waitcnt lgkmcnt(0)')
        A('v_cvt_pk_bf16_f32 v8, v8, v8')
        A('v_and_b32 v8, s100, v8')
        A('v_mul_f32 v8, s101, v8')
        A('v_cvt_pk_bf16_f32 v8, v8, v8')
        A('v_and_b32 v12, s100, v8')
        for x in S: A(f'v_sub_f32 v{x}, v{x}, v12')
        for x in S: A(f'v_mul_f32 v{x}, 0x3fb8aa3b, v{x}')
        for x in S: A(f'v_exp_f32 v{x}, v{x}')
        A('s_nop 0')
        n = len(S) // 2
        for k in range(n): A(f'v_cvt_pk_bf16_f32 v{PK+k}, v{S[2*k]}, v{S[2*k+1]}')
        A(f'v_add_f32 v14, v{S[0]}, v{S[1]}'); A(f'v_add_f32 v9, v{S[2]}, v{S[3]}')
        for k in range(4, len(S), 2):
            A(f'v_add_f32 v14, v14, v{S[k]}'); A(f'v_add_f32 v9, v9, v{S[k+1]}')
        A('v_add_f32 v14, v14, v9')
        self.ror_reduce('v_add_f32', [14], 8)
        self.xg_reduce('v_add_f32', [14], [9])
        if shared:
            A('s_mov_b64 exec, 0xff')
            A(f'ds_add_f32 v10, v14 offset:{L_LA}')
            A('s_mov_b64 exec, 1')
            A(f'ds_add_u32 v4, v6 offset:{C_L}')
            A('s_mov_b64 exec, -1')
        else:
            self.ml_store(1)
    def expand_p(self, PK):
        A = self.A
        for k in range(4): A(f'v_cndmask_b32 v{16+k}, 0, v{PK+k}, s[14:15]')
        for k in range(4): A(f'v_cndmask_b32 v{28+k}, v{PK+k}, 0, s[14:15]')
        for k in range(4): A(f'v_mov_b32_dpp v{24+k}, v{16+k} row_ror:8 row_mask:0xf bank_mask:0xf')
        for k in range(4): A(f'v_mov_b32_dpp v{20+k}, v{28+k} row_ror:8 row_mask:0xf bank_mask:0xf')
    def pv(self, vm):
        A = self.A
        tq = [48, 52]
        for T in range(2):
            if vm: A(f's_waitcnt vmcnt({8 if T == 0 else 0})')
            src = 64 + 32 * T
            self.perm_tile(src, 0, tq[0])
            for tt in range(8):
                if tt < 7: self.perm_tile(src, tt + 1, tq[(tt + 1) & 1])
                else: A('s_nop 1')
                q = tq[tt & 1]
                d = 32 + 4 * (tt & 3)
                p = (16 if tt < 4 else 24) + 4 * T
                A(f'v_mfma_f32_16x16x32_bf16 v[{d}:{d+3}], v[{q}:{q+3}], v[{p}:{p+3}], v[{d}:{d+3}]')
    def task_static(self):
        A = self.A
        for i in range(4): self.k_quarter(i, f's{96+i}')
        nb = self.newlab('NB')
        A('s_cmp_lt_u32 s3, 8'); A(f's_cbranch_scc1 {nb}')
        A('s_mov_b32 s56, s16'); A('s_mov_b32 s57, s17'); A('s_mov_b32 s58, 0x4000000'); A('s_mov_b32 s59, 0x20000')
        A('s_mov_b32 s60, s18'); A('s_mov_b32 s61, s19'); A('s_mov_b32 s62, 0x4000000'); A('s_mov_b32 s63, 0x20000')
        A('s_lshl_b32 s50, s22, 24'); A('s_lshl_b32 s48, s23, 14'); A('s_add_u32 s50, s50, s48'); A(f's_add_u32 s50, s50, {61440*256 - 8*4096}')
        A('s_lshl_b32 s48, s3, 12'); A('s_add_u32 s50, s50, s48')
        A(f's_add_u32 s48, s48, {L_B - 8*4096}')
        self.kdma(56)
        A(f's_add_u32 s48, s48, {16384 - 1920}')
        A('s_mov_b32 m0, s48'); A('s_nop 0')
        for j in range(4):
            A(f'buffer_load_dwordx4 v1, s[60:63], s50 offen offset:{1024*j} nt lds')
            A('s_nop 0')
        self.lab(nb)
        self.stamp(2)
        nq = self.newlab('NQ')
        A(f's_cmp_lg_u32 s3, {self.o["qw"]}'); A(f's_cbranch_scc1 {nq}')
        self.q_gather(0)
        self.stamp(9)
        self.lab(nq)
        self.lds_wait(F_QA, 1)
        self.tag()
        self.read_q(L_QA)
        kw = self.newlab('KW')
        A('s_waitcnt vmcnt(8)')
        A('s_cmp_ge_u32 s3, 8'); A(f's_cbranch_scc1 {kw}')
        A('s_waitcnt vmcnt(0)')
        self.lab(kw)
        self.stamp(3)
        S = list(range(24, 32))
        self.qk(list(range(8)), 32, S)
        self.rowmax(S)
        self.post_max()
        self.stamp(4)
        nqb = self.newlab('NQB')
        A('s_cmp_lg_u32 s3, 9'); A(f's_cbranch_scc1 {nqb}')
        self.q_gather(1)
        self.lab(nqb)
        young = self.newlab('Y')
        self.round_chain(S, 32)
        A(f's_cmp_ge_u32 s3, {self.o["oldv"]}')
        A(f's_cbranch_scc1 {young}')
        self.v_issue()
        self.stamp(10)
        self.lab(young)
        self.softmax(S, 32, True)
        self.expand_p(32)
        A('v_lshrrev_b32 v57, 10, v11')
        for x in range(32, 48): A(f'v_mov_b32 v{x}, 0')
        A('s_lshr_b32 s52, s3, 2')
        old = self.newlab('O'); noch = self.newlab('NC')
        A(f's_cmp_lt_u32 s3, {self.o["oldv"]}')
        A(f's_cbranch_scc1 {old}')
        nsb = self.newlab('NSB')
        A('s_cmp_lt_u32 s3, 8'); A(f's_cbranch_scc1 {nsb}')
        A('s_waitcnt vmcnt(0)')
        self.lds_inc(C_B)
        self.lab(nsb)
        self.v_issue()
        self.stamp(10)
        self.lab(old)
        A('s_cmp_eq_u32 s52, 0'); A(f's_cbranch_scc1 {noch}')
        self.lds_wait(F_CH, 's52', areg=57)
        for q in range(4): A(f'ds_read_b128 v[{32+4*q}:{35+4*q}], v11 offset:{L_CH + 1024*q}')
        self.lab(noch)
        self.stamp(6)
        A('s_waitcnt lgkmcnt(0)')
        self.pv(True)
        self.stamp(7)
        A('s_nop 7')
        for q in range(4): A(f'ds_write_b128 v11, v[{32+4*q}:{35+4*q}] offset:{L_CH + 1024*q}')
        self.lds_inc(F_CH, areg=57)

    def ticket_req(self):
        self.A('s_mov_b32 s66, 1'); self.A('s_mov_b32 s67, 0')
        self.A('s_atomic_add_x2 s[66:67], s[28:29], s53 glc')
    def wait3(self, a, b, c):
        A = self.A
        d = self.newlab('WT')
        A(f's_waitcnt vmcnt({a})')
        A('s_cmp_eq_u32 s65, 0'); A(f's_cbranch_scc1 {d}')
        A(f's_waitcnt vmcnt({b})')
        A('s_cmp_eq_u32 s65, 1'); A(f's_cbranch_scc1 {d}')
        A(f's_waitcnt vmcnt({c})')
        self.lab(d)
    def kdma(self, srd):
        A = self.A
        for j, (imm, adj) in enumerate(((0, 896), (128, 128), (1024, 896), (1152, 0))):
            A('s_mov_b32 m0, s48'); A(f's_add_u32 s48, s48, {adj}')
            A(f'buffer_load_dwordx4 v2, s[{srd}:{srd+3}], s50 offen offset:{imm} nt lds')

    def task_dynamic(self):
        A = self.A
        ns = self.o['ns']; shl = self.o.get('shl', 4); ntick = (16 - ns) * 4 << shl
        A('s_setprio 1')
        A('s_sub_u32 s52, s3, 12')
        A(f's_mul_i32 s27, s52, {3*4096}'); A(f's_add_u32 s27, s27, {L_KD}')
        A('v_add_u32 v63, s27, v1')
        for x in range(32, 48): A(f'v_mov_b32 v{x}, 0')
        A('v_mov_b32 v12, 0xf149f2ca'); A('v_mov_b32 v14, 0')
        A('v_lshrrev_b32 v57, 10, v11')
        A('v_mov_b32 v56, 0xffffff00')
        self.vS(58)
        for o in range(1, 4):
            A(f'v_add_u32 v{58+o}, {4096*o}, v11'); A(f'v_and_b32 v{58+o}, 0x3fff, v{58+o}')
        A(f's_lshr_b32 s53, s2, {shl}'); A('s_lshl_b32 s53, s53, 8'); A(f's_add_u32 s53, s53, {WS_T}')
        A(f's_lshr_b32 s26, s23, {shl}'); A('s_lshl_b32 s26, s26, 12'); A('s_lshl_b32 s48, s22, 24'); A('s_add_u32 s26, s26, s48'); A(f's_add_u32 s26, s26, {ns << 20}')
        A('s_waitcnt lgkmcnt(0)')
        self.tag()
        ni = self.newlab('NI')
        A(f's_and_b32 s48, s2, {(1 << shl) - 1}'); A('s_or_b32 s48, s48, s52'); A(f's_cbranch_scc1 {ni}')
        A('v_mov_b32 v5, s55')
        A('s_mov_b64 exec, 1')
        A('s_setprio 3')
        A('buffer_store_dwordx2 v[4:5], v4, s[44:47], s53 offen sc1')
        A('s_setprio 1')
        A('s_mov_b64 exec, -1')
        self.lab(ni)
        self.lds_wait(C_Q, 8, sleep=4)
        self.ticket_req()
        self.stamp(2)
        self.op_offsets(0)
        A('s_mov_b32 s21, 0')
        A('s_mov_b32 s64, 0')
        A('s_mov_b32 s65, 0')
        self.lab('L_dl')
        for b in range(3):
            rt = self.newlab('RT'); ok = self.newlab('OK'); pr = self.newlab('PR'); ex = self.newlab('EX'); dr = self.newlab('DR'); nx = self.newlab('NX'); nf = self.newlab('NF')
            A('s_cmp_lg_u32 s65, 0'); A(f's_cbranch_scc1 {dr}')
            A('s_mov_b32 s49, 0x8000')
            self.lab(rt)
            A('s_waitcnt lgkmcnt(0)')
            A('s_cmp_eq_u32 s67, s55'); A(f's_cbranch_scc1 {ok}')
            self.ticket_req()
            A('s_sub_u32 s49, s49, 1'); A(f's_cbranch_scc0 {rt}')
            A('s_waitcnt lgkmcnt(0)')
            A(f's_branch {ex}')
            self.lab(ok)
            A(f's_cmp_ge_u32 s66, {ntick}'); A(f's_cbranch_scc1 {ex}')
            A(f's_lshl_b32 s50, s66, {18 - shl}'); A('s_add_u32 s50, s50, s26')
            A(f's_add_u32 s48, s27, {4096*b}')
            if self.o.get('tearly', 1): self.ticket_req()
            self.kdma(32)
            if not self.o.get('tearly', 1): self.ticket_req()
            for j in range(4):
                r = 80 + 16 * b + 4 * j
                A(f'buffer_load_dwordx4 v[{r}:{r+3}], v1, s[36:39], s50 offen offset:{1024*j} nt')
                A('s_nop 0')
            A('s_add_u32 s64, s64, 1')
            A(f's_branch {pr}')
            self.lab(ex)
            A('s_getpc_b64 s[62:63]')
            A('s_branch L_exh')
            self.lab(dr)
            A('s_add_u32 s65, s65, 1')
            A('s_cmp_gt_u32 s65, 2'); A('s_cbranch_scc1 L_dfin')
            self.lab(pr)
            A('s_cmp_lt_u32 s21, 2'); A(f's_cbranch_scc1 {nx}')
            A(f's_cbranch_scc0 {nf}') if False else None
            A('s_cmp_lg_u32 s21, 2'); A(f's_cbranch_scc1 {nf}')
            self.lds_wait(F_QA, 1)
            self.read_q(L_QA)
            self.lab(nf)
            pb = (b + 1) % 3
            self.wait3(20, 12, 4)
            for n in range(4): A(f'ds_read_b128 v[{64+4*n}:{67+4*n}], v63 offset:{4096*pb + 1024*n}')
            A('s_waitcnt lgkmcnt(0)')
            self.qk([0, 1], 48, [24, 25])
            self.round_chain([24, 25], 26)
            A('v_max3_f32 v8, v24, v25, v12')
            self.ror_reduce('v_max_f32', [8], 8)
            self.xg_reduce('v_max_f32', [8], [9])
            A('v_sub_f32 v9, v12, v8'); A('v_sub_f32 v24, v24, v8'); A('v_sub_f32 v25, v25, v8')
            A('v_mul_f32 v9, 0x3fb8aa3b, v9'); A('v_mul_f32 v24, 0x3fb8aa3b, v24'); A('v_mul_f32 v25, 0x3fb8aa3b, v25')
            A('v_exp_f32 v9, v9'); A('v_exp_f32 v24, v24'); A('v_exp_f32 v25, v25')
            A('v_mov_b32 v12, v8')
            A('v_cvt_pk_bf16_f32 v26, v24, v25')
            A('v_fma_f32 v14, v14, v9, v24')
            A('v_add_f32 v14, v14, v25')
            A('v_mov_b32_dpp v27, v26 row_ror:8 row_mask:0xf bank_mask:0xf')
            for x in range(32, 48): A(f'v_mul_f32 v{x}, v{x}, v9')
            A('v_cndmask_b32 v28, 0, v26, s[14:15]'); A('v_cndmask_b32 v29, 0, v27, s[14:15]')
            A('v_cndmask_b32 v30, v27, 0, s[14:15]'); A('v_cndmask_b32 v31, v26, 0, s[14:15]')
            self.wait3(16, 8, 0)
            vb = 80 + 16 * pb
            for tt in range(8):
                i, h = tt >> 1, tt & 1
                sel = 's31' if h else 's30'
                A(f'v_perm_b32 v{64+2*tt}, v{vb+4+i}, v{vb+i}, {sel}')
                A(f'v_perm_b32 v{65+2*tt}, v{vb+12+i}, v{vb+8+i}, {sel}')
            for tt in range(8):
                d = 32 + 4 * (tt & 3); p = 28 if tt < 4 else 30
                A(f'v_mfma_f32_16x16x16_bf16 v[{d}:{d+3}], v[{64+2*tt}:{65+2*tt}], v[{p}:{p+1}], v[{d}:{d+3}]')
            self.lab(nx)
            A('s_add_u32 s21, s21, 1')
        A('s_branch L_dl')
        self.lab('L_exh')
        self.stamp(10)
        A('s_setprio 2')
        A(f'ds_write_b32 v57, v6 offset:{F_EX}')
        self.lds_wait(F_CH, ns // 4, areg=57)
        for q in range(4): A(f'ds_read_b128 v[{64+4*q}:{67+4*q}], v11 offset:{L_CH + 1024*q}')
        A(f'ds_read_b32 v8, v10 offset:{L_MA}')
        self.lds_wait(C_L, ns)
        A(f'ds_read_b32 v13, v10 offset:{L_LA}')
        A('v_cvt_pk_bf16_f32 v8, v8, v8'); A('v_and_b32 v8, s100, v8'); A('v_mul_f32 v8, s101, v8')
        A('v_cvt_pk_bf16_f32 v8, v8, v8'); A('v_and_b32 v8, s100, v8')
        A('v_max_f32 v7, v8, v12')
        A('v_sub_f32 v9, v12, v7'); A('v_sub_f32 v8, v8, v7')
        A('v_mul_f32 v9, 0x3fb8aa3b, v9'); A('v_mul_f32 v8, 0x3fb8aa3b, v8')
        A('v_exp_f32 v9, v9'); A('v_exp_f32 v8, v8')
        A('v_mov_b32 v12, v7')
        A('s_waitcnt lgkmcnt(0)')
        A('v_mul_f32 v13, 0x3d000000, v13')
        A('v_mul_f32 v14, v14, v9')
        A('v_fmac_f32 v14, v13, v8')
        for x in range(32, 48): A(f'v_mul_f32 v{x}, v{x}, v9')
        for x in range(32, 48): A(f'v_fmac_f32 v{x}, v{x+32}, v8')
        A('s_add_u32 s62, s62, 4'); A('s_addc_u32 s63, s63, 0')
        A('s_setpc_b64 s[62:63]')
        self.lab('L_dfin')
        self.stamp(7)
        if self.stamps:
            A('s_mul_i32 s70, s64, 100'); A('s_add_u32 s70, s70, s68'); A('s_mov_b32 s71, s69')
        A('s_setprio 3')
        A('s_mov_b64 exec, 1')
        A(f'ds_add_rtn_u32 v5, v4, v6 offset:{C_O}')
        A('s_mov_b64 exec, -1')
        self.ror_reduce('v_add_f32', [14], 8)
        self.xg_reduce('v_add_f32', [14], [9])
        A('v_lshl_add_u32 v7, v57, 4, v10'); A('v_add_u32 v7, v7, v10')
        A('v_mov_b32 v13, v14')
        A('s_waitcnt lgkmcnt(0)')
        A('v_readfirstlane_b32 s48, v5')
        A('s_cmp_eq_u32 s48, 3')
        A('s_cbranch_scc1 L_last')
        for q in range(4): A(f'ds_write_b128 v11, v[{32+4*q}:{35+4*q}] offset:{L_CH + 1024*q}')
        A(f'ds_write_b64 v7, v[12:13] offset:{L_M4}')
        self.lds_inc(C_D)
        A('s_branch L_fin')
        self.lab('L_last')
        for o in range(1, 4):
            A(f'v_add_u32 v{24+o}, {64*o}, v7'); A(f'v_and_b32 v{24+o}, 0xff, v{24+o}')
        self.lds_wait(C_D, 3, sleep=0)
        for o in range(1, 4): A(f'ds_read_b64 v[{16+2*o}:{17+2*o}], v{24+o} offset:{L_M4}')
        for o in range(1, 4):
            for q in range(4):
                r = 64 + 16 * (o - 1) + 4 * q
                A(f'ds_read_b128 v[{r}:{r+3}], v{58+o} offset:{L_CH + 1024*q}')
        A('v_mov_b32 v13, s55'); A('v_mov_b32 v15, s55')
        A('s_waitcnt lgkmcnt(12)')
        A('v_max3_f32 v8, v12, v18, v20'); A('v_max_f32 v8, v8, v22')
        A('v_sub_f32 v16, v12, v8')
        for o in range(1, 4): A(f'v_sub_f32 v{16+2*o}, v{16+2*o}, v8')
        for o in range(4): A(f'v_mul_f32 v{16+2*o}, 0x3fb8aa3b, v{16+2*o}')
        for o in range(4): A(f'v_exp_f32 v{16+2*o}, v{16+2*o}')
        A('v_mov_b32 v12, v8')
        A('v_mul_f32 v14, v14, v16')
        for o in range(1, 4): A(f'v_fmac_f32 v14, v{17+2*o}, v{16+2*o}')
        self.stamp(3)
        A('s_mov_b64 exec, 0xffffffff')
        A('buffer_store_dwordx4 v[12:15], v58, s[44:47], s5 offen sc1')
        A('s_mov_b64 exec, -1')
        self.stamp(4)
        for x in range(32, 48): A(f'v_mul_f32 v{x}, v{x}, v16')
        for o in range(1, 4):
            for q in range(4):
                A(f's_waitcnt lgkmcnt({11 - 4*(o-1) - q})')
                r = 64 + 16 * (o - 1) + 4 * q
                for e in range(4): A(f'v_fmac_f32 v{32+4*q+e}, v{r+e}, v{16+2*o}')
                if o == 3:
                    self.embed(range(32+4*q, 36+4*q))
        self.stamp(5)
        for q in range(4):
            A(f'buffer_store_dwordx4 v[{32+4*q}:{35+4*q}], v58, s[44:47], s{56+q} offen sc1')
        self.lds_inc(C_O)
        self.stamp(8)
        A('s_branch L_fin')

    def task_b(self):
        A = self.A
        A(f'v_add_u32 v13, {L_B}, v1')
        self.lds_wait(C_B, 4)
        for n in range(16): A(f'ds_read_b128 v[{64+4*n}:{67+4*n}], v13 offset:{1024*n}')
        self.lds_wait(F_QB, 1)
        self.read_q(L_QB)
        S = list(range(24, 32))
        self.qk(list(range(8)), 32, S)
        self.rowmax(S)
        self.v_from_lds(13, 16384, range(4))
        self.round_chain(S, 32)
        self.softmax(S, 32, False)
        self.expand_p(32)
        A('v_mov_b32 v56, 0xffffff00')
        self.vS(58)
        self.op_offsets(1)
        for x in range(32, 48): A(f'v_mov_b32 v{x}, 0')
        A('s_waitcnt lgkmcnt(0)')
        self.pv(False)
        A('s_setprio 3')
        A('s_nop 6')
        self.embed(range(32, 48))
        for q in range(4):
            A(f'buffer_store_dwordx4 v[{32+4*q}:{35+4*q}], v58, s[44:47], s{56+q} offen sc1')

    def proj_result(self):
        A = self.A
        for tt in (0, 4, 1, 5, 2, 6, 3, 7):
            A(f'v_mfma_f32_16x16x32_bf16 v[{24+4*tt}:{27+4*tt}], v[16:19], v[{96+4*tt}:{99+4*tt}], 0')
        A('s_nop 1')
        for k in range(4):
            d0 = 24 + 4 * k; d4 = 24 + 4 * (k + 4)
            A(f'v_cndmask_b32 v{d0+2}, v{d4+1}, v{d0}, s[14:15]')
            A(f'v_cndmask_b32 v{d0+3}, v{d0+1}, v{d4}, s[14:15]')
        A('s_mov_b64 exec, 0xffff')
        for k in range(4):
            d0 = 24 + 4 * k
            A(f'v_add_f32_dpp v{20+k}, v{d0+3}, v{d0+2} row_ror:8 row_mask:0xf bank_mask:0xf')

    def build(self):
        A = self.A; o = self.o
        L = self.L
        L.append(HEADER.rstrip())
        L.append(f'; @launch grid=(256,1,1) block=(1024,1,1) lds={LDS_BYTES}')
        L.append('.amdgcn_target "amdgcn-amd-amdhsa--gfx950"')
        L.append('.text')
        L.append(f'.globl {NAME}_kernel')
        L.append('.p2align 8')
        L.append(f'.type {NAME}_kernel,@function')
        L.append(f'{NAME}_kernel:')
        A('s_cmp_ge_u32 s2, 256')
        A('s_cbranch_scc1 L_end')
        A('s_load_dwordx16 s[4:19], s[0:1], 0')
        A('s_load_dwordx8 s[20:27], s[0:1], 64')
        A('s_load_dwordx2 s[28:29], s[0:1], 96')
        if self.stamps:
            for i in range(70, 96): A(f's_mov_b32 s{i}, 0')
        self.stamp(0)
        A('v_lshrrev_b32 v5, 6, v0')
        A('v_mov_b32 v4, 0')
        A('v_readfirstlane_b32 s3, v5')
        A('v_and_b32 v0, 63, v0')
        A('v_lshrrev_b32 v8, 4, v0')
        A('v_and_b32 v7, 7, v0')
        A('v_lshlrev_b32 v10, 2, v7')
        A('v_and_b32 v12, 8, v0')
        A('v_lshlrev_b32 v14, 15, v12'); A('v_lshl_add_u32 v14, v8, 16, v14'); A('v_lshl_add_u32 v14, v10, 2, v14')
        A('v_and_b32 v2, 1, v0'); A('v_lshlrev_b32 v15, 6, v2'); A('v_lshl_add_u32 v15, v8, 4, v15')
        A('s_and_b32 s49, s2, 1'); A('s_lshl_b32 s49, s49, 9'); A('s_lshl_b32 s48, s3, 6'); A('s_add_u32 s49, s49, s48')
        A('s_bfe_u32 s52, s2, 0x60001')
        A('s_lshl_b32 s48, s49, 13'); A('s_lshl_b32 s50, s52, 7'); A('s_add_u32 s48, s48, s50')
        A('s_lshl_b32 s49, s49, 1'); A('v_add_u32 v15, s49, v15')
        A('s_mov_b32 s42, 0x800000'); A('s_mov_b32 s43, 0x20000')
        A('s_setprio 2')
        A('s_cmp_lt_u32 s2, 128')
        A('s_waitcnt lgkmcnt(0)')
        A('s_cselect_b32 s40, s10, s20'); A('s_cselect_b32 s41, s11, s21')
        A('s_cselect_b32 s66, s4, s14');  A('s_cselect_b32 s67, s5, s15')
        A('s_cselect_b32 s10, s12, s22'); A('s_cselect_b32 s11, s13, s23')
        A('s_cmp_ge_u32 s3, 8')
        A('s_cbranch_scc1 L_nowq')
        for j in range(8):
            A(f'buffer_load_dwordx4 v[{64+4*j}:{67+4*j}], v14, s[40:43], s48 offen nt')
            if j < 7: A('s_add_u32 s48, s48, 8192')
        A('global_load_dwordx4 v[16:19], v15, s[66:67]')
        self.lab('L_nowq')
        if o.get('early'): self.stamp(13)
        A('v_mov_b32 v6, 1')
        A('v_lshlrev_b32 v1, 4, v0')
        A('v_and_b32 v57, 3, v5')
        A('v_lshl_add_u32 v11, v57, 12, v1')
        A('v_and_b32 v9, 15, v0')
        A('v_lshrrev_b32 v13, 2, v9')
        A('v_lshlrev_b32 v2, 4, v2')
        A('v_lshl_add_u32 v2, v13, 8, v2')
        A('v_lshl_add_u32 v2, v8, 5, v2')
        A('v_and_b32 v13, 2, v0')
        A('v_lshl_add_u32 v2, v13, 10, v2')
        A(f'v_mul_u32_u24 v3, {QSTR}, v7')
        A('v_lshl_add_u32 v3, v8, 5, v3')
        A('v_lshl_add_u32 v3, v12, 1, v3')
        A('s_mov_b32 s30, 0x05040100')
        A('s_mov_b32 s31, 0x07060302')
        A('s_mov_b32 s100, 0xffff0000')
        A('s_mov_b32 s101, 0x3db504f3')
        A('s_mov_b32 s32, s6');  A('s_mov_b32 s33, s7');  A('s_mov_b32 s34, 0x4000000'); A('s_mov_b32 s35, 0x20000')
        A('s_mov_b32 s36, s8');  A('s_mov_b32 s37, s9');  A('s_mov_b32 s38, 0x4000000'); A('s_mov_b32 s39, 0x20000')
        A('s_mov_b32 s44, s28'); A('s_mov_b32 s45, s29'); A(f's_mov_b32 s46, {WS_BYTES}'); A('s_mov_b32 s47, 0x20000')
        A('s_lshr_b32 s20, s2, 7')
        A('s_and_b32 s4, s2, 7'); A('s_bfe_u32 s7, s2, 0x30004'); A('s_lshl_b32 s7, s7, 3'); A('s_add_u32 s4, s4, s7')
        A('s_bfe_u32 s7, s2, 0x10003')
        A('s_lshr_b32 s22, s2, 6')
        A('s_and_b32 s23, s2, 63')
        A('s_mov_b32 s14, 0x00ff00ff'); A('s_mov_b32 s15, 0x00ff00ff')
        A('s_lshl_b32 s48, s23, 7')
        A(f's_mul_i32 s6, s22, {32*IB}'); A('s_add_u32 s6, s6, s48'); A(f's_add_u32 s6, s6, {WS_I1}')
        A(f's_mul_i32 s5, s22, {4*IB}'); A('s_add_u32 s5, s5, s48'); A(f's_add_u32 s5, s5, {WS_ML}')
        A('s_lshl_b32 s96, s22, 24')
        A('s_lshl_b32 s48, s3, 20'); A('s_add_u32 s96, s96, s48')
        A('s_lshl_b32 s48, s23, 13'); A('s_add_u32 s96, s96, s48')
        A('s_add_u32 s97, s96, 4096'); A('s_add_u32 s98, s96, 0x80000'); A('s_add_u32 s99, s98, 4096')
        A('s_cmp_ge_u32 s3, 8')
        A('s_cbranch_scc1 L_young0')
        A('s_load_dword s54, s[28:29], 0')
        A('s_lshr_b32 s56, s2, 5'); A(f's_mul_i32 s56, s56, {4*IB}'); A('s_and_b32 s48, s2, 1'); A('s_lshl_b32 s48, s48, 12'); A('s_add_u32 s56, s56, s48')
        A('s_and_b32 s48, s52, 15'); A('s_lshl_b32 s48, s48, 8'); A('s_add_u32 s56, s56, s48'); A(f's_add_u32 s56, s56, {WS_Q}')
        A(f'v_mul_u32_u24 v60, {IB}, v8'); A('v_lshl_add_u32 v60, v9, 4, v60')
        A('v_lshlrev_b32 v7, 3, v10'); A('v_lshl_add_u32 v7, v12, 1, v7')
        A('s_lshl_b32 s48, s3, 8'); A('v_add_u32 v7, s48, v7')
        A('v_mov_b32 v56, 0xffffff00')
        A('s_barrier')
        if o.get('early'):
            self.stamp(8); A('s_waitcnt vmcnt(8)'); self.stamp(9)
        A('s_waitcnt vmcnt(0)')
        if o.get('early'): self.stamp(12); A('s_branch L_fin')
        for tt in range(8): self.perm_tile(64, tt, 96 + 4 * tt)
        A('s_nop 1')
        self.proj_result()
        A(f'ds_write_b128 v7, v[20:23] offset:{L_QS}')
        A('s_mov_b64 exec, -1')
        self.lds_inc_rtn(C_Q)
        self.stamp(1)
        self.tag()
        A('s_cmp_lg_u32 s48, 7')
        A('s_cbranch_scc1 L_task')
        A('s_setprio 3')
        for k in range(2): A(f'ds_read_b128 v[{32+4*k}:{35+4*k}], v1 offset:{L_QS + 1024*k}')
        A('s_waitcnt lgkmcnt(0)')
        for e in range(4): A(f'v_add_f32 v{32+e}, v{32+e}, v{36+e}')
        self.xg_reduce('v_add_f32', [32, 33, 34, 35], [36, 37, 38, 39])
        self.embed(range(32, 36))
        A('buffer_store_dwordx4 v[32:35], v60, s[44:47], s56 offen sc1')
        A('s_setprio 2')
        A('s_branch L_task')
        self.lab('L_young0')
        A('v_mov_b32 v5, 0xff800000')
        A('v_cmp_gt_u32 vcc, 16, v0')
        A('v_lshlrev_b32 v7, 2, v0')
        A('s_nop 0')
        A('v_cndmask_b32 v5, v4, v5, vcc')
        A(f'ds_write_b32 v7, v5 offset:{L_MISC}')
        A('s_waitcnt lgkmcnt(0)')
        A('s_barrier')
        A('s_load_dword s54, s[28:29], 0')
        if o.get('early'): self.stamp(8); A('s_branch L_fin')
        A('s_cmp_ge_u32 s3, 12')
        A('s_cbranch_scc1 L_dyn')
        if o['ns'] == 8:
            A('s_waitcnt lgkmcnt(0)'); self.tag(); A('s_branch L_c')
        self.lab('L_task')
        self.task_static()
        A('s_cmp_ge_u32 s3, 8')
        A('s_cbranch_scc1 L_c')
        A('s_cmp_lg_u32 s3, 1'); A('s_cbranch_scc1 L_wo')
        self.task_b()
        A('s_setprio 2')
        A('v_lshrrev_b32 v57, 10, v11')
        self.stamp(9)
        self.lab('L_wo')
        A('s_mov_b32 s40, s10'); A('s_mov_b32 s41, s11')
        A('s_lshr_b32 s50, s4, 4'); A('s_lshl_b32 s50, s50, 10')
        A('s_and_b32 s51, s4, 3'); A('s_lshl_b32 s51, s51, 5'); A('s_add_u32 s50, s50, s51')
        A('s_bfe_u32 s51, s4, 0x20002'); A('s_add_u32 s50, s50, s51')
        A('s_lshl_b32 s50, s50, 11'); A('s_lshl_b32 s51, s7, 10'); A('s_add_u32 s50, s50, s51'); A('s_lshl_b32 s51, s3, 7'); A('s_add_u32 s50, s50, s51')
        A('v_lshrrev_b32 v8, 4, v0')
        A('v_lshlrev_b32 v58, 19, v8'); A('v_lshl_add_u32 v58, v10, 2, v58'); A('v_and_b32 v5, 8, v0'); A('v_lshl_add_u32 v58, v5, 10, v58')
        A('v_mov_b32 v56, 0xffffff00'); A('v_mov_b32 v61, v5')
        ge = self.newlab('GE')
        if o['woe']:
            A(f's_cmp_lt_u32 s3, {o["woe"]}'); A(f's_cbranch_scc1 {ge}')
        self.lds_wait(F_EX, 1, sleep=2, areg=57)
        A('s_setprio 0')
        self.lab(ge)
        for j in range(8):
            A(f'buffer_load_dwordx4 v[{64+4*j}:{67+4*j}], v58, s[40:43], s50 offen nt')
            if j < 7: A(f's_add_u32 s50, s50, {16384 if j != 3 else (128 - 24) * 2048}')
        self.stamp(11)
        A('s_setprio 2')
        self.lds_inc(C_W)
        A('v_and_b32 v60, 1, v0'); A('v_lshlrev_b32 v60, 6, v60'); A('v_lshl_add_u32 v60, v8, 4, v60')
        A('v_bfe_u32 v59, v0, 2, 1'); A(f'v_mul_u32_u24 v59, {IB}, v59')
        A('v_and_b32 v7, 3, v0'); A('v_lshl_add_u32 v59, v7, 5, v59'); A('v_lshl_add_u32 v59, v61, 1, v59')
        A('s_lshl_b32 s53, s20, 5'); A('s_lshl_b32 s48, s7, 4'); A('s_add_u32 s53, s53, s48'); A('s_lshl_b32 s48, s3, 1'); A('s_add_u32 s53, s53, s48')
        A(f's_mul_i32 s53, s53, {IB}'); A('s_lshl_b32 s48, s4, 7'); A('s_add_u32 s53, s53, s48'); A(f's_add_u32 s53, s53, {WS_I2}')
        A('s_waitcnt vmcnt(0)')
        self.lds_inc(C_W)
        for tt in range(8): self.perm_tile(64, tt, 96 + 4 * tt)
        self.stamp(12)
        if o.get('notail'): A('s_branch L_fin')
        self.lds_wait(F_O, 2, sleep=0)
        A(f'ds_read_b128 v[16:19], v60 offset:{L_O}')
        A('s_waitcnt lgkmcnt(0)')
        self.proj_result()
        self.embed(range(20, 24))
        A('buffer_store_dwordx4 v[20:23], v59, s[44:47], s53 offen sc1')
        A('s_mov_b64 exec, -1')
        if o.get('rs', 0) == 3:
            A('s_waitcnt vmcnt(0)')
            self.lds_inc(C_W)
        self.stamp(13)
        A('s_branch L_fin')
        self.lab('L_dyn')
        self.task_dynamic()
        self.lab('L_c')
        A('s_cmp_eq_u32 s3, 11')
        A('s_cbranch_scc1 L_red')
        A('s_cmp_eq_u32 s3, 8')
        A('s_cbranch_scc1 L_fin')
        self.lab('L_comb')
        if o.get('notail'): A('s_branch L_fin')
        A('s_lshr_b32 s40, s4, 4'); A('s_lshl_b32 s41, s20, 2'); A('s_add_u32 s40, s40, s41')
        A('s_lshl_b32 s41, s40, 2'); A('s_and_b32 s42, s2, 3'); A('s_add_u32 s41, s41, s42'); A(f's_mul_i32 s41, s41, {IB}'); A(f's_add_u32 s41, s41, {WS_ML}')
        A('s_lshl_b32 s40, s40, 5'); A('s_and_b32 s42, s4, 15'); A('s_lshl_b32 s42, s42, 1'); A('s_add_u32 s40, s40, s42')
        A('s_and_b32 s42, s3, 1'); A('s_add_u32 s40, s40, s42'); A(f's_mul_i32 s40, s40, {IB}'); A(f's_add_u32 s40, s40, {WS_I1}')
        A('s_lshl_b32 s42, s42, 6'); A('v_lshlrev_b32 v12, 3, v0'); A('v_add_u32 v12, s42, v12')
        A('s_add_u32 s42, s41, 4096'); A('s_add_u32 s43, s40, 4096')
        A('v_mov_b32 v15, 0xff'); A('v_mov_b32 v14, 0x3fb8aa3b')
        self.lds_wait(C_W, o.get('cw', 16), sleep=1)
        self.lds_wait(C_O, 5)
        self.stamp(11)
        M = [96 + 4 * k for k in range(8)]
        self.mgather([(96, 's41', 's42', True), (64, 's40', 's43', False)])
        self.stamp(12)
        A(f'v_max3_f32 v32, v{M[0]}, v{M[1]}, v{M[2]}'); A(f'v_max3_f32 v33, v{M[3]}, v{M[4]}, v{M[5]}'); A(f'v_max3_f32 v32, v32, v{M[6]}, v{M[7]}'); A('v_max_f32 v32, v32, v33')
        self.ror_reduce('v_max_f32', [32], 8)
        self.xg_reduce('v_max_f32', [32], [33])
        A('v_mul_f32 v32, 0x3fb8aa3b, v32')
        for k in range(8): A(f'v_fma_f32 v{M[k]}, v{M[k]}, v14, -v32')
        for k in range(8): A(f'v_exp_f32 v{M[k]}, v{M[k]}')
        A(f'v_mul_f32 v36, v{M[0]}, v{M[0]+2}')
        for k in range(1, 8): A(f'v_fmac_f32 v36, v{M[k]}, v{M[k]+2}')
        for e in range(4): A(f'v_mul_f32 v{32+e}, v{M[0]}, v{64+e}')
        for k in range(1, 8):
            for e in range(4): A(f'v_fmac_f32 v{32+e}, v{M[k]}, v{64+4*k+e}')
        self.ror_reduce('v_add_f32', [36, 32, 33, 34, 35], 8)
        self.xg_reduce('v_add_f32', [36, 32, 33, 34, 35], [41, 37, 38, 39, 40])
        A('v_rcp_f32 v37, v36')
        A('s_nop 0')
        A('v_fma_f32 v38, -v36, v37, 1.0')
        A('v_fma_f32 v37, v38, v37, v37')
        for e in range(4): A(f'v_mul_f32 v{32+e}, v{32+e}, v37')
        A('v_cvt_pk_bf16_f32 v32, v32, v33'); A('v_cvt_pk_bf16_f32 v33, v34, v35')
        A('s_mov_b64 exec, 0xff')
        A(f'ds_write_b64 v12, v[32:33] offset:{L_O}')
        A('s_mov_b64 exec, 1')
        A(f'ds_add_u32 v4, v6 offset:{F_O}')
        A('s_mov_b64 exec, -1')
        self.stamp(13)
        A('s_branch L_fin')
        self.lab('L_red')
        if o.get('notail'):
            A('s_cmp_lg_u32 s2, 0'); A('s_cbranch_scc1 L_fin')
            self.lds_wait(C_O, 4)
            A('v_mov_b32 v13, s55'); A('s_mov_b64 exec, 1'); A('global_store_dword v4, v13, s[28:29]'); A('s_mov_b64 exec, -1')
            A('s_branch L_fin')
        A('s_bfe_u32 s40, s2, 0x20003'); A('s_cmp_lg_u32 s40, 0')
        A('s_cbranch_scc1 L_fin')
        A('s_lshr_b32 s40, s2, 5'); A('s_lshl_b32 s40, s40, 3'); A('s_and_b32 s41, s2, 7'); A('s_add_u32 s40, s40, s41')
        A('s_lshl_b32 s42, s40, 6'); A('v_lshlrev_b32 v12, 3, v0'); A('v_add_u32 v12, s42, v12')
        A(f's_mul_i32 s40, s40, {IB}'); A(f's_add_u32 s40, s40, {WS_I2}')
        A('v_mov_b32 v13, s55'); A('v_mov_b32 v15, 0xff'); A('s_add_u32 s43, s40, 4096')
        rs = o.get('rs', 0)
        if rs == 0: self.lds_wait(F_O, 2, sleep=2)
        elif rs == 1: self.lds_wait(C_W, 16, sleep=2)
        elif rs == 2:
            self.lds_wait(C_O, 5, sleep=2)
            for k in range(8): A(f'buffer_load_dwordx4 v[{64+4*k}:{67+4*k}], v1, s[44:47], {"s40" if k < 4 else "s43"} offen offset:{1024*(k&3)} sc1')
            A('s_waitcnt vmcnt(0)')
            self.lds_wait(F_O, 2, sleep=1)
        elif rs == 3:
            self.lds_wait(C_W, 24, sleep=1)
        self.stamp(11)
        self.mgather([(64, 's40', 's43', False)])
        self.stamp(12)
        for k in range(4):
            for e in range(4): A(f'v_add_f32 v{64+4*k+e}, v{64+4*k+e}, v{80+4*k+e}')
        for k in range(2):
            for e in range(4): A(f'v_add_f32 v{64+4*k+e}, v{64+4*k+e}, v{72+4*k+e}')
        for e in range(4): A(f'v_add_f32 v{64+e}, v{64+e}, v{68+e}')
        self.ror_reduce('v_add_f32', [64, 65, 66, 67], 8)
        self.xg_reduce('v_add_f32', [64, 65, 66, 67], [36, 37, 38, 39])
        A('v_cvt_pk_bf16_f32 v32, v64, v65'); A('v_cvt_pk_bf16_f32 v33, v66, v67')
        A('s_mov_b64 exec, 0xff')
        A('global_store_dwordx2 v12, v[32:33], s[24:25]')
        A('s_cmp_lg_u32 s2, 0')
        A('s_cbranch_scc1 L_nogen')
        A('s_mov_b64 exec, 1')
        A('global_store_dword v4, v13, s[28:29]')
        self.lab('L_nogen')
        A('s_mov_b64 exec, -1')
        self.stamp(13)
        if not o.get('lite'): self.lab('L_fin')
        if self.stamps:
            A('s_waitcnt vmcnt(0) lgkmcnt(0)')
            A('s_getreg_b32 s48, hwreg(HW_REG_XCC_ID)')
            A('s_getreg_b32 s49, hwreg(HW_REG_HW_ID)')
            for i in range(28): A(f'v_writelane_b32 v20, s{68+i}, {i}')
            A('v_writelane_b32 v20, s48, 28')
            A('v_writelane_b32 v20, s49, 29')
            A('s_lshl_b32 s48, s2, 4'); A('s_add_u32 s48, s48, s3'); A('s_lshl_b32 s48, s48, 7'); A(f's_add_u32 s48, s48, {STAMP_OFF}')
            A('v_lshlrev_b32 v7, 2, v0'); A('v_add_u32 v7, s48, v7')
            A('s_mov_b64 exec, 0xffffffff')
            A('global_store_dword v7, v20, s[28:29]')
        if o.get('lite'): self.lab('L_fin')
        self.lab('L_end')
        A('s_endpgm')
        L.append('.section .rodata,"a"')
        L.append('.p2align 6')
        L.append(f'.amdhsa_kernel {NAME}_kernel')
        L.append('  .amdhsa_next_free_vgpr 128')
        L.append('  .amdhsa_next_free_sgpr 102')
        L.append('  .amdhsa_accum_offset 128')
        L.append('  .amdhsa_group_segment_fixed_size 0')
        L.append('  .amdhsa_kernarg_size 104')
        L.append('  .amdhsa_user_sgpr_count 2')
        L.append('  .amdhsa_user_sgpr_kernarg_segment_ptr 1')
        L.append('  .amdhsa_system_sgpr_workgroup_id_x 1')
        L.append('.end_amdhsa_kernel')
        return '\n'.join(L) + '\n'

if __name__ == '__main__':
    out = sys.argv[1]
    stamps = 'stamps' in sys.argv[2:]
    opts = {}
    for a in sys.argv[2:]:
        if '=' in a:
            k, v = a.split('='); opts[k] = int(v)
    open(out, 'w').write(Gen(stamps, opts).build())
```

```python
import sys
NAME = 'concat_heads__gqa_block_cached__sliding_block_cached__decode'

HEADER = open('cdna_kernels/' + NAME + '.s.ref').read().split('; Override launch')[0]

IB = 8448
WS_T = 0x1000
WS_P = 0x3000
WS_Q = 0x4000
WS_ML = 0x50000
WS_I1 = 0xA0000
WS_I2 = 0x2C0000
WS_BYTES = 0x400000
STAMP_OFF = 0x10000000
L_CH, L_QS, L_QA, L_QB, L_MISC = 0, 16384, 20480, 22784, 25088
QSTR = 272
L_MA, L_LA = L_MISC, L_MISC + 64
L_C = L_MISC + 128
C_Q, C_M, C_O, C_L, F_QA, F_QB, F_O, C_B, C_D, C_W, F_X2, F_X3, F_CH = [L_C + 4 * i for i in range(13)]
F_GO = L_C + 80
F_EX = L_C + 64
L_O = L_MISC + 256
L_M4 = L_MISC + 384
L_T = L_MISC + 1024
NEED = F_X2
L_B = L_T + 2048
L_KD = L_B + 32768
LDS_BYTES = L_KD + 4 * 3 * 4096

class Gen:
    def __init__(self, stamps=False, opts=None):
        self.L = []
        self.stamps = stamps
        self.nlab = 0
        self.o = dict(qw=4, oldv=8, ns=12, woe=0, shl=5)
        if opts: self.o.update(opts)
    def A(self, s):
        dr = self.o.get('drop', 0)
        if s.startswith('buffer_store'):
            if 'v58' in s and self.o.get('inB') and dr & 1: return
            if 'v58' in s and not self.o.get('inB') and dr & 2: return
            if 'v[12:15]' in s and dr & 4: return
            if 'v60' in s and dr & 8: return
        if s: self.L.append('    ' + s)
    def lab(self, s): self.L.append(s + ':')
    def newlab(self, p='L'):
        self.nlab += 1
        return f'{p}_{self.nlab}'
    def stamp(self, i):
        if self.o.get('lite') and i not in (0, 13): return
        if self.stamps: self.A(f's_memrealtime s[{68+2*i}:{69+2*i}]')

    def lds_wait(self, addr, val, sleep=1, areg=4):
        A = self.A
        l = self.newlab('W'); d = self.newlab('D')
        A('s_mov_b32 s49, 0x40000')
        self.lab(l)
        A(f'ds_read_b32 v5, v{areg} offset:{addr}')
        A('s_waitcnt lgkmcnt(0)')
        A('v_readfirstlane_b32 s48, v5')
        A(f's_cmp_ge_u32 s48, {val}')
        A(f's_cbranch_scc1 {d}')
        if sleep: A(f's_sleep {sleep}')
        A('s_sub_u32 s49, s49, 1')
        A(f's_cbranch_scc0 {l}')
        self.lab(d)
    def lds_inc(self, addr, areg=4):
        A = self.A
        A('s_mov_b64 exec, 1')
        A(f'ds_add_u32 v{areg}, v6 offset:{addr}')
        A('s_mov_b64 exec, -1')
    def lds_inc_rtn(self, addr):
        A = self.A
        A('s_mov_b64 exec, 1')
        A(f'ds_add_rtn_u32 v5, v4, v6 offset:{addr}')
        A('s_mov_b64 exec, -1')
        A('s_waitcnt lgkmcnt(0)')
        A('v_readfirstlane_b32 s48, v5')
    def tag(self):
        A = self.A
        A('s_and_b32 s55, s54, 0x7f7f7f7f'); A('s_add_u32 s55, s55, 0x35172b4d'); A('s_and_b32 s8, s54, 0x80808080'); A('s_xor_b32 s55, s55, s8')
        A('s_and_b32 s8, s55, 0xff'); A('s_bfe_u32 s9, s55, 0x80008'); A('s_bfe_u32 s12, s55, 0x80010'); A('s_lshr_b32 s13, s55, 24')
    TB = ['s8', 's9', 's12', 's13']
    def embed(self, regs):
        for r in regs: self.A(f'v_and_or_b32 v{r}, v{r}, v56, {self.TB[r & 3]}')

    def perm_tile(self, src, tt, dst):
        i, h = tt >> 1, tt & 1
        sel = 's31' if h else 's30'
        for jp in range(4):
            self.A(f'v_perm_b32 v{dst+jp}, v{src+4*(2*jp+1)+i}, v{src+4*(2*jp)+i}, {sel}')

    def xg_reduce(self, op, regs, tmps):
        A = self.A
        for sw in ('v_permlane16_swap_b32', 'v_permlane32_swap_b32'):
            for r, t in zip(regs, tmps): A(f'v_mov_b32 v{t}, v{r}')
            A('s_nop 1')
            for r, t in zip(regs, tmps): A(f'{sw} v{r}, v{t}')
            A('s_nop 1')
            for r, t in zip(regs, tmps): A(f'{op} v{r}, v{r}, v{t}')
    def ror_reduce(self, op, regs, n):
        A = self.A
        A('s_nop 1')
        for r in regs: A(f'{op}_dpp v{r}, v{r}, v{r} row_ror:{n} row_mask:0xf bank_mask:0xf')

    def gather(self, dst, sbase, N, tagged):
        A = self.A
        l = self.newlab('G'); d = self.newlab('GD')
        A('s_setprio 3')
        A(f's_add_u32 s51, {sbase}, 4096')
        A('s_mov_b32 s49, 0x8000')
        self.lab(l)
        for k in range(N):
            r = dst + 4 * k
            A(f'buffer_load_dwordx4 v[{r}:{r+3}], v1, s[44:47], {sbase if k < 4 else "s51"} offen offset:{1024*(k&3)} sc1')
        for k in range(N):
            r = dst + 4 * k
            A(f's_waitcnt vmcnt({N-1-k})')
            if tagged:
                if k == 0:
                    A(f'v_min_u32 v5, v{r+1}, v{r+3}'); A(f'v_max_u32 v7, v{r+1}, v{r+3}')
                else:
                    A(f'v_min3_u32 v5, v5, v{r+1}, v{r+3}'); A(f'v_max3_u32 v7, v7, v{r+1}, v{r+3}')
            else:
                if k == 0:
                    A(f'v_xor_b32 v5, s8, v{r}'); A(f'v_xor_b32 v7, s9, v{r+1}')
                else:
                    A(f'v_bitop3_b32 v5, s8, v5, v{r} bitop3:0xde'); A(f'v_bitop3_b32 v7, s9, v7, v{r+1} bitop3:0xde')
                A(f'v_bitop3_b32 v5, s12, v5, v{r+2} bitop3:0xde'); A(f'v_bitop3_b32 v7, s13, v7, v{r+3} bitop3:0xde')
        if tagged:
            A('v_cmp_ne_u32 vcc, s55, v5')
            A('v_cmp_ne_u32 s[66:67], s55, v7')
            A('s_or_b64 s[66:67], s[66:67], vcc')
            A(f's_cbranch_scc0 {d}')
        else:
            A('v_or_b32 v5, v5, v7')
            A('v_and_b32 v5, 0xff, v5')
            A('v_cmp_ne_u32 vcc, 0, v5')
            A(f's_cbranch_vccz {d}')
        A('s_sub_u32 s49, s49, 1')
        A(f's_cbranch_scc0 {l}')
        self.lab(d)

    MK = [50, 52, 56, 58, 60, 62, 64, 66]
    def mgather(self, sets):
        A = self.A
        l = self.newlab('MG'); d = self.newlab('MGD')
        A('s_setprio 3')
        for k in range(8):
            for dst, lo, hi, tg in sets:
                A(f'buffer_load_dwordx4 v[{dst+4*k}:{dst+4*k+3}], v1, s[44:47], {lo if k < 4 else hi} offen offset:{1024*(k&3)} sc1')
        def check(k):
            first = True
            for dst, lo, hi, tg in sets:
                r = dst + 4 * k
                if tg:
                    A(f'v_xor_b32 v7, s55, v{r+1}'); A(f'v_bitop3_b32 v7, s55, v7, v{r+3} bitop3:0xde')
                else:
                    A(f'v_xor_b32 v5, s8, v{r}'); A(f'v_bitop3_b32 v5, s9, v5, v{r+1} bitop3:0xde')
                    A(f'v_bitop3_b32 v5, s12, v5, v{r+2} bitop3:0xde'); A(f'v_bitop3_b32 v5, s13, v5, v{r+3} bitop3:0xde')
            if len(sets) == 2: A('v_and_or_b32 v5, v5, v15, v7')
            else: A('v_and_b32 v5, v5, v15')
            m = self.MK[k]
            A(f'v_cmp_ne_u32 s[{m}:{m+1}], 0, v5')
        n = len(sets)
        for k in range(8):
            A(f's_waitcnt vmcnt({(7-k)*n})')
            check(k)
        A('s_mov_b32 s49, 0x40000')
        self.lab(l)
        A('s_or_b64 vcc, s[50:51], s[52:53]')
        for k in range(2, 8): A(f's_or_b64 vcc, vcc, s[{self.MK[k]}:{self.MK[k]+1}]')
        A(f's_cbranch_scc0 {d}')
        for k in range(8):
            sk = self.newlab('MS'); m = self.MK[k]
            A(f's_mov_b64 exec, s[{m}:{m+1}]')
            A(f's_cbranch_execz {sk}')
            for dst, lo, hi, tg in sets:
                A(f'buffer_load_dwordx4 v[{dst+4*k}:{dst+4*k+3}], v1, s[44:47], {lo if k < 4 else hi} offen offset:{1024*(k&3)} sc1')
            self.lab(sk)
        A('s_mov_b64 exec, -1')
        A(f's_waitcnt vmcnt({self.o.get("pp", 0)})')
        for k in range(8):
            sk = self.newlab('MC'); m = self.MK[k]
            A(f's_cmp_eq_u64 s[{m}:{m+1}], 0')
            A(f's_cbranch_scc1 {sk}')
            check(k)
            self.lab(sk)
        A('s_sub_u32 s49, s49, 1')
        A(f's_cbranch_scc0 {l}')
        self.lab(d)

    def q_gather(self, br):
        A = self.A
        if self.o.get('drop', 0) & 8 or (br and self.o.get('drop', 0) & 16):
            A(f'ds_write_b32 v4, v6 offset:{F_QB if br else F_QA}')
            return
        A('v_lshrrev_b32 v8, 5, v0'); A('v_and_b32 v5, 31, v0')
        A(f'v_mul_u32_u24 v8, {QSTR}, v8'); A('v_lshl_add_u32 v8, v5, 3, v8')
        A('s_lshl_b32 s52, s22, 2'); A('s_and_b32 s51, s2, 3'); A('s_add_u32 s52, s52, s51')
        A(f's_mul_i32 s52, s52, {IB}'); A(f's_add_u32 s52, s52, {WS_Q + br * 16 * IB}')
        self.gather(32, 's52', 8, False)
        for k in range(4):
            r = 32 + 4 * k
            for e in range(4): A(f'v_add_f32 v{r+e}, v{r+e}, v{r+16+e}')
            A(f'v_cvt_pk_bf16_f32 v{r}, v{r}, v{r+1}'); A(f'v_cvt_pk_bf16_f32 v{r+1}, v{r+2}, v{r+3}')
            A(f'ds_write_b64 v8, v[{r}:{r+1}] offset:{(L_QB if br else L_QA) + 2*QSTR*k}')
        A(f'ds_write_b32 v4, v6 offset:{F_QB if br else F_QA}')
        A('s_setprio 2')

    def k_quarter(self, i, soff):
        for nn in range(2):
            for hf in range(2):
                r = 64 + 16 * i + 8 * nn + 4 * hf
                self.A(f'buffer_load_dwordx4 v[{r}:{r+3}], v2, s[32:35], {soff} offen offset:{1024*nn+128*hf} nt')
                self.A('s_nop 0')
    def v_issue(self, sig=False):
        self.A('s_setprio 1')
        for i in range(4):
            if sig and i == self.o.get('go', 2):
                sk = self.newlab('GO')
                self.A('s_cmp_lt_u32 s3, 8'); self.A(f's_cbranch_scc1 {sk}')
                self.A(f'ds_write_b32 v4, v6 offset:{F_GO}')
                self.lab(sk)
            for T in range(2):
                for nn in range(2):
                    r = 64 + 32 * T + 4 * (2 * i + nn)
                    self.A(f'buffer_load_dwordx4 v[{r}:{r+3}], v1, s[36:39], s{96+i} offen offset:{2048*T+1024*nn} nt')
                    self.A('s_nop 0')
        self.A('s_setprio 2')
    def v_from_lds(self, areg, base, quarters):
        for i in quarters:
            for T in range(2):
                for nn in range(2):
                    r = 64 + 32 * T + 4 * (2 * (i & 3) + nn)
                    self.A(f'ds_read_b128 v[{r}:{r+3}], v{areg} offset:{base + 4096*i + 2048*T + 1024*nn}')
    def vS(self, reg):
        A = self.A
        A(f'v_lshrrev_b32 v{reg}, 3, v0'); A(f'v_mul_u32_u24 v{reg}, {IB}, v{reg}'); A(f'v_lshl_add_u32 v{reg}, v10, 2, v{reg}')
    def ml_store(self, br):
        A = self.A
        A('s_setprio 3')
        A('v_mov_b32 v13, s55'); A('v_mov_b32 v15, s55')
        self.vS(7)
        if br: A(f's_add_u32 s5, s5, {16*IB}')
        A('s_mov_b64 exec, 0xffffffff')
        A(f'buffer_store_dwordx4 v[12:15], v7, s[44:47], s5 offen sc1')
        A('s_mov_b64 exec, -1')
        A('s_setprio 2')
    def op_offsets(self, br):
        for q in range(4): self.A(f's_add_u32 s{56+q}, s6, {br * 128 * IB + 8 * q * IB}')
    def read_q(self, LQ):
        for hf in range(2):
            self.A(f'ds_read_b128 v[{16+4*hf}:{19+4*hf}], v3 offset:{LQ + 128*hf}')
        self.A('s_waitcnt lgkmcnt(0)')
    def qk(self, blocks, D0, R):
        A = self.A
        N = len(blocks)
        for hf in range(2):
            for i, n in enumerate(blocks):
                r = 64 + 8 * n + 4 * hf; d = D0 + 4 * i
                c = '0' if hf == 0 else f'v[{d}:{d+3}]'
                A(f'v_mfma_f32_16x16x32_bf16 v[{d}:{d+3}], v[{r}:{r+3}], v[{16+4*hf}:{19+4*hf}], {c}')
        A(f's_nop {max(0, 8 - N)}')
        for i in range(N):
            d = D0 + 4 * i
            A(f'v_cndmask_b32 v{d}, v{d+3}, v{d}, s[14:15]')
            A(f'v_cndmask_b32 v{d+1}, v{d+1}, v{d+2}, s[14:15]')
        if N < 3: A('s_nop 1')
        for i in range(N):
            d = D0 + 4 * i
            A(f'v_add_f32_dpp v{R[i]}, v{d+1}, v{d} row_ror:8 row_mask:0xf bank_mask:0xf')
    def rowmax(self, S):
        A = self.A
        A(f'v_max3_f32 v8, v{S[0]}, v{S[1]}, v{S[2]}')
        for k in range(3, len(S) - 1, 2): A(f'v_max3_f32 v8, v8, v{S[k]}, v{S[k+1]}')
        A(f'v_max_f32 v8, v8, v{S[-1]}')
        self.ror_reduce('v_max_f32', [8], 8)
        self.xg_reduce('v_max_f32', [8], [9])
    def post_max(self):
        A = self.A
        A('s_mov_b64 exec, 0xff')
        A(f'ds_max_f32 v10, v8 offset:{L_MA}')
        A('s_mov_b64 exec, 1')
        A(f'ds_add_u32 v4, v6 offset:{C_M}')
        A('s_mov_b64 exec, -1')
    def round_chain(self, S, T):
        A = self.A
        n = len(S) // 2
        for rep in range(2):
            for k in range(n): A(f'v_cvt_pk_bf16_f32 v{T+k}, v{S[2*k]}, v{S[2*k+1]}')
            for k in range(n):
                A(f'v_lshlrev_b32 v{S[2*k]}, 16, v{T+k}')
                A(f'v_and_b32 v{S[2*k+1]}, s100, v{T+k}')
            if rep == 0:
                for x in S: A(f'v_mul_f32 v{x}, s101, v{x}')
    def softmax(self, S, PK, shared):
        A = self.A
        if shared:
            self.lds_wait(C_M, self.o['ns'])
            self.stamp(5)
            A(f'ds_read_b32 v8, v10 offset:{L_MA}')
            A('s_waitcnt lgkmcnt(0)')
        A('v_cvt_pk_bf16_f32 v8, v8, v8')
        A('v_and_b32 v8, s100, v8')
        A('v_mul_f32 v8, s101, v8')
        A('v_cvt_pk_bf16_f32 v8, v8, v8')
        A('v_and_b32 v12, s100, v8')
        for x in S: A(f'v_sub_f32 v{x}, v{x}, v12')
        for x in S: A(f'v_mul_f32 v{x}, 0x3fb8aa3b, v{x}')
        for x in S: A(f'v_exp_f32 v{x}, v{x}')
        A('s_nop 0')
        n = len(S) // 2
        for k in range(n): A(f'v_cvt_pk_bf16_f32 v{PK+k}, v{S[2*k]}, v{S[2*k+1]}')
        A(f'v_add_f32 v14, v{S[0]}, v{S[1]}'); A(f'v_add_f32 v9, v{S[2]}, v{S[3]}')
        for k in range(4, len(S), 2):
            A(f'v_add_f32 v14, v14, v{S[k]}'); A(f'v_add_f32 v9, v9, v{S[k+1]}')
        A('v_add_f32 v14, v14, v9')
        self.ror_reduce('v_add_f32', [14], 8)
        self.xg_reduce('v_add_f32', [14], [9])
        if shared:
            A('s_mov_b64 exec, 0xff')
            A(f'ds_add_f32 v10, v14 offset:{L_LA}')
            A('s_mov_b64 exec, 1')
            A(f'ds_add_u32 v4, v6 offset:{C_L}')
            A('s_mov_b64 exec, -1')
        else:
            self.ml_store(1)
    def expand_p(self, PK):
        A = self.A
        for k in range(4): A(f'v_cndmask_b32 v{16+k}, 0, v{PK+k}, s[14:15]')
        for k in range(4): A(f'v_cndmask_b32 v{28+k}, v{PK+k}, 0, s[14:15]')
        for k in range(4): A(f'v_mov_b32_dpp v{24+k}, v{16+k} row_ror:8 row_mask:0xf bank_mask:0xf')
        for k in range(4): A(f'v_mov_b32_dpp v{20+k}, v{28+k} row_ror:8 row_mask:0xf bank_mask:0xf')
    def pv(self, vm):
        A = self.A
        tq = [48, 52]
        for T in range(2):
            if vm: A(f's_waitcnt vmcnt({2 if T == 0 else 0})')
            src = 64 + 32 * T
            self.perm_tile(src, 0, tq[0])
            for tt in range(8):
                if tt < 7: self.perm_tile(src, tt + 1, tq[(tt + 1) & 1])
                else: A('s_nop 1')
                q = tq[tt & 1]
                d = 32 + 4 * (tt & 3)
                p = (16 if tt < 4 else 24) + 4 * T
                A(f'v_mfma_f32_16x16x32_bf16 v[{d}:{d+3}], v[{q}:{q+3}], v[{p}:{p+3}], v[{d}:{d+3}]')
    def task_static(self):
        A = self.A
        for i in range(4): self.k_quarter(i, f's{96+i}')
        nb = self.newlab('NB')
        A('s_cmp_lt_u32 s3, 8'); A(f's_cbranch_scc1 {nb}')
        A('s_mov_b32 s56, s16'); A('s_mov_b32 s57, s17'); A('s_mov_b32 s58, 0x4000000'); A('s_mov_b32 s59, 0x20000')
        A('s_mov_b32 s60, s18'); A('s_mov_b32 s61, s19'); A('s_mov_b32 s62, 0x4000000'); A('s_mov_b32 s63, 0x20000')
        A('s_lshl_b32 s50, s22, 24'); A('s_lshl_b32 s48, s23, 14'); A('s_add_u32 s50, s50, s48'); A(f's_add_u32 s50, s50, {61440*256 - 8*4096}')
        A('s_lshl_b32 s48, s3, 12'); A('s_add_u32 s50, s50, s48')
        A(f's_add_u32 s48, s48, {L_B - 8*4096}')
        self.kdma(56)
        A(f's_add_u32 s48, s48, {16384 - 1920}')
        A('s_mov_b32 m0, s48'); A('s_nop 0')
        for j in range(4):
            A(f'buffer_load_dwordx4 v1, s[60:63], s50 offen offset:{1024*j} nt lds')
            A('s_nop 0')
        self.lab(nb)
        self.stamp(2)
        nq = self.newlab('NQ')
        A(f's_cmp_lg_u32 s3, {self.o["qw"]}'); A(f's_cbranch_scc1 {nq}')
        self.q_gather(0)
        self.stamp(9)
        self.lab(nq)
        self.lds_wait(F_QA, 1)
        self.tag()
        self.read_q(L_QA)
        kw = self.newlab('KW')
        A('s_waitcnt vmcnt(8)')
        A('s_cmp_ge_u32 s3, 8'); A(f's_cbranch_scc1 {kw}')
        A('s_waitcnt vmcnt(0)')
        self.lab(kw)
        self.stamp(3)
        S = list(range(24, 32))
        self.qk(list(range(8)), 32, S)
        self.rowmax(S)
        self.post_max()
        self.stamp(4)
        nqb = self.newlab('NQB')
        A('s_cmp_lg_u32 s3, 9'); A(f's_cbranch_scc1 {nqb}')
        self.q_gather(1)
        self.lab(nqb)
        young = self.newlab('Y')
        self.round_chain(S, 32)
        A(f's_cmp_ge_u32 s3, {self.o["oldv"]}')
        A(f's_cbranch_scc1 {young}')
        self.v_issue()
        self.stamp(10)
        self.lab(young)
        self.softmax(S, 32, True)
        self.expand_p(32)
        A('v_lshrrev_b32 v57, 10, v11')
        for x in range(32, 48): A(f'v_mov_b32 v{x}, 0')
        A('s_lshr_b32 s52, s3, 2')
        old = self.newlab('O'); noch = self.newlab('NC')
        A(f's_cmp_lt_u32 s3, {self.o["oldv"]}')
        A(f's_cbranch_scc1 {old}')
        nsb = self.newlab('NSB')
        A('s_cmp_lt_u32 s3, 8'); A(f's_cbranch_scc1 {nsb}')
        A('s_waitcnt vmcnt(0)')
        self.lds_inc(C_B)
        self.lab(nsb)
        self.v_issue(True)
        self.stamp(10)
        self.lab(old)
        A('s_cmp_eq_u32 s52, 0'); A(f's_cbranch_scc1 {noch}')
        self.lds_wait(F_CH, 's52', areg=57)
        for q in range(4): A(f'ds_read_b128 v[{32+4*q}:{35+4*q}], v11 offset:{L_CH + 1024*q}')
        self.lab(noch)
        self.stamp(6)
        A('s_waitcnt lgkmcnt(0)')
        self.pv(True)
        self.stamp(7)
        A('s_nop 7')
        for q in range(4): A(f'ds_write_b128 v11, v[{32+4*q}:{35+4*q}] offset:{L_CH + 1024*q}')
        self.lds_inc(F_CH, areg=57)

    def ticket_req(self):
        self.A('s_mov_b32 s66, 1'); self.A('s_mov_b32 s67, 0')
        self.A('s_atomic_add_x2 s[66:67], s[28:29], s53 glc')
    def wait3(self, a, b, c):
        A = self.A
        d = self.newlab('WT')
        A(f's_waitcnt vmcnt({a})')
        A('s_cmp_eq_u32 s65, 0'); A(f's_cbranch_scc1 {d}')
        A(f's_waitcnt vmcnt({b})')
        A('s_cmp_eq_u32 s65, 1'); A(f's_cbranch_scc1 {d}')
        A(f's_waitcnt vmcnt({c})')
        self.lab(d)
    def kdma(self, srd, need=None):
        A = self.A
        for j, (imm, adj) in enumerate(((0, 896), (128, 128), (1024, 896), (1152, 0))):
            if need == j:
                A('s_mov_b64 exec, 1'); A(f'ds_max_u32 v4, v62 offset:{NEED}'); A('s_mov_b64 exec, -1')
            A('s_mov_b32 m0, s48'); A(f's_add_u32 s48, s48, {adj}')
            A(f'buffer_load_dwordx4 v2, s[{srd}:{srd+3}], s50 offen offset:{imm} nt lds')

    def task_dynamic(self):
        A = self.A
        ns = self.o['ns']; shl = self.o.get('shl', 4); ntick = (16 - ns) << shl
        A('s_setprio 1')
        A('s_sub_u32 s52, s3, 12')
        A(f's_mul_i32 s27, s52, {3*4096}'); A(f's_add_u32 s27, s27, {L_KD}')
        A('v_add_u32 v63, s27, v1')
        for x in range(32, 48): A(f'v_mov_b32 v{x}, 0')
        A('v_mov_b32 v12, 0xf149f2ca'); A('v_mov_b32 v14, 0')
        A('v_lshrrev_b32 v57, 10, v11')
        A('v_mov_b32 v56, 0xffffff00')
        self.vS(58)
        A('v_lshl_add_u32 v59, v57, 8, v1')
        A('v_lshlrev_b32 v61, 3, v10'); A('v_lshl_add_u32 v60, v57, 1, v61')
        A(f's_lshr_b32 s53, s2, {shl}'); A('s_lshl_b32 s53, s53, 8'); A(f's_add_u32 s53, s53, {WS_T}')
        A(f's_lshr_b32 s48, s23, {shl}'); A(f's_lshl_b32 s48, s48, {16 + shl}'); A('s_add_u32 s26, s26, s48')
        A('s_lshl_b32 s48, s52, 12'); A('s_add_u32 s26, s26, s48'); A('s_sub_u32 s26, s26, 16384')
        A('v_mov_b32 v62, 0')
        A('s_waitcnt lgkmcnt(0)')
        self.tag()
        ni = self.newlab('NI')
        A(f's_and_b32 s48, s2, {(1 << shl) - 1}'); A('s_or_b32 s48, s48, s52'); A(f's_cbranch_scc1 {ni}')
        A('v_mov_b32 v5, s55')
        A('s_mov_b64 exec, 1')
        A('s_setprio 3')
        A('buffer_store_dwordx2 v[4:5], v4, s[44:47], s53 offen sc1')
        A('s_setprio 1')
        A('s_mov_b64 exec, -1')
        self.lab(ni)
        np_ = self.newlab('NPI')
        A('s_xor_b32 s48, s52, 1'); A('s_or_b32 s48, s48, s23'); A(f's_cbranch_scc1 {np_}')
        A('v_mov_b32 v5, s55'); A('v_lshlrev_b32 v8, 10, v0')
        A('s_lshl_b32 s48, s22, 8'); A(f's_add_u32 s48, s48, {WS_P}')
        A('s_mov_b64 exec, 3')
        A('s_setprio 3')
        A('buffer_store_dwordx2 v[4:5], v8, s[44:47], s48 offen sc1')
        A('s_setprio 1')
        A('s_mov_b64 exec, -1')
        self.lab(np_)
        self.stamp(2)
        A(f's_mul_i32 s56, s52, {8*IB}'); A('s_add_u32 s56, s56, s6')
        A('s_mov_b32 s21, 0')
        A('s_mov_b32 s64, 0')
        A('s_mov_b32 s65, 0')
        self.lab('L_dl')
        for b in range(3):
            rt = self.newlab('RT'); ok = self.newlab('OK'); pr = self.newlab('PR'); ex = self.newlab('EX'); dr = self.newlab('DR'); nx = self.newlab('NX'); nf = self.newlab('NF')
            A('s_cmp_lg_u32 s65, 0'); A(f's_cbranch_scc1 {dr}')
            self.lds_wait(L_T, 1, sleep=1, areg=62)
            A('v_add_u32 v62, 4, v62')
            A('s_sub_u32 s49, s48, 1')
            A(f's_cmp_ge_u32 s49, {ntick}'); A(f's_cbranch_scc1 {ex}')
            A('s_lshl_b32 s50, s48, 14'); A('s_add_u32 s50, s50, s26')
            A(f's_add_u32 s48, s27, {4096*b}')
            self.kdma(32, self.o.get('need', 0))
            for j in range(4):
                r = 80 + 16 * b + 4 * j
                A(f'buffer_load_dwordx4 v[{r}:{r+3}], v1, s[36:39], s50 offen offset:{1024*j} nt')
                A('s_nop 0')
            A('s_add_u32 s64, s64, 1')
            A(f's_branch {pr}')
            self.lab(ex)
            A('s_getpc_b64 s[62:63]')
            A('s_branch L_exh')
            self.lab(dr)
            A('s_add_u32 s65, s65, 1')
            A('s_cmp_gt_u32 s65, 2'); A('s_cbranch_scc1 L_dfin')
            self.lab(pr)
            A('s_cmp_lt_u32 s21, 2'); A(f's_cbranch_scc1 {nx}')
            A(f's_cbranch_scc0 {nf}') if False else None
            A('s_cmp_lg_u32 s21, 2'); A(f's_cbranch_scc1 {nf}')
            self.lds_wait(F_QA, 1)
            self.read_q(L_QA)
            self.lab(nf)
            pb = (b + 1) % 3
            self.wait3(20, 12, 4)
            for n in range(4): A(f'ds_read_b128 v[{64+4*n}:{67+4*n}], v63 offset:{4096*pb + 1024*n}')
            A('s_waitcnt lgkmcnt(0)')
            self.qk([0, 1], 48, [24, 25])
            self.round_chain([24, 25], 26)
            A('v_max3_f32 v8, v24, v25, v12')
            self.ror_reduce('v_max_f32', [8], 8)
            self.xg_reduce('v_max_f32', [8], [9])
            A('v_sub_f32 v9, v12, v8'); A('v_sub_f32 v24, v24, v8'); A('v_sub_f32 v25, v25, v8')
            A('v_mul_f32 v9, 0x3fb8aa3b, v9'); A('v_mul_f32 v24, 0x3fb8aa3b, v24'); A('v_mul_f32 v25, 0x3fb8aa3b, v25')
            A('v_exp_f32 v9, v9'); A('v_exp_f32 v24, v24'); A('v_exp_f32 v25, v25')
            A('v_mov_b32 v12, v8')
            A('v_cvt_pk_bf16_f32 v26, v24, v25')
            A('v_fma_f32 v14, v14, v9, v24')
            A('v_add_f32 v14, v14, v25')
            A('v_mov_b32_dpp v27, v26 row_ror:8 row_mask:0xf bank_mask:0xf')
            for x in range(32, 48): A(f'v_mul_f32 v{x}, v{x}, v9')
            A('v_cndmask_b32 v28, 0, v26, s[14:15]'); A('v_cndmask_b32 v29, 0, v27, s[14:15]')
            A('v_cndmask_b32 v30, v27, 0, s[14:15]'); A('v_cndmask_b32 v31, v26, 0, s[14:15]')
            self.wait3(16, 8, 0)
            vb = 80 + 16 * pb
            for tt in range(8):
                i, h = tt >> 1, tt & 1
                sel = 's31' if h else 's30'
                A(f'v_perm_b32 v{64+2*tt}, v{vb+4+i}, v{vb+i}, {sel}')
                A(f'v_perm_b32 v{65+2*tt}, v{vb+12+i}, v{vb+8+i}, {sel}')
            for tt in range(8):
                d = 32 + 4 * (tt & 3); p = 28 if tt < 4 else 30
                A(f'v_mfma_f32_16x16x16_bf16 v[{d}:{d+3}], v[{64+2*tt}:{65+2*tt}], v[{p}:{p+1}], v[{d}:{d+3}]')
            self.lab(nx)
            A('s_add_u32 s21, s21, 1')
        A('s_branch L_dl')
        self.lab('L_exh')
        self.stamp(10)
        A('s_setprio 2')
        A(f'ds_write_b32 v57, v6 offset:{F_EX}')
        self.lds_wait(F_CH, ns // 4, areg=57)
        for q in range(4): A(f'ds_read_b128 v[{64+4*q}:{67+4*q}], v11 offset:{L_CH + 1024*q}')
        A(f'ds_read_b32 v8, v10 offset:{L_MA}')
        self.lds_wait(C_L, ns)
        A(f'ds_read_b32 v13, v10 offset:{L_LA}')
        A('v_cvt_pk_bf16_f32 v8, v8, v8'); A('v_and_b32 v8, s100, v8'); A('v_mul_f32 v8, s101, v8')
        A('v_cvt_pk_bf16_f32 v8, v8, v8'); A('v_and_b32 v8, s100, v8')
        A('v_max_f32 v7, v8, v12')
        A('v_sub_f32 v9, v12, v7'); A('v_sub_f32 v8, v8, v7')
        A('v_mul_f32 v9, 0x3fb8aa3b, v9'); A('v_mul_f32 v8, 0x3fb8aa3b, v8')
        A('v_exp_f32 v9, v9'); A('v_exp_f32 v8, v8')
        A('v_mov_b32 v12, v7')
        A('s_waitcnt lgkmcnt(0)')
        A('v_mul_f32 v13, 0x3d000000, v13')
        A('v_mul_f32 v14, v14, v9')
        A('v_fmac_f32 v14, v13, v8')
        for x in range(32, 48): A(f'v_mul_f32 v{x}, v{x}, v9')
        for x in range(32, 48): A(f'v_fmac_f32 v{x}, v{x+32}, v8')
        A('v_mov_b32 v7, 0x3fb8aa3b')
        A('s_add_u32 s62, s62, 4'); A('s_addc_u32 s63, s63, 0')
        A('s_setpc_b64 s[62:63]')
        self.lab('L_dfin')
        A('s_setprio 3')
        self.stamp(7)
        A('s_nop 0')
        for q in range(4): A(f'ds_write_b128 v11, v[{32+4*q}:{35+4*q}] offset:{L_CH + 1024*q}')
        A('v_add_f32_dpp v13, v14, v14 row_ror:8 row_mask:0xf bank_mask:0xf')
        self.xg_reduce('v_add_f32', [13], [9])
        A(f'ds_write_b64 v60, v[12:13] offset:{L_M4}')
        self.lds_inc(C_D)
        A('v_mov_b32 v13, s55'); A('v_mov_b32 v15, s55')
        A('s_mov_b32 s49, 0x40000')
        self.lab('L_mw')
        A(f'ds_read_b32 v5, v4 offset:{C_D}')
        A(f'ds_read_b128 v[16:19], v61 offset:{L_M4}')
        A(f'ds_read_b128 v[20:23], v61 offset:{L_M4+16}')
        for w in range(4): A(f'ds_read_b128 v[{64+4*w}:{67+4*w}], v59 offset:{L_CH + 4096*w}')
        A('s_waitcnt lgkmcnt(6)')
        A('v_readfirstlane_b32 s48, v5')
        A('s_cmp_ge_u32 s48, 4'); A('s_cbranch_scc1 L_mwd')
        A('s_sub_u32 s49, s49, 1')
        A('s_cbranch_scc0 L_mw')
        self.lab('L_mwd')
        A('s_waitcnt lgkmcnt(4)')
        A('v_max3_f32 v12, v16, v18, v20'); A('v_max_f32 v12, v12, v22')
        A('v_mul_f32 v8, 0x3fb8aa3b, v12')
        for w in range(4): A(f'v_fma_f32 v{16+2*w}, v{16+2*w}, v7, -v8')
        for w in range(4): A(f'v_exp_f32 v{16+2*w}, v{16+2*w}')
        A('s_waitcnt lgkmcnt(0)')
        for e in range(4): A(f'v_mul_f32 v{32+e}, v{64+e}, v16')
        for w in range(1, 4):
            for e in range(4): A(f'v_fmac_f32 v{32+e}, v{64+4*w+e}, v{16+2*w}')
        self.embed(range(32, 36))
        self.stamp(5)
        A('buffer_store_dwordx4 v[32:35], v58, s[44:47], s56 offen sc1')
        A('s_cmp_lg_u32 s3, 12'); A('s_cbranch_scc1 L_noml')
        A('v_mul_f32 v14, v17, v16')
        for w in range(1, 4): A(f'v_fmac_f32 v14, v{17+2*w}, v{16+2*w}')
        A('s_mov_b64 exec, 0xffffffff')
        A('buffer_store_dwordx4 v[12:15], v58, s[44:47], s5 offen sc1')
        A('s_mov_b64 exec, -1')
        self.hint(0)
        self.lab('L_noml')
        self.lds_inc(C_O)
        self.stamp(8)
        if self.stamps:
            A('s_mul_i32 s70, s64, 100'); A('s_add_u32 s70, s70, s68'); A('s_mov_b32 s71, s69')
        A('s_branch L_fin')

    def hint(self, br):
        A = self.A
        A('s_lshl_b32 s48, s22, 8'); A(f's_add_u32 s48, s48, {WS_P + br * 1024}')
        A('s_mov_b32 s49, 1')
        A('s_atomic_add s49, s[28:29], s48')

    def task_b(self):
        A = self.A
        A(f'v_add_u32 v13, {L_B}, v1')
        self.lds_wait(C_B, 4)
        for n in range(16): A(f'ds_read_b128 v[{64+4*n}:{67+4*n}], v13 offset:{1024*n}')
        self.lds_wait(F_QB, 1)
        self.read_q(L_QB)
        S = list(range(24, 32))
        self.qk(list(range(8)), 32, S)
        self.rowmax(S)
        self.v_from_lds(13, 16384, range(4))
        self.round_chain(S, 32)
        self.softmax(S, 32, False)
        self.expand_p(32)
        A('v_mov_b32 v56, 0xffffff00')
        self.vS(58)
        self.op_offsets(1)
        for x in range(32, 48): A(f'v_mov_b32 v{x}, 0')
        A('s_waitcnt lgkmcnt(0)')
        self.pv(False)
        A('s_setprio 3')
        A('s_nop 6')
        self.embed(range(32, 48))
        for q in range(4):
            A(f'buffer_store_dwordx4 v[{32+4*q}:{35+4*q}], v58, s[44:47], s{56+q} offen sc1')
        self.hint(1)

    def proj_result(self):
        A = self.A
        for tt in (0, 4, 1, 5, 2, 6, 3, 7):
            A(f'v_mfma_f32_16x16x32_bf16 v[{24+4*tt}:{27+4*tt}], v[16:19], v[{96+4*tt}:{99+4*tt}], 0')
        A('s_nop 1')
        for k in range(4):
            d0 = 24 + 4 * k; d4 = 24 + 4 * (k + 4)
            A(f'v_cndmask_b32 v{d0+2}, v{d4+1}, v{d0}, s[14:15]')
            A(f'v_cndmask_b32 v{d0+3}, v{d0+1}, v{d4}, s[14:15]')
        A('s_mov_b64 exec, 0xffff')
        for k in range(4):
            d0 = 24 + 4 * k
            A(f'v_add_f32_dpp v{20+k}, v{d0+3}, v{d0+2} row_ror:8 row_mask:0xf bank_mask:0xf')

    def build(self):
        A = self.A; o = self.o
        L = self.L
        L.append(HEADER.rstrip())
        L.append(f'; @launch grid=(256,1,1) block=(1024,1,1) lds={LDS_BYTES}')
        L.append('.amdgcn_target "amdgcn-amd-amdhsa--gfx950"')
        L.append('.text')
        L.append(f'.globl {NAME}_kernel')
        L.append('.p2align 8')
        L.append(f'.type {NAME}_kernel,@function')
        L.append(f'{NAME}_kernel:')
        A('s_cmp_ge_u32 s2, 256')
        A('s_cbranch_scc1 L_end')
        A('s_load_dwordx16 s[4:19], s[0:1], 0')
        A('s_load_dwordx8 s[20:27], s[0:1], 64')
        A('s_load_dwordx2 s[28:29], s[0:1], 96')
        if self.stamps:
            for i in range(70, 96): A(f's_mov_b32 s{i}, 0')
        self.stamp(0)
        A('v_lshrrev_b32 v5, 6, v0')
        A('v_mov_b32 v4, 0')
        A('v_readfirstlane_b32 s3, v5')
        A('v_and_b32 v0, 63, v0')
        A('v_lshrrev_b32 v8, 4, v0')
        A('v_and_b32 v7, 7, v0')
        A('v_lshlrev_b32 v10, 2, v7')
        A('v_and_b32 v12, 8, v0')
        A('v_lshlrev_b32 v14, 15, v12'); A('v_lshl_add_u32 v14, v8, 16, v14'); A('v_lshl_add_u32 v14, v10, 2, v14')
        A('v_and_b32 v2, 1, v0'); A('v_lshlrev_b32 v15, 6, v2'); A('v_lshl_add_u32 v15, v8, 4, v15')
        A('s_and_b32 s49, s2, 1'); A('s_lshl_b32 s49, s49, 9'); A('s_lshl_b32 s48, s3, 6'); A('s_add_u32 s49, s49, s48')
        A('s_bfe_u32 s52, s2, 0x60001')
        A('s_lshl_b32 s48, s49, 13'); A('s_lshl_b32 s50, s52, 7'); A('s_add_u32 s48, s48, s50')
        A('s_lshl_b32 s49, s49, 1'); A('v_add_u32 v15, s49, v15')
        A('s_mov_b32 s42, 0x800000'); A('s_mov_b32 s43, 0x20000')
        A('s_setprio 2')
        A('s_cmp_lt_u32 s2, 128')
        A('s_waitcnt lgkmcnt(0)')
        A('s_cselect_b32 s40, s10, s20'); A('s_cselect_b32 s41, s11, s21')
        A('s_cselect_b32 s66, s4, s14');  A('s_cselect_b32 s67, s5, s15')
        A('s_cselect_b32 s10, s12, s22'); A('s_cselect_b32 s11, s13, s23')
        A('s_cmp_ge_u32 s3, 8')
        A('s_cbranch_scc1 L_nowq')
        for j in range(8):
            A(f'buffer_load_dwordx4 v[{64+4*j}:{67+4*j}], v14, s[40:43], s48 offen nt')
            if j < 7: A('s_add_u32 s48, s48, 8192')
        A('global_load_dwordx4 v[16:19], v15, s[66:67]')
        self.lab('L_nowq')
        if o.get('early'): self.stamp(13)
        A('v_mov_b32 v6, 1')
        A('v_lshlrev_b32 v1, 4, v0')
        A('v_and_b32 v57, 3, v5')
        A('v_lshl_add_u32 v11, v57, 12, v1')
        A('v_and_b32 v9, 15, v0')
        A('v_lshrrev_b32 v13, 2, v9')
        A('v_lshlrev_b32 v2, 4, v2')
        A('v_lshl_add_u32 v2, v13, 8, v2')
        A('v_lshl_add_u32 v2, v8, 5, v2')
        A('v_and_b32 v13, 2, v0')
        A('v_lshl_add_u32 v2, v13, 10, v2')
        A(f'v_mul_u32_u24 v3, {QSTR}, v7')
        A('v_lshl_add_u32 v3, v8, 5, v3')
        A('v_lshl_add_u32 v3, v12, 1, v3')
        A('s_mov_b32 s30, 0x05040100')
        A('s_mov_b32 s31, 0x07060302')
        A('s_mov_b32 s100, 0xffff0000')
        A('s_mov_b32 s101, 0x3db504f3')
        A('s_mov_b32 s32, s6');  A('s_mov_b32 s33, s7');  A('s_mov_b32 s34, 0x4000000'); A('s_mov_b32 s35, 0x20000')
        A('s_mov_b32 s36, s8');  A('s_mov_b32 s37, s9');  A('s_mov_b32 s38, 0x4000000'); A('s_mov_b32 s39, 0x20000')
        A('s_mov_b32 s44, s28'); A('s_mov_b32 s45, s29'); A(f's_mov_b32 s46, {WS_BYTES}'); A('s_mov_b32 s47, 0x20000')
        A('s_lshr_b32 s20, s2, 7')
        A('s_and_b32 s4, s2, 7'); A('s_bfe_u32 s7, s2, 0x30004'); A('s_lshl_b32 s7, s7, 3'); A('s_add_u32 s4, s4, s7')
        A('s_bfe_u32 s7, s2, 0x10003')
        A('s_lshr_b32 s22, s2, 6')
        A('s_and_b32 s23, s2, 63')
        A('s_mov_b32 s14, 0x00ff00ff'); A('s_mov_b32 s15, 0x00ff00ff')
        A('s_lshl_b32 s48, s23, 7')
        A(f's_mul_i32 s6, s22, {32*IB}'); A('s_add_u32 s6, s6, s48'); A(f's_add_u32 s6, s6, {WS_I1}')
        A(f's_mul_i32 s5, s22, {4*IB}'); A('s_add_u32 s5, s5, s48'); A(f's_add_u32 s5, s5, {WS_ML}')
        A('s_lshl_b32 s96, s22, 24')
        A('s_lshr_b32 s48, s3, 2'); A('s_add_u32 s48, s48, s22'); A('s_and_b32 s48, s48, 3'); A('s_lshl_b32 s48, s48, 22'); A('s_add_u32 s96, s96, s48')
        A('s_mov_b32 s26, s96')
        A('s_lshl_b32 s48, s23, 16'); A('s_add_u32 s96, s96, s48')
        A('s_and_b32 s48, s3, 3'); A('s_lshl_b32 s48, s48, 12'); A('s_add_u32 s96, s96, s48')
        A('s_add_u32 s97, s96, 16384'); A('s_add_u32 s98, s96, 32768'); A('s_add_u32 s99, s96, 49152')
        A('s_cmp_ge_u32 s3, 8')
        A('s_cbranch_scc1 L_young0')
        A('s_load_dword s54, s[28:29], 0')
        A('s_lshr_b32 s56, s2, 5'); A(f's_mul_i32 s56, s56, {4*IB}'); A('s_and_b32 s48, s2, 1'); A('s_lshl_b32 s48, s48, 12'); A('s_add_u32 s56, s56, s48')
        A('s_and_b32 s48, s52, 15'); A('s_lshl_b32 s48, s48, 8'); A('s_add_u32 s56, s56, s48'); A(f's_add_u32 s56, s56, {WS_Q}')
        A(f'v_mul_u32_u24 v60, {IB}, v8'); A('v_lshl_add_u32 v60, v9, 4, v60')
        A('v_lshlrev_b32 v7, 3, v10'); A('v_lshl_add_u32 v7, v12, 1, v7')
        A('s_lshl_b32 s48, s3, 8'); A('v_add_u32 v7, s48, v7')
        A('v_mov_b32 v56, 0xffffff00')
        A('s_barrier')
        if o.get('early'):
            self.stamp(8); A('s_waitcnt vmcnt(8)'); self.stamp(9)
        A('s_waitcnt vmcnt(0)')
        if o.get('early'): self.stamp(12); A('s_branch L_fin')
        for tt in range(8): self.perm_tile(64, tt, 96 + 4 * tt)
        A('s_nop 1')
        self.proj_result()
        A(f'ds_write_b128 v7, v[20:23] offset:{L_QS}')
        A('s_mov_b64 exec, -1')
        self.lds_inc_rtn(C_Q)
        self.stamp(1)
        self.tag()
        A('s_cmp_lg_u32 s48, 7')
        A('s_cbranch_scc1 L_task')
        A('s_setprio 3')
        for k in range(2): A(f'ds_read_b128 v[{32+4*k}:{35+4*k}], v1 offset:{L_QS + 1024*k}')
        A('s_waitcnt lgkmcnt(0)')
        for e in range(4): A(f'v_add_f32 v{32+e}, v{32+e}, v{36+e}')
        self.xg_reduce('v_add_f32', [32, 33, 34, 35], [36, 37, 38, 39])
        self.embed(range(32, 36))
        A('buffer_store_dwordx4 v[32:35], v60, s[44:47], s56 offen sc1')
        A('s_setprio 2')
        A('s_branch L_task')
        self.lab('L_young0')
        A('v_mov_b32 v5, 0xff800000')
        A('v_cmp_gt_u32 vcc, 16, v0')
        A('v_lshlrev_b32 v7, 2, v0')
        A('s_nop 0')
        A('v_cndmask_b32 v5, v4, v5, vcc')
        A(f'ds_write_b32 v7, v5 offset:{L_MISC}')
        A('s_lshl_b32 s48, s3, 8'); A('v_add_u32 v9, s48, v7')
        A(f'ds_write_b32 v9, v4 offset:{L_T - 2048}')
        A('s_waitcnt lgkmcnt(0)')
        A('s_barrier')
        A('s_load_dword s54, s[28:29], 0')
        if o.get('early'): self.stamp(8); A('s_branch L_fin')
        A('s_cmp_ge_u32 s3, 12')
        A('s_cbranch_scc1 L_dyn')
        if o['ns'] == 8:
            A('s_waitcnt lgkmcnt(0)'); self.tag(); A('s_branch L_c')
        self.lab('L_task')
        self.task_static()
        A('s_cmp_ge_u32 s3, 8')
        A('s_cbranch_scc1 L_c')
        A('s_cmp_lg_u32 s3, 0'); A('s_cbranch_scc1 L_nd')
        shl = o['shl']; ntick = (16 - o['ns']) << shl
        A(f's_lshr_b32 s53, s2, {shl}'); A('s_lshl_b32 s53, s53, 8'); A(f's_add_u32 s53, s53, {WS_T}')
        A('s_mov_b32 s52, 0'); A('s_mov_b32 s50, 0')
        A('s_setprio 3')
        self.lds_wait(F_GO, 1, sleep=2)
        self.lab('L_deal')
        A('s_mov_b32 s51, 0x8000')
        self.lab('L_drt')
        self.ticket_req()
        A('s_waitcnt lgkmcnt(0)')
        A('s_cmp_eq_u32 s67, s55'); A('s_cbranch_scc1 L_dok')
        A('s_sub_u32 s51, s51, 1'); A('s_cbranch_scc0 L_drt')
        A('s_mov_b32 s66, 0x10000')
        self.lab('L_dok')
        A('s_add_u32 s66, s66, 1')
        A('v_mov_b32 v8, s66'); A('v_mov_b32 v9, s52')
        A(f'ds_write_b32 v9, v8 offset:{L_T}')
        A(f's_cmp_gt_u32 s66, {ntick}'); A('s_cbranch_scc1 L_ddone')
        A('s_add_u32 s52, s52, 4')
        kap = o.get('kap', -1)
        S = 1 << shl
        if kap >= 0:
            A('s_sub_u32 s56, s66, s50')
            A('s_lshr_b32 s57, s66, 2'); A(f's_add_u32 s57, s57, {S}')
            A('s_cmp_eq_u32 s50, 0')
            A('s_cselect_b32 s56, s57, s56')
            A('s_mov_b32 s50, s66')
            A(f's_mul_i32 s57, s56, {kap + 2}'); A('s_lshr_b32 s57, s57, 1'); A('s_add_u32 s57, s57, s66')
            A(f's_cmp_le_u32 s56, {S + o.get("dm", 0)}'); A('s_cselect_b32 s57, 0, s57')
            A(f's_cmp_le_u32 s66, {S + 1}'); A('s_cselect_b32 s57, 0, s57')
            A('s_mov_b32 s66, 0x10000')
            A(f's_cmp_gt_u32 s57, {ntick + (kap * S) // 2}'); A('s_cbranch_scc1 L_dok')
        self.lds_wait(NEED, 's52', sleep=0)
        A('s_branch L_deal')
        self.lab('L_ddone')
        A('s_setprio 2')
        self.lab('L_nd')
        A('s_cmp_lg_u32 s3, 1'); A('s_cbranch_scc1 L_wo')
        self.task_b()
        A('s_setprio 2')
        A('v_lshrrev_b32 v57, 10, v11')
        self.stamp(9)
        self.lab('L_wo')
        A('s_mov_b32 s40, s10'); A('s_mov_b32 s41, s11')
        A('s_lshr_b32 s50, s4, 4'); A('s_lshl_b32 s50, s50, 10')
        A('s_and_b32 s51, s4, 3'); A('s_lshl_b32 s51, s51, 5'); A('s_add_u32 s50, s50, s51')
        A('s_bfe_u32 s51, s4, 0x20002'); A('s_add_u32 s50, s50, s51')
        A('s_lshl_b32 s50, s50, 11'); A('s_lshl_b32 s51, s7, 10'); A('s_add_u32 s50, s50, s51'); A('s_lshl_b32 s51, s3, 7'); A('s_add_u32 s50, s50, s51')
        A('v_lshrrev_b32 v8, 4, v0')
        A('v_lshlrev_b32 v58, 19, v8'); A('v_lshl_add_u32 v58, v10, 2, v58'); A('v_and_b32 v5, 8, v0'); A('v_lshl_add_u32 v58, v5, 10, v58')
        A('v_mov_b32 v56, 0xffffff00'); A('v_mov_b32 v61, v5')
        ge = self.newlab('GE')
        if o['woe']:
            A(f's_cmp_lt_u32 s3, {o["woe"]}'); A(f's_cbranch_scc1 {ge}')
        self.lds_wait(F_EX, 1, sleep=2, areg=57)
        A('s_setprio 0')
        self.lab(ge)
        for j in range(8):
            A(f'buffer_load_dwordx4 v[{64+4*j}:{67+4*j}], v58, s[40:43], s50 offen nt')
            if j < 7: A(f's_add_u32 s50, s50, {16384 if j != 3 else (128 - 24) * 2048}')
        self.stamp(11)
        A('s_setprio 2')
        self.lds_inc(C_W)
        A('v_and_b32 v60, 1, v0'); A('v_lshlrev_b32 v60, 6, v60'); A('v_lshl_add_u32 v60, v8, 4, v60')
        A('v_bfe_u32 v59, v0, 2, 1'); A(f'v_mul_u32_u24 v59, {IB}, v59')
        A('v_and_b32 v7, 3, v0'); A('v_lshl_add_u32 v59, v7, 5, v59'); A('v_lshl_add_u32 v59, v61, 1, v59')
        A('s_lshl_b32 s53, s20, 5'); A('s_lshl_b32 s48, s7, 4'); A('s_add_u32 s53, s53, s48'); A('s_lshl_b32 s48, s3, 1'); A('s_add_u32 s53, s53, s48')
        A(f's_mul_i32 s53, s53, {IB}'); A('s_lshl_b32 s48, s4, 7'); A('s_add_u32 s53, s53, s48'); A(f's_add_u32 s53, s53, {WS_I2}')
        A('s_waitcnt vmcnt(0)')
        A('s_mov_b64 exec, 1'); A(f'ds_add_u32 v4, v6 offset:{C_W}'); A(f'ds_add_u32 v4, v6 offset:{F_X3}'); A('s_mov_b64 exec, -1')
        for tt in range(8): self.perm_tile(64, tt, 96 + 4 * tt)
        self.stamp(12)
        if o.get('notail'): A('s_branch L_fin')
        if o.get('pt', 0) & 1:
            A('s_lshl_b32 s48, s4, 7'); A('s_sub_u32 s48, s53, s48'); A('s_add_u32 s48, s48, 8192')
            A('s_mov_b64 exec, 0x11')
            A('buffer_load_dword v62, v59, s[44:47], s48 offen')
            A('s_mov_b64 exec, -1')
        A('s_mov_b32 s49, 0x40000')
        self.lab('L_ow')
        A(f'ds_read_b32 v5, v4 offset:{F_O}')
        A(f'ds_read_b128 v[16:19], v60 offset:{L_O}')
        A('s_waitcnt lgkmcnt(0)')
        A('v_readfirstlane_b32 s48, v5')
        A('s_cmp_ge_u32 s48, 2'); A('s_cbranch_scc1 L_owd')
        A('s_sub_u32 s49, s49, 1')
        A('s_cbranch_scc0 L_ow')
        self.lab('L_owd')
        self.proj_result()
        self.embed(range(20, 24))
        A('buffer_store_dwordx4 v[20:23], v59, s[44:47], s53 offen sc1')
        A('s_mov_b64 exec, -1')
        if o.get('rs', 2) == 3:
            A('s_waitcnt vmcnt(0)')
            self.lds_inc(C_W)
        self.stamp(13)
        A('s_branch L_fin')
        self.lab('L_dyn')
        self.task_dynamic()
        self.lab('L_c')
        A('s_cmp_eq_u32 s3, 11')
        A('s_cbranch_scc1 L_red')
        A('s_cmp_lg_u32 s3, 8')
        A('s_cbranch_scc1 L_comb')
        if o.get('notail') or not o.get('hint', 0): A('s_branch L_fin')
        A('s_lshr_b32 s40, s4, 4'); A('s_lshl_b32 s41, s20, 2'); A('s_add_u32 s40, s40, s41'); A('s_lshl_b32 s40, s40, 8'); A(f's_add_u32 s40, s40, {WS_P}')
        A('v_mov_b32 v13, 16'); A('s_mov_b32 s50, 0x8000')
        A('s_cmp_lg_u32 s20, 0'); A('s_cbranch_scc1 L_hp')
        self.lds_wait(C_O, 4, sleep=2)
        self.lab('L_hp')
        A('s_load_dwordx2 s[56:57], s[28:29], s40 glc')
        A(f'ds_read_b32 v5, v4 offset:{C_W}')
        A('s_waitcnt lgkmcnt(0)')
        A('v_readfirstlane_b32 s48, v5')
        A('s_cmp_ge_u32 s48, 16'); A('s_cbranch_scc1 L_fin')
        A('s_cmp_lg_u32 s57, s55'); A('s_cbranch_scc1 L_fin')
        A(f's_cmp_ge_u32 s56, {o.get("hn", 64)}'); A('s_cbranch_scc1 L_hok')
        A(f's_sleep {o.get("hs", 4)}')
        A('s_sub_u32 s50, s50, 1')
        A('s_cbranch_scc0 L_hp')
        self.lab('L_hok')
        A('s_mov_b64 exec, 1')
        A(f'ds_add_u32 v4, v13 offset:{C_W}')
        A('s_mov_b64 exec, -1')
        self.stamp(9)
        A('s_branch L_fin')
        self.lab('L_comb')
        if o.get('notail'): A('s_branch L_fin')
        A('s_lshr_b32 s40, s4, 4'); A('s_lshl_b32 s41, s20, 2'); A('s_add_u32 s40, s40, s41')
        A('s_lshl_b32 s41, s40, 2'); A('s_and_b32 s42, s2, 3'); A('s_add_u32 s41, s41, s42'); A(f's_mul_i32 s41, s41, {IB}'); A(f's_add_u32 s41, s41, {WS_ML}')
        A('s_lshl_b32 s40, s40, 5'); A('s_and_b32 s42, s4, 15'); A('s_lshl_b32 s42, s42, 1'); A('s_add_u32 s40, s40, s42')
        A('s_and_b32 s42, s3, 1'); A('s_add_u32 s40, s40, s42'); A(f's_mul_i32 s40, s40, {IB}'); A(f's_add_u32 s40, s40, {WS_I1}')
        A('s_lshl_b32 s42, s42, 6'); A('v_lshlrev_b32 v12, 3, v0'); A('v_add_u32 v12, s42, v12')
        A('s_add_u32 s42, s41, 4096'); A('s_add_u32 s43, s40, 4096')
        A('v_mov_b32 v15, 0xff'); A('v_mov_b32 v14, 0x3fb8aa3b')
        self.lds_wait(C_W, o.get('cw', 16), sleep=1)
        pass
        self.stamp(11)
        M = [96 + 4 * k for k in range(8)]
        self.mgather([(96, 's41', 's42', True), (64, 's40', 's43', False)])
        self.stamp(12)
        A(f'v_max3_f32 v32, v{M[0]}, v{M[1]}, v{M[2]}'); A(f'v_max3_f32 v33, v{M[3]}, v{M[4]}, v{M[5]}'); A(f'v_max3_f32 v32, v32, v{M[6]}, v{M[7]}'); A('v_max_f32 v32, v32, v33')
        self.ror_reduce('v_max_f32', [32], 8)
        self.xg_reduce('v_max_f32', [32], [33])
        A('v_mul_f32 v32, 0x3fb8aa3b, v32')
        for k in range(8): A(f'v_fma_f32 v{16+k}, v{M[k]}, v14, -v32')
        for k in range(8): A(f'v_exp_f32 v{16+k}, v{16+k}')
        A(f'v_mul_f32 v36, v16, v{M[0]+2}')
        for k in range(1, 8): A(f'v_fmac_f32 v36, v{16+k}, v{M[k]+2}')
        for e in range(4): A(f'v_mul_f32 v{32+e}, v16, v{64+e}')
        for k in range(1, 8):
            for e in range(4): A(f'v_fmac_f32 v{32+e}, v{16+k}, v{64+4*k+e}')
        self.ror_reduce('v_add_f32', [36, 32, 33, 34, 35], 8)
        self.xg_reduce('v_add_f32', [36, 32, 33, 34, 35], [41, 37, 38, 39, 40])
        A('v_rcp_f32 v37, v36')
        A('s_nop 0')
        A('v_fma_f32 v38, -v36, v37, 1.0')
        A('v_fma_f32 v37, v38, v37, v37')
        for e in range(4): A(f'v_mul_f32 v{32+e}, v{32+e}, v37')
        A('v_cvt_pk_bf16_f32 v32, v32, v33'); A('v_cvt_pk_bf16_f32 v33, v34, v35')
        A('s_mov_b64 exec, 0xff')
        A(f'ds_write_b64 v12, v[32:33] offset:{L_O}')
        A('s_mov_b64 exec, 1')
        A(f'ds_add_u32 v4, v6 offset:{F_O}')
        A('s_mov_b64 exec, -1')
        self.stamp(13)
        A('s_branch L_fin')
        self.lab('L_red')
        if o.get('notail'):
            A('s_cmp_lg_u32 s2, 0'); A('s_cbranch_scc1 L_fin')
            self.lds_wait(C_O, 4)
            A('v_mov_b32 v13, s55'); A('s_mov_b64 exec, 1'); A('global_store_dword v4, v13, s[28:29]'); A('s_mov_b64 exec, -1')
            A('s_branch L_fin')
        A('s_bfe_u32 s40, s2, 0x20003'); A('s_cmp_lg_u32 s40, 0')
        A('s_cbranch_scc1 L_fin')
        A('s_lshr_b32 s40, s2, 5'); A('s_lshl_b32 s40, s40, 3'); A('s_and_b32 s41, s2, 7'); A('s_add_u32 s40, s40, s41')
        A('s_lshl_b32 s42, s40, 6'); A('v_lshlrev_b32 v12, 3, v0'); A('v_add_u32 v12, s42, v12')
        A(f's_mul_i32 s40, s40, {IB}'); A(f's_add_u32 s40, s40, {WS_I2}')
        A('v_mov_b32 v13, s55'); A('v_mov_b32 v15, 0xff'); A('s_add_u32 s43, s40, 4096')
        rs = o.get('rs', 2)
        if rs == 0: self.lds_wait(F_O, 2, sleep=2)
        elif rs == 1: self.lds_wait(C_W, 16, sleep=2)
        elif rs == 2:
            self.lds_wait(C_O, 4, sleep=2)
            for k in range(8): A(f'buffer_load_dwordx4 v[{64+4*k}:{67+4*k}], v1, s[44:47], {"s40" if k < 4 else "s43"} offen offset:{1024*(k&3)} sc1')
            A('s_waitcnt vmcnt(0)')
            self.lds_wait(F_X3, 8, sleep=1)
            if o.get('pt', 0) & 2:
                A('s_mov_b64 exec, 1'); A('global_load_dword v62, v12, s[24:25]'); A('s_mov_b64 exec, -1')
            self.lds_wait(F_O, 2, sleep=1)
        elif rs == 3:
            self.lds_wait(C_W, 24, sleep=1)
        self.stamp(11)
        self.mgather([(64, 's40', 's43', False)])
        self.stamp(12)
        for k in range(4):
            for e in (0, 2): A(f'v_pk_add_f32 v[{40+4*k+e}:{41+4*k+e}], v[{64+4*k+e}:{65+4*k+e}], v[{80+4*k+e}:{81+4*k+e}]')
        for k in range(2):
            for e in (0, 2): A(f'v_pk_add_f32 v[{40+4*k+e}:{41+4*k+e}], v[{40+4*k+e}:{41+4*k+e}], v[{48+4*k+e}:{49+4*k+e}]')
        for e in (0, 2): A(f'v_pk_add_f32 v[{40+e}:{41+e}], v[{40+e}:{41+e}], v[{44+e}:{45+e}]')
        self.ror_reduce('v_add_f32', [40, 41, 42, 43], 8)
        self.xg_reduce('v_add_f32', [40, 41, 42, 43], [36, 37, 38, 39])
        A('v_cvt_pk_bf16_f32 v32, v40, v41'); A('v_cvt_pk_bf16_f32 v33, v42, v43')
        A('s_mov_b64 exec, 0xff')
        A('global_store_dwordx2 v12, v[32:33], s[24:25]')
        A('s_cmp_lg_u32 s2, 0')
        A('s_cbranch_scc1 L_nogen')
        A('s_mov_b64 exec, 1')
        A('global_store_dword v4, v13, s[28:29]')
        self.lab('L_nogen')
        A('s_mov_b64 exec, -1')
        self.stamp(13)
        if o.get('dbgt'):
            A('s_load_dwordx2 s[60:61], s[0:1], 88')
            A('s_waitcnt lgkmcnt(0)')
            A('s_sub_u32 s48, s94, s68'); A('v_mov_b32 v20, s48')
            A('s_lshr_b32 s48, s2, 5'); A('s_lshl_b32 s48, s48, 1'); A('s_and_b32 s49, s2, 7'); A('s_cmp_ge_u32 s49, 2'); A('s_cbranch_scc1 L_end')
            A('s_add_u32 s48, s48, s49'); A('s_lshl_b32 s48, s48, 2'); A('v_mov_b32 v7, s48')
            A('s_mov_b64 exec, 1')
            A('global_store_dword v7, v20, s[60:61]')
            A('s_branch L_end')
        if not o.get('lite'): self.lab('L_fin')
        if self.stamps:
            A('s_waitcnt vmcnt(0) lgkmcnt(0)')
            A('s_getreg_b32 s48, hwreg(HW_REG_XCC_ID)')
            A('s_getreg_b32 s49, hwreg(HW_REG_HW_ID)')
            for i in range(28): A(f'v_writelane_b32 v20, s{68+i}, {i}')
            A('v_writelane_b32 v20, s48, 28')
            A('v_writelane_b32 v20, s49, 29')
            A('s_lshl_b32 s48, s2, 4'); A('s_add_u32 s48, s48, s3'); A('s_lshl_b32 s48, s48, 7'); A(f's_add_u32 s48, s48, {STAMP_OFF}')
            A('v_lshlrev_b32 v7, 2, v0'); A('v_add_u32 v7, s48, v7')
            A('s_mov_b64 exec, 0xffffffff')
            A('global_store_dword v7, v20, s[28:29]')
        if o.get('lite'): self.lab('L_fin')
        self.lab('L_end')
        A('s_endpgm')
        L.append('.section .rodata,"a"')
        L.append('.p2align 6')
        L.append(f'.amdhsa_kernel {NAME}_kernel')
        L.append('  .amdhsa_next_free_vgpr 128')
        L.append('  .amdhsa_next_free_sgpr 102')
        L.append('  .amdhsa_accum_offset 128')
        L.append('  .amdhsa_group_segment_fixed_size 0')
        L.append('  .amdhsa_kernarg_size 104')
        L.append('  .amdhsa_user_sgpr_count 2')
        L.append('  .amdhsa_user_sgpr_kernarg_segment_ptr 1')
        L.append('  .amdhsa_system_sgpr_workgroup_id_x 1')
        L.append('.end_amdhsa_kernel')
        return '\n'.join(L) + '\n'

if __name__ == '__main__':
    out = sys.argv[1]
    stamps = 'stamps' in sys.argv[2:]
    opts = {}
    for a in sys.argv[2:]:
        if '=' in a:
            k, v = a.split('='); opts[k] = int(v)
    open(out, 'w').write(Gen(stamps, opts).build())
```

```python
import sys
NAME = 'concat_heads__gqa_block_cached__sliding_block_cached__decode'

HEADER = open('cdna_kernels/' + NAME + '.s.ref').read().split('; Override launch')[0]

IB = 8448
WS_T = 0x1000
WS_P = 0x3000
WS_Q = 0x4000
WS_ML = 0x50000
WS_I1 = 0xA0000
WS_I2 = 0x2C0000
WS_BYTES = 0x400000
STAMP_OFF = 0x10000000
L_CH, L_QS, L_QA, L_QB, L_MISC = 0, 16384, 20480, 22784, 25088
QSTR = 272
L_MA, L_LA = L_MISC, L_MISC + 64
L_C = L_MISC + 128
C_Q, C_M, C_O, C_L, F_QA, F_QB, F_O, C_B, C_D, C_W, F_X2, F_X3, F_CH = [L_C + 4 * i for i in range(13)]
F_GO = L_C + 80
F_EX = L_C + 64
L_O = L_MISC + 256
L_M4 = L_MISC + 384
L_T = L_MISC + 1024
NEED = F_X2
L_B = L_T + 2048
L_KD = L_B + 32768
LDS_BYTES = L_KD + 4 * 3 * 4096

class Gen:
    def __init__(self, stamps=False, opts=None):
        self.L = []
        self.stamps = stamps
        self.nlab = 0
        self.o = dict(qw=4, oldv=8, ns=12, woe=0, shl=5)
        if opts: self.o.update(opts)
    def A(self, s):
        dr = self.o.get('drop', 0)
        if s.startswith('buffer_store'):
            if 'v58' in s and self.o.get('inB') and dr & 1: return
            if 'v58' in s and not self.o.get('inB') and dr & 2: return
            if 'v[12:15]' in s and dr & 4: return
            if 'v60' in s and dr & 8: return
        if s: self.L.append('    ' + s)
    def lab(self, s): self.L.append(s + ':')
    def newlab(self, p='L'):
        self.nlab += 1
        return f'{p}_{self.nlab}'
    def stamp(self, i):
        if self.o.get('lite') and i not in (0, 13): return
        if self.stamps: self.A(f's_memrealtime s[{68+2*i}:{69+2*i}]')

    def lds_wait(self, addr, val, sleep=1, areg=4):
        A = self.A
        l = self.newlab('W'); d = self.newlab('D')
        A('s_mov_b32 s49, 0x40000')
        self.lab(l)
        A(f'ds_read_b32 v5, v{areg} offset:{addr}')
        A('s_waitcnt lgkmcnt(0)')
        A('v_readfirstlane_b32 s48, v5')
        A(f's_cmp_ge_u32 s48, {val}')
        A(f's_cbranch_scc1 {d}')
        if sleep: A(f's_sleep {sleep}')
        A('s_sub_u32 s49, s49, 1')
        A(f's_cbranch_scc0 {l}')
        self.lab(d)
    def lds_inc(self, addr, areg=4):
        A = self.A
        A('s_mov_b64 exec, 1')
        A(f'ds_add_u32 v{areg}, v6 offset:{addr}')
        A('s_mov_b64 exec, -1')
    def lds_inc_rtn(self, addr):
        A = self.A
        A('s_mov_b64 exec, 1')
        A(f'ds_add_rtn_u32 v5, v4, v6 offset:{addr}')
        A('s_mov_b64 exec, -1')
        A('s_waitcnt lgkmcnt(0)')
        A('v_readfirstlane_b32 s48, v5')
    def tag(self):
        A = self.A
        A('s_and_b32 s55, s54, 0x7f7f7f7f'); A('s_add_u32 s55, s55, 0x35172b4d'); A('s_and_b32 s8, s54, 0x80808080'); A('s_xor_b32 s55, s55, s8')
        A('s_and_b32 s8, s55, 0xff'); A('s_bfe_u32 s9, s55, 0x80008'); A('s_bfe_u32 s12, s55, 0x80010'); A('s_lshr_b32 s13, s55, 24')
    TB = ['s8', 's9', 's12', 's13']
    def embed(self, regs):
        for r in regs: self.A(f'v_and_or_b32 v{r}, v{r}, v56, {self.TB[r & 3]}')

    def perm_tile(self, src, tt, dst):
        i, h = tt >> 1, tt & 1
        sel = 's31' if h else 's30'
        for jp in range(4):
            self.A(f'v_perm_b32 v{dst+jp}, v{src+4*(2*jp+1)+i}, v{src+4*(2*jp)+i}, {sel}')

    def xg_reduce(self, op, regs, tmps):
        A = self.A
        for sw in ('v_permlane16_swap_b32', 'v_permlane32_swap_b32'):
            for r, t in zip(regs, tmps): A(f'v_mov_b32 v{t}, v{r}')
            A('s_nop 1')
            for r, t in zip(regs, tmps): A(f'{sw} v{r}, v{t}')
            A('s_nop 1')
            for r, t in zip(regs, tmps): A(f'{op} v{r}, v{r}, v{t}')
    def ror_reduce(self, op, regs, n):
        A = self.A
        A('s_nop 1')
        for r in regs: A(f'{op}_dpp v{r}, v{r}, v{r} row_ror:{n} row_mask:0xf bank_mask:0xf')

    def gather(self, dst, sbase, N, tagged):
        A = self.A
        l = self.newlab('G'); d = self.newlab('GD')
        A('s_setprio 3')
        A(f's_add_u32 s51, {sbase}, 4096')
        A('s_mov_b32 s49, 0x8000')
        self.lab(l)
        for k in range(N):
            r = dst + 4 * k
            A(f'buffer_load_dwordx4 v[{r}:{r+3}], v1, s[44:47], {sbase if k < 4 else "s51"} offen offset:{1024*(k&3)} sc1')
        for k in range(N):
            r = dst + 4 * k
            A(f's_waitcnt vmcnt({N-1-k})')
            if tagged:
                if k == 0:
                    A(f'v_min_u32 v5, v{r+1}, v{r+3}'); A(f'v_max_u32 v7, v{r+1}, v{r+3}')
                else:
                    A(f'v_min3_u32 v5, v5, v{r+1}, v{r+3}'); A(f'v_max3_u32 v7, v7, v{r+1}, v{r+3}')
            else:
                if k == 0:
                    A(f'v_xor_b32 v5, s8, v{r}'); A(f'v_xor_b32 v7, s9, v{r+1}')
                else:
                    A(f'v_bitop3_b32 v5, s8, v5, v{r} bitop3:0xde'); A(f'v_bitop3_b32 v7, s9, v7, v{r+1} bitop3:0xde')
                A(f'v_bitop3_b32 v5, s12, v5, v{r+2} bitop3:0xde'); A(f'v_bitop3_b32 v7, s13, v7, v{r+3} bitop3:0xde')
        if tagged:
            A('v_cmp_ne_u32 vcc, s55, v5')
            A('v_cmp_ne_u32 s[66:67], s55, v7')
            A('s_or_b64 s[66:67], s[66:67], vcc')
            A(f's_cbranch_scc0 {d}')
        else:
            A('v_or_b32 v5, v5, v7')
            A('v_and_b32 v5, 0xff, v5')
            A('v_cmp_ne_u32 vcc, 0, v5')
            A(f's_cbranch_vccz {d}')
        A('s_sub_u32 s49, s49, 1')
        A(f's_cbranch_scc0 {l}')
        self.lab(d)

    MK = [50, 52, 56, 58, 60, 62, 64, 66]
    def mgather(self, sets):
        A = self.A
        l = self.newlab('MG'); d = self.newlab('MGD')
        A('s_setprio 3')
        for k in range(8):
            for dst, lo, hi, tg in sets:
                A(f'buffer_load_dwordx4 v[{dst+4*k}:{dst+4*k+3}], v1, s[44:47], {lo if k < 4 else hi} offen offset:{1024*(k&3)} sc1')
        def check(k):
            first = True
            for dst, lo, hi, tg in sets:
                r = dst + 4 * k
                if tg:
                    A(f'v_xor_b32 v7, s55, v{r+1}'); A(f'v_bitop3_b32 v7, s55, v7, v{r+3} bitop3:0xde')
                else:
                    A(f'v_xor_b32 v5, s8, v{r}'); A(f'v_bitop3_b32 v5, s9, v5, v{r+1} bitop3:0xde')
                    A(f'v_bitop3_b32 v5, s12, v5, v{r+2} bitop3:0xde'); A(f'v_bitop3_b32 v5, s13, v5, v{r+3} bitop3:0xde')
            if len(sets) == 2: A('v_and_or_b32 v5, v5, v15, v7')
            else: A('v_and_b32 v5, v5, v15')
            m = self.MK[k]
            A(f'v_cmp_ne_u32 s[{m}:{m+1}], 0, v5')
        n = len(sets)
        for k in range(8):
            A(f's_waitcnt vmcnt({(7-k)*n})')
            check(k)
        A('s_mov_b32 s49, 0x40000')
        self.lab(l)
        A('s_or_b64 vcc, s[50:51], s[52:53]')
        for k in range(2, 8): A(f's_or_b64 vcc, vcc, s[{self.MK[k]}:{self.MK[k]+1}]')
        A(f's_cbranch_scc0 {d}')
        for k in range(8):
            sk = self.newlab('MS'); m = self.MK[k]
            A(f's_mov_b64 exec, s[{m}:{m+1}]')
            A(f's_cbranch_execz {sk}')
            for dst, lo, hi, tg in sets:
                A(f'buffer_load_dwordx4 v[{dst+4*k}:{dst+4*k+3}], v1, s[44:47], {lo if k < 4 else hi} offen offset:{1024*(k&3)} sc1')
            self.lab(sk)
        A('s_mov_b64 exec, -1')
        A(f's_waitcnt vmcnt({self.o.get("pp", 0)})')
        for k in range(8):
            sk = self.newlab('MC'); m = self.MK[k]
            A(f's_cmp_eq_u64 s[{m}:{m+1}], 0')
            A(f's_cbranch_scc1 {sk}')
            check(k)
            self.lab(sk)
        A('s_sub_u32 s49, s49, 1')
        A(f's_cbranch_scc0 {l}')
        self.lab(d)

    def q_gather(self, br):
        A = self.A
        if self.o.get('drop', 0) & 8 or (br and self.o.get('drop', 0) & 16):
            A(f'ds_write_b32 v4, v6 offset:{F_QB if br else F_QA}')
            return
        A('v_lshrrev_b32 v8, 5, v0'); A('v_and_b32 v5, 31, v0')
        A(f'v_mul_u32_u24 v8, {QSTR}, v8'); A('v_lshl_add_u32 v8, v5, 3, v8')
        A('s_lshl_b32 s52, s22, 2'); A('s_and_b32 s51, s2, 3'); A('s_add_u32 s52, s52, s51')
        A(f's_mul_i32 s52, s52, {IB}'); A(f's_add_u32 s52, s52, {WS_Q + br * 16 * IB}')
        self.gather(32, 's52', 8, False)
        for k in range(4):
            r = 32 + 4 * k
            for e in range(4): A(f'v_add_f32 v{r+e}, v{r+e}, v{r+16+e}')
            A(f'v_cvt_pk_bf16_f32 v{r}, v{r}, v{r+1}'); A(f'v_cvt_pk_bf16_f32 v{r+1}, v{r+2}, v{r+3}')
            A(f'ds_write_b64 v8, v[{r}:{r+1}] offset:{(L_QB if br else L_QA) + 2*QSTR*k}')
        A(f'ds_write_b32 v4, v6 offset:{F_QB if br else F_QA}')
        A('s_setprio 2')

    def k_quarter(self, i, soff):
        for nn in range(2):
            for hf in range(2):
                r = 64 + 16 * i + 8 * nn + 4 * hf
                self.A(f'buffer_load_dwordx4 v[{r}:{r+3}], v2, s[32:35], {soff} offen offset:{1024*nn+128*hf} nt')
                self.A('s_nop 0')
    def v_issue(self, sig=False):
        self.A('s_setprio 1')
        for i in range(4):
            if sig and i == self.o.get('go', 2):
                sk = self.newlab('GO')
                self.A('s_cmp_lt_u32 s3, 8'); self.A(f's_cbranch_scc1 {sk}')
                self.A(f'ds_write_b32 v4, v6 offset:{F_GO}')
                self.lab(sk)
            for T in range(2):
                for nn in range(2):
                    r = 64 + 32 * T + 4 * (2 * i + nn)
                    self.A(f'buffer_load_dwordx4 v[{r}:{r+3}], v1, s[36:39], s{96+i} offen offset:{2048*T+1024*nn} nt')
                    self.A('s_nop 0')
        self.A('s_setprio 2')
    def v_from_lds(self, areg, base, quarters):
        for i in quarters:
            for T in range(2):
                for nn in range(2):
                    r = 64 + 32 * T + 4 * (2 * (i & 3) + nn)
                    self.A(f'ds_read_b128 v[{r}:{r+3}], v{areg} offset:{base + 4096*i + 2048*T + 1024*nn}')
    def vS(self, reg):
        A = self.A
        A(f'v_lshrrev_b32 v{reg}, 3, v0'); A(f'v_mul_u32_u24 v{reg}, {IB}, v{reg}'); A(f'v_lshl_add_u32 v{reg}, v10, 2, v{reg}')
    def ml_store(self, br):
        A = self.A
        A('s_setprio 3')
        A('v_mov_b32 v13, s55'); A('v_mov_b32 v15, s55')
        self.vS(7)
        if br: A(f's_add_u32 s5, s5, {16*IB}')
        A('s_mov_b64 exec, 0xffffffff')
        A(f'buffer_store_dwordx4 v[12:15], v7, s[44:47], s5 offen sc1')
        A('s_mov_b64 exec, -1')
        A('s_setprio 2')
    def op_offsets(self, br):
        for q in range(4): self.A(f's_add_u32 s{56+q}, s6, {br * 128 * IB + 8 * q * IB}')
    def read_q(self, LQ):
        for hf in range(2):
            self.A(f'ds_read_b128 v[{16+4*hf}:{19+4*hf}], v3 offset:{LQ + 128*hf}')
        self.A('s_waitcnt lgkmcnt(0)')
    def qk(self, blocks, D0, R):
        A = self.A
        N = len(blocks)
        for hf in range(2):
            for i, n in enumerate(blocks):
                r = 64 + 8 * n + 4 * hf; d = D0 + 4 * i
                c = '0' if hf == 0 else f'v[{d}:{d+3}]'
                A(f'v_mfma_f32_16x16x32_bf16 v[{d}:{d+3}], v[{r}:{r+3}], v[{16+4*hf}:{19+4*hf}], {c}')
        A(f's_nop {max(0, 8 - N)}')
        for i in range(N):
            d = D0 + 4 * i
            A(f'v_cndmask_b32 v{d}, v{d+3}, v{d}, s[14:15]')
            A(f'v_cndmask_b32 v{d+1}, v{d+1}, v{d+2}, s[14:15]')
        if N < 3: A('s_nop 1')
        for i in range(N):
            d = D0 + 4 * i
            A(f'v_add_f32_dpp v{R[i]}, v{d+1}, v{d} row_ror:8 row_mask:0xf bank_mask:0xf')
    def rowmax(self, S):
        A = self.A
        A(f'v_max3_f32 v8, v{S[0]}, v{S[1]}, v{S[2]}')
        for k in range(3, len(S) - 1, 2): A(f'v_max3_f32 v8, v8, v{S[k]}, v{S[k+1]}')
        A(f'v_max_f32 v8, v8, v{S[-1]}')
        self.ror_reduce('v_max_f32', [8], 8)
        self.xg_reduce('v_max_f32', [8], [9])
    def post_max(self):
        A = self.A
        A('s_mov_b64 exec, 0xff')
        A(f'ds_max_f32 v10, v8 offset:{L_MA}')
        A('s_mov_b64 exec, 1')
        A(f'ds_add_u32 v4, v6 offset:{C_M}')
        A('s_mov_b64 exec, -1')
    def round_chain(self, S, T):
        A = self.A
        n = len(S) // 2
        for rep in range(2):
            for k in range(n): A(f'v_cvt_pk_bf16_f32 v{T+k}, v{S[2*k]}, v{S[2*k+1]}')
            for k in range(n):
                A(f'v_lshlrev_b32 v{S[2*k]}, 16, v{T+k}')
                A(f'v_and_b32 v{S[2*k+1]}, s100, v{T+k}')
            if rep == 0:
                for x in S: A(f'v_mul_f32 v{x}, s101, v{x}')
    def softmax(self, S, PK, shared):
        A = self.A
        if shared:
            self.lds_wait(C_M, self.o['ns'])
            self.stamp(5)
            A(f'ds_read_b32 v8, v10 offset:{L_MA}')
            A('s_waitcnt lgkmcnt(0)')
        A('v_cvt_pk_bf16_f32 v8, v8, v8')
        A('v_and_b32 v8, s100, v8')
        A('v_mul_f32 v8, s101, v8')
        A('v_cvt_pk_bf16_f32 v8, v8, v8')
        A('v_and_b32 v12, s100, v8')
        for x in S: A(f'v_sub_f32 v{x}, v{x}, v12')
        for x in S: A(f'v_mul_f32 v{x}, 0x3fb8aa3b, v{x}')
        for x in S: A(f'v_exp_f32 v{x}, v{x}')
        A('s_nop 0')
        n = len(S) // 2
        for k in range(n): A(f'v_cvt_pk_bf16_f32 v{PK+k}, v{S[2*k]}, v{S[2*k+1]}')
        A(f'v_add_f32 v14, v{S[0]}, v{S[1]}'); A(f'v_add_f32 v9, v{S[2]}, v{S[3]}')
        for k in range(4, len(S), 2):
            A(f'v_add_f32 v14, v14, v{S[k]}'); A(f'v_add_f32 v9, v9, v{S[k+1]}')
        A('v_add_f32 v14, v14, v9')
        self.ror_reduce('v_add_f32', [14], 8)
        self.xg_reduce('v_add_f32', [14], [9])
        if shared:
            A('s_mov_b64 exec, 0xff')
            A(f'ds_add_f32 v10, v14 offset:{L_LA}')
            A('s_mov_b64 exec, 1')
            A(f'ds_add_u32 v4, v6 offset:{C_L}')
            A('s_mov_b64 exec, -1')
        else:
            self.ml_store(1)
    def expand_p(self, PK):
        A = self.A
        for k in range(4): A(f'v_cndmask_b32 v{16+k}, 0, v{PK+k}, s[14:15]')
        for k in range(4): A(f'v_cndmask_b32 v{28+k}, v{PK+k}, 0, s[14:15]')
        for k in range(4): A(f'v_mov_b32_dpp v{24+k}, v{16+k} row_ror:8 row_mask:0xf bank_mask:0xf')
        for k in range(4): A(f'v_mov_b32_dpp v{20+k}, v{28+k} row_ror:8 row_mask:0xf bank_mask:0xf')
    def pv(self, vm):
        A = self.A
        tq = [48, 52]
        for T in range(2):
            if vm: A(f's_waitcnt vmcnt({2 if T == 0 else 0})')
            src = 64 + 32 * T
            self.perm_tile(src, 0, tq[0])
            for tt in range(8):
                if tt < 7: self.perm_tile(src, tt + 1, tq[(tt + 1) & 1])
                else: A('s_nop 1')
                q = tq[tt & 1]
                d = 32 + 4 * (tt & 3)
                p = (16 if tt < 4 else 24) + 4 * T
                A(f'v_mfma_f32_16x16x32_bf16 v[{d}:{d+3}], v[{q}:{q+3}], v[{p}:{p+3}], v[{d}:{d+3}]')
    def task_static(self):
        A = self.A
        for i in range(4): self.k_quarter(i, f's{96+i}')
        nb = self.newlab('NB')
        A('s_cmp_lt_u32 s3, 8'); A(f's_cbranch_scc1 {nb}')
        A('s_mov_b32 s56, s16'); A('s_mov_b32 s57, s17'); A('s_mov_b32 s58, 0x4000000'); A('s_mov_b32 s59, 0x20000')
        A('s_mov_b32 s60, s18'); A('s_mov_b32 s61, s19'); A('s_mov_b32 s62, 0x4000000'); A('s_mov_b32 s63, 0x20000')
        A('s_lshl_b32 s50, s22, 24'); A('s_lshl_b32 s48, s23, 14'); A('s_add_u32 s50, s50, s48'); A(f's_add_u32 s50, s50, {61440*256 - 8*4096}')
        A('s_lshl_b32 s48, s3, 12'); A('s_add_u32 s50, s50, s48')
        A(f's_add_u32 s48, s48, {L_B - 8*4096}')
        self.kdma(56)
        A(f's_add_u32 s48, s48, {16384 - 1920}')
        A('s_mov_b32 m0, s48'); A('s_nop 0')
        for j in range(4):
            A(f'buffer_load_dwordx4 v1, s[60:63], s50 offen offset:{1024*j} nt lds')
            A('s_nop 0')
        self.lab(nb)
        self.stamp(2)
        nq = self.newlab('NQ')
        A(f's_cmp_lg_u32 s3, {self.o["qw"]}'); A(f's_cbranch_scc1 {nq}')
        self.q_gather(0)
        self.stamp(9)
        self.lab(nq)
        self.lds_wait(F_QA, 1)
        self.tag()
        self.read_q(L_QA)
        kw = self.newlab('KW')
        A('s_waitcnt vmcnt(8)')
        A('s_cmp_ge_u32 s3, 8'); A(f's_cbranch_scc1 {kw}')
        A('s_waitcnt vmcnt(0)')
        self.lab(kw)
        self.stamp(3)
        S = list(range(24, 32))
        self.qk(list(range(8)), 32, S)
        self.rowmax(S)
        self.post_max()
        self.stamp(4)
        nqb = self.newlab('NQB')
        A('s_cmp_lg_u32 s3, 9'); A(f's_cbranch_scc1 {nqb}')
        self.q_gather(1)
        self.lab(nqb)
        young = self.newlab('Y')
        self.round_chain(S, 32)
        A(f's_cmp_ge_u32 s3, {self.o["oldv"]}')
        A(f's_cbranch_scc1 {young}')
        self.v_issue()
        self.stamp(10)
        self.lab(young)
        self.softmax(S, 32, True)
        self.expand_p(32)
        A('v_lshrrev_b32 v57, 10, v11')
        for x in range(32, 48): A(f'v_mov_b32 v{x}, 0')
        A('s_lshr_b32 s52, s3, 2')
        old = self.newlab('O'); noch = self.newlab('NC')
        A(f's_cmp_lt_u32 s3, {self.o["oldv"]}')
        A(f's_cbranch_scc1 {old}')
        nsb = self.newlab('NSB')
        A('s_cmp_lt_u32 s3, 8'); A(f's_cbranch_scc1 {nsb}')
        A('s_waitcnt vmcnt(0)')
        self.lds_inc(C_B)
        self.lab(nsb)
        self.v_issue(True)
        self.stamp(10)
        self.lab(old)
        A('s_cmp_eq_u32 s52, 0'); A(f's_cbranch_scc1 {noch}')
        self.lds_wait(F_CH, 's52', areg=57)
        for q in range(4): A(f'ds_read_b128 v[{32+4*q}:{35+4*q}], v11 offset:{L_CH + 1024*q}')
        self.lab(noch)
        self.stamp(6)
        A('s_waitcnt lgkmcnt(0)')
        self.pv(True)
        self.stamp(7)
        A('s_nop 7')
        for q in range(4): A(f'ds_write_b128 v11, v[{32+4*q}:{35+4*q}] offset:{L_CH + 1024*q}')
        self.lds_inc(F_CH, areg=57)

    def ticket_req(self):
        self.A('s_mov_b32 s66, 1'); self.A('s_mov_b32 s67, 0')
        self.A('s_atomic_add_x2 s[66:67], s[28:29], s53 glc')
    def wait3(self, a, b, c):
        A = self.A
        d = self.newlab('WT')
        A(f's_waitcnt vmcnt({a})')
        A('s_cmp_eq_u32 s65, 0'); A(f's_cbranch_scc1 {d}')
        A(f's_waitcnt vmcnt({b})')
        A('s_cmp_eq_u32 s65, 1'); A(f's_cbranch_scc1 {d}')
        A(f's_waitcnt vmcnt({c})')
        self.lab(d)
    def kdma(self, srd, need=None):
        A = self.A
        for j, (imm, adj) in enumerate(((0, 896), (128, 128), (1024, 896), (1152, 0))):
            if need == j:
                A('s_mov_b64 exec, 1'); A(f'ds_max_u32 v4, v62 offset:{NEED}'); A('s_mov_b64 exec, -1')
            A('s_mov_b32 m0, s48'); A(f's_add_u32 s48, s48, {adj}')
            A(f'buffer_load_dwordx4 v2, s[{srd}:{srd+3}], s50 offen offset:{imm} nt lds')

    def task_dynamic(self):
        A = self.A
        ns = self.o['ns']; shl = self.o.get('shl', 4); ntick = (16 - ns) << shl
        A('s_setprio 1')
        A('s_sub_u32 s52, s3, 12')
        A(f's_mul_i32 s27, s52, {3*4096}'); A(f's_add_u32 s27, s27, {L_KD}')
        A('v_add_u32 v63, s27, v1')
        for x in range(32, 48): A(f'v_mov_b32 v{x}, 0')
        A('v_mov_b32 v12, 0xf149f2ca'); A('v_mov_b32 v14, 0')
        A('v_lshrrev_b32 v57, 10, v11')
        A('v_mov_b32 v56, 0xffffff00')
        self.vS(58)
        A('v_lshl_add_u32 v59, v57, 8, v1')
        A('v_lshlrev_b32 v61, 3, v10'); A('v_lshl_add_u32 v60, v57, 1, v61')
        A(f's_lshr_b32 s53, s2, {shl}'); A('s_lshl_b32 s53, s53, 8'); A(f's_add_u32 s53, s53, {WS_T}')
        A(f's_lshr_b32 s48, s23, {shl}'); A(f's_lshl_b32 s48, s48, {16 + shl}'); A('s_add_u32 s26, s26, s48')
        A('s_lshl_b32 s48, s52, 12'); A('s_add_u32 s26, s26, s48'); A('s_sub_u32 s26, s26, 16384')
        A('v_mov_b32 v62, 0')
        A('s_waitcnt lgkmcnt(0)')
        self.tag()
        ni = self.newlab('NI')
        A(f's_and_b32 s48, s2, {(1 << shl) - 1}'); A('s_or_b32 s48, s48, s52'); A(f's_cbranch_scc1 {ni}')
        A('v_mov_b32 v5, s55')
        A('s_mov_b64 exec, 1')
        A('s_setprio 3')
        A('buffer_store_dwordx2 v[4:5], v4, s[44:47], s53 offen sc1')
        A('s_setprio 1')
        A('s_mov_b64 exec, -1')
        self.lab(ni)
        np_ = self.newlab('NPI')
        A('s_xor_b32 s48, s52, 1'); A('s_or_b32 s48, s48, s23'); A(f's_cbranch_scc1 {np_}')
        A('v_mov_b32 v5, s55'); A('v_lshlrev_b32 v8, 10, v0')
        A('s_lshl_b32 s48, s22, 8'); A(f's_add_u32 s48, s48, {WS_P}')
        A('s_mov_b64 exec, 3')
        A('s_setprio 3')
        A('buffer_store_dwordx2 v[4:5], v8, s[44:47], s48 offen sc1')
        A('s_setprio 1')
        A('s_mov_b64 exec, -1')
        self.lab(np_)
        self.stamp(2)
        A(f's_mul_i32 s56, s52, {8*IB}'); A('s_add_u32 s56, s56, s6')
        A('s_mov_b32 s21, 0')
        A('s_mov_b32 s64, 0')
        A('s_mov_b32 s65, 0')
        self.lab('L_dl')
        for b in range(3):
            rt = self.newlab('RT'); ok = self.newlab('OK'); pr = self.newlab('PR'); ex = self.newlab('EX'); dr = self.newlab('DR'); nx = self.newlab('NX'); nf = self.newlab('NF')
            A('s_cmp_lg_u32 s65, 0'); A(f's_cbranch_scc1 {dr}')
            self.lds_wait(L_T, 1, sleep=1, areg=62)
            A('v_add_u32 v62, 4, v62')
            A('s_sub_u32 s49, s48, 1')
            A(f's_cmp_ge_u32 s49, {ntick}'); A(f's_cbranch_scc1 {ex}')
            A('s_lshl_b32 s50, s48, 14'); A('s_add_u32 s50, s50, s26')
            A(f's_add_u32 s48, s27, {4096*b}')
            self.kdma(32, self.o.get('need', 0))
            for j in range(4):
                r = 80 + 16 * b + 4 * j
                A(f'buffer_load_dwordx4 v[{r}:{r+3}], v1, s[36:39], s50 offen offset:{1024*j} nt')
                A('s_nop 0')
            A('s_add_u32 s64, s64, 1')
            A(f's_branch {pr}')
            self.lab(ex)
            A('s_getpc_b64 s[62:63]')
            A('s_branch L_exh')
            self.lab(dr)
            A('s_add_u32 s65, s65, 1')
            A('s_cmp_gt_u32 s65, 2'); A('s_cbranch_scc1 L_dfin')
            self.lab(pr)
            A('s_cmp_lt_u32 s21, 2'); A(f's_cbranch_scc1 {nx}')
            A(f's_cbranch_scc0 {nf}') if False else None
            A('s_cmp_lg_u32 s21, 2'); A(f's_cbranch_scc1 {nf}')
            self.lds_wait(F_QA, 1)
            self.read_q(L_QA)
            self.lab(nf)
            pb = (b + 1) % 3
            self.wait3(20, 12, 4)
            for n in range(4): A(f'ds_read_b128 v[{64+4*n}:{67+4*n}], v63 offset:{4096*pb + 1024*n}')
            A('s_waitcnt lgkmcnt(0)')
            self.qk([0, 1], 48, [24, 25])
            self.round_chain([24, 25], 26)
            A('v_max3_f32 v8, v24, v25, v12')
            self.ror_reduce('v_max_f32', [8], 8)
            self.xg_reduce('v_max_f32', [8], [9])
            A('v_sub_f32 v9, v12, v8'); A('v_sub_f32 v24, v24, v8'); A('v_sub_f32 v25, v25, v8')
            A('v_mul_f32 v9, 0x3fb8aa3b, v9'); A('v_mul_f32 v24, 0x3fb8aa3b, v24'); A('v_mul_f32 v25, 0x3fb8aa3b, v25')
            A('v_exp_f32 v9, v9'); A('v_exp_f32 v24, v24'); A('v_exp_f32 v25, v25')
            A('v_mov_b32 v12, v8')
            A('v_cvt_pk_bf16_f32 v26, v24, v25')
            A('v_fma_f32 v14, v14, v9, v24')
            A('v_add_f32 v14, v14, v25')
            A('v_mov_b32_dpp v27, v26 row_ror:8 row_mask:0xf bank_mask:0xf')
            for x in range(32, 48): A(f'v_mul_f32 v{x}, v{x}, v9')
            A('v_cndmask_b32 v28, 0, v26, s[14:15]'); A('v_cndmask_b32 v29, 0, v27, s[14:15]')
            A('v_cndmask_b32 v30, v27, 0, s[14:15]'); A('v_cndmask_b32 v31, v26, 0, s[14:15]')
            self.wait3(16, 8, 0)
            vb = 80 + 16 * pb
            for tt in range(8):
                i, h = tt >> 1, tt & 1
                sel = 's31' if h else 's30'
                A(f'v_perm_b32 v{64+2*tt}, v{vb+4+i}, v{vb+i}, {sel}')
                A(f'v_perm_b32 v{65+2*tt}, v{vb+12+i}, v{vb+8+i}, {sel}')
            for tt in range(8):
                d = 32 + 4 * (tt & 3); p = 28 if tt < 4 else 30
                A(f'v_mfma_f32_16x16x16_bf16 v[{d}:{d+3}], v[{64+2*tt}:{65+2*tt}], v[{p}:{p+1}], v[{d}:{d+3}]')
            self.lab(nx)
            A('s_add_u32 s21, s21, 1')
        A('s_branch L_dl')
        self.lab('L_exh')
        self.stamp(10)
        A('s_setprio 2')
        A(f'ds_write_b32 v57, v6 offset:{F_EX}')
        self.lds_wait(F_CH, ns // 4, areg=57)
        for q in range(4): A(f'ds_read_b128 v[{64+4*q}:{67+4*q}], v11 offset:{L_CH + 1024*q}')
        A(f'ds_read_b32 v8, v10 offset:{L_MA}')
        self.lds_wait(C_L, ns)
        A(f'ds_read_b32 v13, v10 offset:{L_LA}')
        A('v_cvt_pk_bf16_f32 v8, v8, v8'); A('v_and_b32 v8, s100, v8'); A('v_mul_f32 v8, s101, v8')
        A('v_cvt_pk_bf16_f32 v8, v8, v8'); A('v_and_b32 v8, s100, v8')
        A('v_max_f32 v7, v8, v12')
        A('v_sub_f32 v9, v12, v7'); A('v_sub_f32 v8, v8, v7')
        A('v_mul_f32 v9, 0x3fb8aa3b, v9'); A('v_mul_f32 v8, 0x3fb8aa3b, v8')
        A('v_exp_f32 v9, v9'); A('v_exp_f32 v8, v8')
        A('v_mov_b32 v12, v7')
        A('s_waitcnt lgkmcnt(0)')
        A('v_mul_f32 v13, 0x3d000000, v13')
        A('v_mul_f32 v14, v14, v9')
        A('v_fmac_f32 v14, v13, v8')
        for x in range(32, 48): A(f'v_mul_f32 v{x}, v{x}, v9')
        for x in range(32, 48): A(f'v_fmac_f32 v{x}, v{x+32}, v8')
        A('v_mov_b32 v7, 0x3fb8aa3b')
        A('s_add_u32 s62, s62, 4'); A('s_addc_u32 s63, s63, 0')
        A('s_setpc_b64 s[62:63]')
        self.lab('L_dfin')
        A('s_setprio 3')
        self.stamp(7)
        A('s_nop 0')
        for q in range(4): A(f'ds_write_b128 v11, v[{32+4*q}:{35+4*q}] offset:{L_CH + 1024*q}')
        A('v_add_f32_dpp v13, v14, v14 row_ror:8 row_mask:0xf bank_mask:0xf')
        self.xg_reduce('v_add_f32', [13], [9])
        A(f'ds_write_b64 v60, v[12:13] offset:{L_M4}')
        self.lds_inc(C_D)
        A('v_mov_b32 v13, s55'); A('v_mov_b32 v15, s55')
        A('s_mov_b32 s49, 0x40000')
        self.lab('L_mw')
        A(f'ds_read_b32 v5, v4 offset:{C_D}')
        A(f'ds_read_b128 v[16:19], v61 offset:{L_M4}')
        A(f'ds_read_b128 v[20:23], v61 offset:{L_M4+16}')
        for w in range(4): A(f'ds_read_b128 v[{64+4*w}:{67+4*w}], v59 offset:{L_CH + 4096*w}')
        A('s_waitcnt lgkmcnt(6)')
        A('v_readfirstlane_b32 s48, v5')
        A('s_cmp_ge_u32 s48, 4'); A('s_cbranch_scc1 L_mwd')
        A('s_sub_u32 s49, s49, 1')
        A('s_cbranch_scc0 L_mw')
        self.lab('L_mwd')
        A('s_waitcnt lgkmcnt(4)')
        A('v_max3_f32 v12, v16, v18, v20'); A('v_max_f32 v12, v12, v22')
        A('v_mul_f32 v8, 0x3fb8aa3b, v12')
        for w in range(4): A(f'v_fma_f32 v{16+2*w}, v{16+2*w}, v7, -v8')
        for w in range(4): A(f'v_exp_f32 v{16+2*w}, v{16+2*w}')
        A('s_waitcnt lgkmcnt(0)')
        for e in range(4): A(f'v_mul_f32 v{32+e}, v{64+e}, v16')
        for w in range(1, 4):
            for e in range(4): A(f'v_fmac_f32 v{32+e}, v{64+4*w+e}, v{16+2*w}')
        self.embed(range(32, 36))
        self.stamp(5)
        A('buffer_store_dwordx4 v[32:35], v58, s[44:47], s56 offen sc1')
        A('s_cmp_lg_u32 s3, 12'); A('s_cbranch_scc1 L_noml')
        A('v_mul_f32 v14, v17, v16')
        for w in range(1, 4): A(f'v_fmac_f32 v14, v{17+2*w}, v{16+2*w}')
        A('s_mov_b64 exec, 0xffffffff')
        A('buffer_store_dwordx4 v[12:15], v58, s[44:47], s5 offen sc1')
        A('s_mov_b64 exec, -1')
        self.hint(0)
        self.lab('L_noml')
        self.lds_inc(C_O)
        self.stamp(8)
        if self.stamps:
            A('s_mul_i32 s70, s64, 100'); A('s_add_u32 s70, s70, s68'); A('s_mov_b32 s71, s69')
        A('s_branch L_fin')

    def hint(self, br):
        A = self.A
        A('s_lshl_b32 s48, s22, 8'); A(f's_add_u32 s48, s48, {WS_P + br * 1024}')
        A('s_mov_b32 s49, 1')
        A('s_atomic_add s49, s[28:29], s48')

    def task_b(self):
        A = self.A
        A(f'v_add_u32 v13, {L_B}, v1')
        self.lds_wait(C_B, 4)
        for n in range(16): A(f'ds_read_b128 v[{64+4*n}:{67+4*n}], v13 offset:{1024*n}')
        self.lds_wait(F_QB, 1)
        self.read_q(L_QB)
        S = list(range(24, 32))
        self.qk(list(range(8)), 32, S)
        self.rowmax(S)
        self.v_from_lds(13, 16384, range(4))
        self.round_chain(S, 32)
        self.softmax(S, 32, False)
        self.expand_p(32)
        A('v_mov_b32 v56, 0xffffff00')
        self.vS(58)
        self.op_offsets(1)
        for x in range(32, 48): A(f'v_mov_b32 v{x}, 0')
        A('s_waitcnt lgkmcnt(0)')
        self.pv(False)
        A('s_setprio 3')
        A('s_nop 6')
        self.embed(range(32, 48))
        for q in range(4):
            A(f'buffer_store_dwordx4 v[{32+4*q}:{35+4*q}], v58, s[44:47], s{56+q} offen sc1')
        self.hint(1)

    def proj_result(self):
        A = self.A
        for tt in (0, 4, 1, 5, 2, 6, 3, 7):
            A(f'v_mfma_f32_16x16x32_bf16 v[{24+4*tt}:{27+4*tt}], v[16:19], v[{96+4*tt}:{99+4*tt}], 0')
        A('s_nop 1')
        for k in range(4):
            d0 = 24 + 4 * k; d4 = 24 + 4 * (k + 4)
            A(f'v_cndmask_b32 v{d0+2}, v{d4+1}, v{d0}, s[14:15]')
            A(f'v_cndmask_b32 v{d0+3}, v{d0+1}, v{d4}, s[14:15]')
        A('s_mov_b64 exec, 0xffff')
        for k in range(4):
            d0 = 24 + 4 * k
            A(f'v_add_f32_dpp v{20+k}, v{d0+3}, v{d0+2} row_ror:8 row_mask:0xf bank_mask:0xf')

    def build(self):
        A = self.A; o = self.o
        L = self.L
        L.append(HEADER.rstrip())
        L.append(f'; @launch grid=(256,1,1) block=(1024,1,1) lds={LDS_BYTES}')
        L.append('.amdgcn_target "amdgcn-amd-amdhsa--gfx950"')
        L.append('.text')
        L.append(f'.globl {NAME}_kernel')
        L.append('.p2align 8')
        L.append(f'.type {NAME}_kernel,@function')
        L.append(f'{NAME}_kernel:')
        A('s_cmp_ge_u32 s2, 256')
        A('s_cbranch_scc1 L_end')
        A('s_load_dwordx16 s[4:19], s[0:1], 0')
        A('s_load_dwordx8 s[20:27], s[0:1], 64')
        A('s_load_dwordx2 s[28:29], s[0:1], 96')
        if self.stamps:
            for i in range(70, 96): A(f's_mov_b32 s{i}, 0')
        self.stamp(0)
        A('v_lshrrev_b32 v5, 6, v0')
        A('v_mov_b32 v4, 0')
        A('v_readfirstlane_b32 s3, v5')
        A('v_and_b32 v0, 63, v0')
        A('v_lshrrev_b32 v8, 4, v0')
        A('v_and_b32 v7, 7, v0')
        A('v_lshlrev_b32 v10, 2, v7')
        A('v_and_b32 v12, 8, v0')
        A('v_lshlrev_b32 v14, 15, v12'); A('v_lshl_add_u32 v14, v8, 16, v14'); A('v_lshl_add_u32 v14, v10, 2, v14')
        A('v_and_b32 v2, 1, v0'); A('v_lshlrev_b32 v15, 6, v2'); A('v_lshl_add_u32 v15, v8, 4, v15')
        A('s_and_b32 s49, s2, 1'); A('s_lshl_b32 s49, s49, 9'); A('s_lshl_b32 s48, s3, 6'); A('s_add_u32 s49, s49, s48')
        A('s_bfe_u32 s52, s2, 0x60001')
        A('s_lshl_b32 s48, s49, 13'); A('s_lshl_b32 s50, s52, 7'); A('s_add_u32 s48, s48, s50')
        A('s_lshl_b32 s49, s49, 1'); A('v_add_u32 v15, s49, v15')
        A('s_mov_b32 s42, 0x800000'); A('s_mov_b32 s43, 0x20000')
        A('s_setprio 2')
        A('s_cmp_lt_u32 s2, 128')
        A('s_waitcnt lgkmcnt(0)')
        A('s_cselect_b32 s40, s10, s20'); A('s_cselect_b32 s41, s11, s21')
        A('s_cselect_b32 s66, s4, s14');  A('s_cselect_b32 s67, s5, s15')
        A('s_cselect_b32 s10, s12, s22'); A('s_cselect_b32 s11, s13, s23')
        A('s_cmp_ge_u32 s3, 8')
        A('s_cbranch_scc1 L_nowq')
        for j in range(8):
            A(f'buffer_load_dwordx4 v[{64+4*j}:{67+4*j}], v14, s[40:43], s48 offen nt')
            if j < 7: A('s_add_u32 s48, s48, 8192')
        A('global_load_dwordx4 v[16:19], v15, s[66:67]')
        self.lab('L_nowq')
        if o.get('early'): self.stamp(13)
        A('v_mov_b32 v6, 1')
        A('v_lshlrev_b32 v1, 4, v0')
        A('v_and_b32 v57, 3, v5')
        A('v_lshl_add_u32 v11, v57, 12, v1')
        A('v_and_b32 v9, 15, v0')
        A('v_lshrrev_b32 v13, 2, v9')
        A('v_lshlrev_b32 v2, 4, v2')
        A('v_lshl_add_u32 v2, v13, 8, v2')
        A('v_lshl_add_u32 v2, v8, 5, v2')
        A('v_and_b32 v13, 2, v0')
        A('v_lshl_add_u32 v2, v13, 10, v2')
        A(f'v_mul_u32_u24 v3, {QSTR}, v7')
        A('v_lshl_add_u32 v3, v8, 5, v3')
        A('v_lshl_add_u32 v3, v12, 1, v3')
        A('s_mov_b32 s30, 0x05040100')
        A('s_mov_b32 s31, 0x07060302')
        A('s_mov_b32 s100, 0xffff0000')
        A('s_mov_b32 s101, 0x3db504f3')
        A('s_mov_b32 s32, s6');  A('s_mov_b32 s33, s7');  A('s_mov_b32 s34, 0x4000000'); A('s_mov_b32 s35, 0x20000')
        A('s_mov_b32 s36, s8');  A('s_mov_b32 s37, s9');  A('s_mov_b32 s38, 0x4000000'); A('s_mov_b32 s39, 0x20000')
        A('s_mov_b32 s44, s28'); A('s_mov_b32 s45, s29'); A(f's_mov_b32 s46, {WS_BYTES}'); A('s_mov_b32 s47, 0x20000')
        A('s_lshr_b32 s20, s2, 7')
        A('s_and_b32 s4, s2, 7'); A('s_bfe_u32 s7, s2, 0x30004'); A('s_lshl_b32 s7, s7, 3'); A('s_add_u32 s4, s4, s7')
        A('s_bfe_u32 s7, s2, 0x10003')
        A('s_lshr_b32 s22, s2, 6')
        A('s_and_b32 s23, s2, 63')
        A('s_mov_b32 s14, 0x00ff00ff'); A('s_mov_b32 s15, 0x00ff00ff')
        A('s_lshl_b32 s48, s23, 7')
        A(f's_mul_i32 s6, s22, {32*IB}'); A('s_add_u32 s6, s6, s48'); A(f's_add_u32 s6, s6, {WS_I1}')
        A(f's_mul_i32 s5, s22, {4*IB}'); A('s_add_u32 s5, s5, s48'); A(f's_add_u32 s5, s5, {WS_ML}')
        A('s_lshl_b32 s96, s22, 24')
        A('s_lshr_b32 s48, s3, 2'); A('s_add_u32 s48, s48, s22'); A('s_and_b32 s48, s48, 3'); A('s_lshl_b32 s48, s48, 22'); A('s_add_u32 s96, s96, s48')
        A('s_mov_b32 s26, s96')
        A('s_lshl_b32 s48, s23, 16'); A('s_add_u32 s96, s96, s48')
        A('s_and_b32 s48, s3, 3'); A('s_lshl_b32 s48, s48, 12'); A('s_add_u32 s96, s96, s48')
        A('s_add_u32 s97, s96, 16384'); A('s_add_u32 s98, s96, 32768'); A('s_add_u32 s99, s96, 49152')
        A('s_cmp_ge_u32 s3, 8')
        A('s_cbranch_scc1 L_young0')
        A('s_load_dword s54, s[28:29], 0')
        A('s_lshr_b32 s56, s2, 5'); A(f's_mul_i32 s56, s56, {4*IB}'); A('s_and_b32 s48, s2, 1'); A('s_lshl_b32 s48, s48, 12'); A('s_add_u32 s56, s56, s48')
        A('s_and_b32 s48, s52, 15'); A('s_lshl_b32 s48, s48, 8'); A('s_add_u32 s56, s56, s48'); A(f's_add_u32 s56, s56, {WS_Q}')
        A(f'v_mul_u32_u24 v60, {IB}, v8'); A('v_lshl_add_u32 v60, v9, 4, v60')
        A('v_lshlrev_b32 v7, 3, v10'); A('v_lshl_add_u32 v7, v12, 1, v7')
        A('s_lshl_b32 s48, s3, 8'); A('v_add_u32 v7, s48, v7')
        A('v_mov_b32 v56, 0xffffff00')
        A('s_barrier')
        if o.get('early'):
            self.stamp(8); A('s_waitcnt vmcnt(8)'); self.stamp(9)
        A('s_waitcnt vmcnt(0)')
        if o.get('early'): self.stamp(12); A('s_branch L_fin')
        for tt in range(8): self.perm_tile(64, tt, 96 + 4 * tt)
        A('s_nop 1')
        self.proj_result()
        A(f'ds_write_b128 v7, v[20:23] offset:{L_QS}')
        A('s_mov_b64 exec, -1')
        self.lds_inc_rtn(C_Q)
        self.stamp(1)
        self.tag()
        A('s_cmp_lg_u32 s48, 7')
        A('s_cbranch_scc1 L_task')
        A('s_setprio 3')
        for k in range(2): A(f'ds_read_b128 v[{32+4*k}:{35+4*k}], v1 offset:{L_QS + 1024*k}')
        A('s_waitcnt lgkmcnt(0)')
        for e in range(4): A(f'v_add_f32 v{32+e}, v{32+e}, v{36+e}')
        self.xg_reduce('v_add_f32', [32, 33, 34, 35], [36, 37, 38, 39])
        self.embed(range(32, 36))
        A('buffer_store_dwordx4 v[32:35], v60, s[44:47], s56 offen sc1')
        A('s_setprio 2')
        A('s_branch L_task')
        self.lab('L_young0')
        A('v_mov_b32 v5, 0xff800000')
        A('v_cmp_gt_u32 vcc, 16, v0')
        A('v_lshlrev_b32 v7, 2, v0')
        A('s_nop 0')
        A('v_cndmask_b32 v5, v4, v5, vcc')
        A(f'ds_write_b32 v7, v5 offset:{L_MISC}')
        A('s_lshl_b32 s48, s3, 8'); A('v_add_u32 v9, s48, v7')
        A(f'ds_write_b32 v9, v4 offset:{L_T - 2048}')
        A('s_waitcnt lgkmcnt(0)')
        A('s_barrier')
        A('s_load_dword s54, s[28:29], 0')
        if o.get('early'): self.stamp(8); A('s_branch L_fin')
        A('s_cmp_ge_u32 s3, 12')
        A('s_cbranch_scc1 L_dyn')
        if o['ns'] == 8:
            A('s_waitcnt lgkmcnt(0)'); self.tag(); A('s_branch L_c')
        self.lab('L_task')
        self.task_static()
        A('s_cmp_ge_u32 s3, 8')
        A('s_cbranch_scc1 L_c')
        A('s_cmp_lg_u32 s3, 0'); A('s_cbranch_scc1 L_nd')
        shl = o['shl']; ntick = (16 - o['ns']) << shl
        A(f's_lshr_b32 s53, s2, {shl}'); A('s_lshl_b32 s53, s53, 8'); A(f's_add_u32 s53, s53, {WS_T}')
        A('s_mov_b32 s52, 0'); A('s_mov_b32 s50, 0')
        A('s_setprio 3')
        self.lds_wait(F_GO, 1, sleep=2)
        self.lab('L_deal')
        A('s_mov_b32 s51, 0x8000')
        self.lab('L_drt')
        self.ticket_req()
        A('s_waitcnt lgkmcnt(0)')
        A('s_cmp_eq_u32 s67, s55'); A('s_cbranch_scc1 L_dok')
        A('s_sub_u32 s51, s51, 1'); A('s_cbranch_scc0 L_drt')
        A('s_mov_b32 s66, 0x10000')
        self.lab('L_dok')
        A('s_add_u32 s66, s66, 1')
        A('v_mov_b32 v8, s66'); A('v_mov_b32 v9, s52')
        A(f'ds_write_b32 v9, v8 offset:{L_T}')
        A(f's_cmp_gt_u32 s66, {ntick}'); A('s_cbranch_scc1 L_ddone')
        A('s_add_u32 s52, s52, 4')
        kap = o.get('kap', -1)
        S = 1 << shl
        if kap >= 0:
            A('s_sub_u32 s56, s66, s50')
            A('s_lshr_b32 s57, s66, 2'); A(f's_add_u32 s57, s57, {S}')
            A('s_cmp_eq_u32 s50, 0')
            A('s_cselect_b32 s56, s57, s56')
            A('s_mov_b32 s50, s66')
            A(f's_mul_i32 s57, s56, {kap + 2}'); A('s_lshr_b32 s57, s57, 1'); A('s_add_u32 s57, s57, s66')
            A(f's_cmp_le_u32 s56, {S + o.get("dm", 0)}'); A('s_cselect_b32 s57, 0, s57')
            A(f's_cmp_le_u32 s66, {S + 1}'); A('s_cselect_b32 s57, 0, s57')
            A('s_mov_b32 s66, 0x10000')
            A(f's_cmp_gt_u32 s57, {ntick + (kap * S) // 2}'); A('s_cbranch_scc1 L_dok')
        self.lds_wait(NEED, 's52', sleep=0)
        A('s_branch L_deal')
        self.lab('L_ddone')
        A('s_setprio 2')
        self.lab('L_nd')
        A('s_cmp_lg_u32 s3, 1'); A('s_cbranch_scc1 L_wo')
        self.task_b()
        A('s_setprio 2')
        A('v_lshrrev_b32 v57, 10, v11')
        self.stamp(9)
        self.lab('L_wo')
        A('s_mov_b32 s40, s10'); A('s_mov_b32 s41, s11')
        A('s_lshr_b32 s50, s4, 4'); A('s_lshl_b32 s50, s50, 10')
        A('s_and_b32 s51, s4, 3'); A('s_lshl_b32 s51, s51, 5'); A('s_add_u32 s50, s50, s51')
        A('s_bfe_u32 s51, s4, 0x20002'); A('s_add_u32 s50, s50, s51')
        A('s_lshl_b32 s50, s50, 11'); A('s_lshl_b32 s51, s7, 10'); A('s_add_u32 s50, s50, s51'); A('s_lshl_b32 s51, s3, 7'); A('s_add_u32 s50, s50, s51')
        A('v_lshrrev_b32 v8, 4, v0')
        A('v_lshlrev_b32 v58, 19, v8'); A('v_lshl_add_u32 v58, v10, 2, v58'); A('v_and_b32 v5, 8, v0'); A('v_lshl_add_u32 v58, v5, 10, v58')
        A('v_mov_b32 v56, 0xffffff00'); A('v_mov_b32 v61, v5')
        ge = self.newlab('GE')
        if o['woe']:
            A(f's_cmp_lt_u32 s3, {o["woe"]}'); A(f's_cbranch_scc1 {ge}')
        self.lds_wait(F_EX, 1, sleep=2, areg=57)
        A('s_setprio 0')
        self.lab(ge)
        for j in range(8):
            A(f'buffer_load_dwordx4 v[{64+4*j}:{67+4*j}], v58, s[40:43], s50 offen nt')
            if j < 7: A(f's_add_u32 s50, s50, {16384 if j != 3 else (128 - 24) * 2048}')
        self.stamp(11)
        A('s_setprio 2')
        self.lds_inc(C_W)
        A('v_and_b32 v60, 1, v0'); A('v_lshlrev_b32 v60, 6, v60'); A('v_lshl_add_u32 v60, v8, 4, v60')
        A('v_bfe_u32 v59, v0, 2, 1'); A(f'v_mul_u32_u24 v59, {IB}, v59')
        A('v_and_b32 v7, 3, v0'); A('v_lshl_add_u32 v59, v7, 5, v59'); A('v_lshl_add_u32 v59, v61, 1, v59')
        A('s_lshl_b32 s53, s20, 5'); A('s_lshl_b32 s48, s7, 4'); A('s_add_u32 s53, s53, s48'); A('s_lshl_b32 s48, s3, 1'); A('s_add_u32 s53, s53, s48')
        A(f's_mul_i32 s53, s53, {IB}'); A('s_lshl_b32 s48, s4, 7'); A('s_add_u32 s53, s53, s48'); A(f's_add_u32 s53, s53, {WS_I2}')
        A('s_waitcnt vmcnt(0)')
        A('s_mov_b64 exec, 1'); A(f'ds_add_u32 v4, v6 offset:{C_W}'); A(f'ds_add_u32 v4, v6 offset:{F_X3}'); A('s_mov_b64 exec, -1')
        for tt in range(8): self.perm_tile(64, tt, 96 + 4 * tt)
        self.stamp(12)
        if o.get('notail'): A('s_branch L_fin')
        if o.get('pt', 0) & 1:
            A('s_lshl_b32 s48, s4, 7'); A('s_sub_u32 s48, s53, s48'); A('s_add_u32 s48, s48, 8192')
            A('s_mov_b64 exec, 0x11')
            A('buffer_load_dword v62, v59, s[44:47], s48 offen')
            A('s_mov_b64 exec, -1')
        A('s_mov_b32 s49, 0x40000')
        self.lab('L_ow')
        A(f'ds_read_b32 v5, v4 offset:{F_O}')
        A(f'ds_read_b128 v[16:19], v60 offset:{L_O}')
        A('s_waitcnt lgkmcnt(0)')
        A('v_readfirstlane_b32 s48, v5')
        A('s_cmp_ge_u32 s48, 2'); A('s_cbranch_scc1 L_owd')
        A('s_sub_u32 s49, s49, 1')
        A('s_cbranch_scc0 L_ow')
        self.lab('L_owd')
        self.proj_result()
        self.embed(range(20, 24))
        A('buffer_store_dwordx4 v[20:23], v59, s[44:47], s53 offen sc1')
        A('s_mov_b64 exec, -1')
        if o.get('rs', 2) == 3:
            A('s_waitcnt vmcnt(0)')
            self.lds_inc(C_W)
        self.stamp(13)
        A('s_branch L_fin')
        self.lab('L_dyn')
        self.task_dynamic()
        self.lab('L_c')
        A('s_cmp_eq_u32 s3, 11')
        A('s_cbranch_scc1 L_red')
        A('s_cmp_lg_u32 s3, 8')
        A('s_cbranch_scc1 L_comb')
        if o.get('notail') or not o.get('hint', 0): A('s_branch L_fin')
        A('s_lshr_b32 s40, s4, 4'); A('s_lshl_b32 s41, s20, 2'); A('s_add_u32 s40, s40, s41'); A('s_lshl_b32 s40, s40, 8'); A(f's_add_u32 s40, s40, {WS_P}')
        A('v_mov_b32 v13, 16'); A('s_mov_b32 s50, 0x8000')
        A('s_cmp_lg_u32 s20, 0'); A('s_cbranch_scc1 L_hp')
        self.lds_wait(C_O, 4, sleep=2)
        self.lab('L_hp')
        A('s_load_dwordx2 s[56:57], s[28:29], s40 glc')
        A(f'ds_read_b32 v5, v4 offset:{C_W}')
        A('s_waitcnt lgkmcnt(0)')
        A('v_readfirstlane_b32 s48, v5')
        A('s_cmp_ge_u32 s48, 16'); A('s_cbranch_scc1 L_fin')
        A('s_cmp_lg_u32 s57, s55'); A('s_cbranch_scc1 L_fin')
        A(f's_cmp_ge_u32 s56, {o.get("hn", 64)}'); A('s_cbranch_scc1 L_hok')
        A(f's_sleep {o.get("hs", 4)}')
        A('s_sub_u32 s50, s50, 1')
        A('s_cbranch_scc0 L_hp')
        self.lab('L_hok')
        A('s_mov_b64 exec, 1')
        A(f'ds_add_u32 v4, v13 offset:{C_W}')
        A('s_mov_b64 exec, -1')
        self.stamp(9)
        A('s_branch L_fin')
        self.lab('L_comb')
        if o.get('notail'): A('s_branch L_fin')
        A('s_lshr_b32 s40, s4, 4'); A('s_lshl_b32 s41, s20, 2'); A('s_add_u32 s40, s40, s41')
        A('s_lshl_b32 s41, s40, 2'); A('s_and_b32 s42, s2, 3'); A('s_add_u32 s41, s41, s42'); A(f's_mul_i32 s41, s41, {IB}'); A(f's_add_u32 s41, s41, {WS_ML}')
        A('s_lshl_b32 s40, s40, 5'); A('s_and_b32 s42, s4, 15'); A('s_lshl_b32 s42, s42, 1'); A('s_add_u32 s40, s40, s42')
        A('s_and_b32 s42, s3, 1'); A('s_add_u32 s40, s40, s42'); A(f's_mul_i32 s40, s40, {IB}'); A(f's_add_u32 s40, s40, {WS_I1}')
        A('s_lshl_b32 s42, s42, 6'); A('v_lshlrev_b32 v12, 3, v0'); A('v_add_u32 v12, s42, v12')
        A('s_add_u32 s42, s41, 4096'); A('s_add_u32 s43, s40, 4096')
        A('v_mov_b32 v15, 0xff'); A('v_mov_b32 v14, 0x3fb8aa3b')
        self.lds_wait(C_W, o.get('cw', 16), sleep=1)
        pass
        self.stamp(11)
        M = [96 + 4 * k for k in range(8)]
        self.mgather([(96, 's41', 's42', True), (64, 's40', 's43', False)])
        self.stamp(12)
        A(f'v_max3_f32 v32, v{M[0]}, v{M[1]}, v{M[2]}'); A(f'v_max3_f32 v33, v{M[3]}, v{M[4]}, v{M[5]}'); A(f'v_max3_f32 v32, v32, v{M[6]}, v{M[7]}'); A('v_max_f32 v32, v32, v33')
        self.ror_reduce('v_max_f32', [32], 8)
        self.xg_reduce('v_max_f32', [32], [33])
        A('v_mul_f32 v32, 0x3fb8aa3b, v32')
        for k in range(8): A(f'v_fma_f32 v{16+k}, v{M[k]}, v14, -v32')
        for k in range(8): A(f'v_exp_f32 v{16+k}, v{16+k}')
        A(f'v_mul_f32 v36, v16, v{M[0]+2}')
        for k in range(1, 8): A(f'v_fmac_f32 v36, v{16+k}, v{M[k]+2}')
        for e in range(4): A(f'v_mul_f32 v{32+e}, v16, v{64+e}')
        for k in range(1, 8):
            for e in range(4): A(f'v_fmac_f32 v{32+e}, v{16+k}, v{64+4*k+e}')
        self.ror_reduce('v_add_f32', [36, 32, 33, 34, 35], 8)
        self.xg_reduce('v_add_f32', [36, 32, 33, 34, 35], [41, 37, 38, 39, 40])
        A('v_rcp_f32 v37, v36')
        A('s_nop 0')
        A('v_fma_f32 v38, -v36, v37, 1.0')
        A('v_fma_f32 v37, v38, v37, v37')
        for e in range(4): A(f'v_mul_f32 v{32+e}, v{32+e}, v37')
        A('v_cvt_pk_bf16_f32 v32, v32, v33'); A('v_cvt_pk_bf16_f32 v33, v34, v35')
        A('s_mov_b64 exec, 0xff')
        A(f'ds_write_b64 v12, v[32:33] offset:{L_O}')
        A('s_mov_b64 exec, 1')
        A(f'ds_add_u32 v4, v6 offset:{F_O}')
        A('s_mov_b64 exec, -1')
        self.stamp(13)
        A('s_branch L_fin')
        self.lab('L_red')
        if o.get('notail'):
            A('s_cmp_lg_u32 s2, 0'); A('s_cbranch_scc1 L_fin')
            self.lds_wait(C_O, 4)
            A('v_mov_b32 v13, s55'); A('s_mov_b64 exec, 1'); A('global_store_dword v4, v13, s[28:29]'); A('s_mov_b64 exec, -1')
            A('s_branch L_fin')
        A('s_bfe_u32 s40, s2, 0x20003'); A('s_cmp_lg_u32 s40, 0')
        A('s_cbranch_scc1 L_fin')
        A('s_lshr_b32 s40, s2, 5'); A('s_lshl_b32 s40, s40, 3'); A('s_and_b32 s41, s2, 7'); A('s_add_u32 s40, s40, s41')
        A('s_lshl_b32 s42, s40, 6'); A('v_lshlrev_b32 v12, 3, v0'); A('v_add_u32 v12, s42, v12')
        A(f's_mul_i32 s40, s40, {IB}'); A(f's_add_u32 s40, s40, {WS_I2}')
        A('v_mov_b32 v13, s55'); A('v_mov_b32 v15, 0xff'); A('s_add_u32 s43, s40, 4096')
        rs = o.get('rs', 2)
        if rs == 0: self.lds_wait(F_O, 2, sleep=2)
        elif rs == 1: self.lds_wait(C_W, 16, sleep=2)
        elif rs == 2:
            self.lds_wait(C_O, 4, sleep=2)
            for k in range(8): A(f'buffer_load_dwordx4 v[{64+4*k}:{67+4*k}], v1, s[44:47], {"s40" if k < 4 else "s43"} offen offset:{1024*(k&3)} sc1')
            A('s_waitcnt vmcnt(0)')
            self.lds_wait(F_X3, 8, sleep=1)
            if o.get('pt', 0) & 2:
                A('s_mov_b64 exec, 1'); A('global_load_dword v62, v12, s[24:25]'); A('s_mov_b64 exec, -1')
            self.lds_wait(F_O, 2, sleep=1)
        elif rs == 3:
            self.lds_wait(C_W, 24, sleep=1)
        self.stamp(11)
        self.mgather([(64, 's40', 's43', False)])
        self.stamp(12)
        for k in range(4):
            for e in (0, 2): A(f'v_pk_add_f32 v[{40+4*k+e}:{41+4*k+e}], v[{64+4*k+e}:{65+4*k+e}], v[{80+4*k+e}:{81+4*k+e}]')
        for k in range(2):
            for e in (0, 2): A(f'v_pk_add_f32 v[{40+4*k+e}:{41+4*k+e}], v[{40+4*k+e}:{41+4*k+e}], v[{48+4*k+e}:{49+4*k+e}]')
        for e in (0, 2): A(f'v_pk_add_f32 v[{40+e}:{41+e}], v[{40+e}:{41+e}], v[{44+e}:{45+e}]')
        self.ror_reduce('v_add_f32', [40, 41, 42, 43], 8)
        self.xg_reduce('v_add_f32', [40, 41, 42, 43], [36, 37, 38, 39])
        A('v_cvt_pk_bf16_f32 v32, v40, v41'); A('v_cvt_pk_bf16_f32 v33, v42, v43')
        A('s_mov_b64 exec, 0xff')
        A('global_store_dwordx2 v12, v[32:33], s[24:25]')
        A('s_cmp_lg_u32 s2, 0')
        A('s_cbranch_scc1 L_nogen')
        A('s_mov_b64 exec, 1')
        A('global_store_dword v4, v13, s[28:29]')
        self.lab('L_nogen')
        A('s_mov_b64 exec, -1')
        self.stamp(13)
        if o.get('spin'):
            self.lab('L_spin')
            A('s_memrealtime s[60:61]'); A('s_waitcnt lgkmcnt(0)'); A('s_sub_u32 s60, s60, s68'); A(f's_cmp_lt_u32 s60, {o["spin"]}'); A('s_cbranch_scc1 L_spin')
            A('s_branch L_end')
        if o.get('dbgt'):
            A('s_load_dwordx2 s[60:61], s[0:1], 88')
            A('s_waitcnt lgkmcnt(0)')
            A('s_sub_u32 s48, s94, s68'); A('v_mov_b32 v20, s48')
            A('s_lshr_b32 s48, s2, 5'); A('s_lshl_b32 s48, s48, 1'); A('s_and_b32 s49, s2, 7'); A('s_cmp_ge_u32 s49, 2'); A('s_cbranch_scc1 L_end')
            A('s_add_u32 s48, s48, s49'); A('s_lshl_b32 s48, s48, 2'); A('v_mov_b32 v7, s48')
            A('s_mov_b64 exec, 1')
            A('global_store_dword v7, v20, s[60:61]')
            A('s_branch L_end')
        if o.get('amp'):
            A('s_waitcnt lgkmcnt(0)')
            A('s_sub_u32 s62, s94, s68'); A('s_lshl_b32 s62, s62, 2'); A('s_sub_u32 s62, s62, 6500'); A('s_min_u32 s62, s62, 30000')
            self.lab('L_amp')
            A('s_memrealtime s[60:61]'); A('s_waitcnt lgkmcnt(0)'); A('s_sub_u32 s60, s60, s68'); A('s_cmp_lt_u32 s60, s62'); A('s_cbranch_scc1 L_amp')
            A('s_branch L_end')
        if not o.get('lite'): self.lab('L_fin')
        if self.stamps:
            A('s_waitcnt vmcnt(0) lgkmcnt(0)')
            A('s_getreg_b32 s48, hwreg(HW_REG_XCC_ID)')
            A('s_getreg_b32 s49, hwreg(HW_REG_HW_ID)')
            for i in range(28): A(f'v_writelane_b32 v20, s{68+i}, {i}')
            A('v_writelane_b32 v20, s48, 28')
            A('v_writelane_b32 v20, s49, 29')
            A('s_lshl_b32 s48, s2, 4'); A('s_add_u32 s48, s48, s3'); A('s_lshl_b32 s48, s48, 7'); A(f's_add_u32 s48, s48, {STAMP_OFF}')
            A('v_lshlrev_b32 v7, 2, v0'); A('v_add_u32 v7, s48, v7')
            A('s_mov_b64 exec, 0xffffffff')
            A('global_store_dword v7, v20, s[28:29]')
        if o.get('lite'): self.lab('L_fin')
        self.lab('L_end')
        A('s_endpgm')
        L.append('.section .rodata,"a"')
        L.append('.p2align 6')
        L.append(f'.amdhsa_kernel {NAME}_kernel')
        L.append('  .amdhsa_next_free_vgpr 128')
        L.append('  .amdhsa_next_free_sgpr 102')
        L.append('  .amdhsa_accum_offset 128')
        L.append('  .amdhsa_group_segment_fixed_size 0')
        L.append('  .amdhsa_kernarg_size 104')
        L.append('  .amdhsa_user_sgpr_count 2')
        L.append('  .amdhsa_user_sgpr_kernarg_segment_ptr 1')
        L.append('  .amdhsa_system_sgpr_workgroup_id_x 1')
        L.append('.end_amdhsa_kernel')
        return '\n'.join(L) + '\n'

if __name__ == '__main__':
    out = sys.argv[1]
    stamps = 'stamps' in sys.argv[2:]
    opts = {}
    for a in sys.argv[2:]:
        if '=' in a:
            k, v = a.split('='); opts[k] = int(v)
    open(out, 'w').write(Gen(stamps, opts).build())
```

```python
import sys
NAME = 'concat_heads__gqa_block_cached__sliding_block_cached__decode'

HEADER = open('cdna_kernels/' + NAME + '.s.ref').read().split('; Override launch')[0]

IB = 8448
WS_T = 0x1000
WS_P = 0x3000
WS_Q = 0x4000
WS_ML = 0x50000
WS_I1 = 0xA0000
WS_I2 = 0x2C0000
WS_BYTES = 0x400000
STAMP_OFF = 0x10000000
L_CH, L_QS, L_QA, L_QB, L_MISC = 0, 16384, 20480, 22784, 25088
QSTR = 272
L_MA, L_LA = L_MISC, L_MISC + 64
L_C = L_MISC + 128
C_Q, C_M, C_O, C_L, F_QA, F_QB, F_O, C_B, C_D, C_W, F_X2, F_X3, F_CH = [L_C + 4 * i for i in range(13)]
F_GO = L_C + 80
F_EX = L_C + 64
L_O = L_MISC + 256
L_M4 = L_MISC + 384
L_T = L_MISC + 1024
NEED = F_X2
L_B = L_T + 2048
L_KD = L_B + 32768
LDS_BYTES = L_KD + 4 * 3 * 4096

class Gen:
    def __init__(self, stamps=False, opts=None):
        self.L = []
        self.stamps = stamps
        self.nlab = 0
        self.o = dict(qw=4, oldv=8, ns=12, woe=0, shl=5)
        if opts: self.o.update(opts)
    def A(self, s):
        dr = self.o.get('drop', 0)
        if s.startswith('buffer_store'):
            if 'v58' in s and self.o.get('inB') and dr & 1: return
            if 'v58' in s and not self.o.get('inB') and dr & 2: return
            if 'v[12:15]' in s and dr & 4: return
            if 'v60' in s and dr & 8: return
        if s: self.L.append('    ' + s)
    def lab(self, s): self.L.append(s + ':')
    def newlab(self, p='L'):
        self.nlab += 1
        return f'{p}_{self.nlab}'
    def stamp(self, i):
        if self.o.get('lite') and i not in (0, 13): return
        if self.stamps: self.A(f's_memrealtime s[{68+2*i}:{69+2*i}]')

    def lds_wait(self, addr, val, sleep=1, areg=4):
        A = self.A
        l = self.newlab('W'); d = self.newlab('D')
        A('s_mov_b32 s49, 0x40000')
        self.lab(l)
        A(f'ds_read_b32 v5, v{areg} offset:{addr}')
        A('s_waitcnt lgkmcnt(0)')
        A('v_readfirstlane_b32 s48, v5')
        A(f's_cmp_ge_u32 s48, {val}')
        A(f's_cbranch_scc1 {d}')
        if sleep: A(f's_sleep {sleep}')
        A('s_sub_u32 s49, s49, 1')
        A(f's_cbranch_scc0 {l}')
        self.lab(d)
    def lds_inc(self, addr, areg=4):
        A = self.A
        A('s_mov_b64 exec, 1')
        A(f'ds_add_u32 v{areg}, v6 offset:{addr}')
        A('s_mov_b64 exec, -1')
    def lds_inc_rtn(self, addr):
        A = self.A
        A('s_mov_b64 exec, 1')
        A(f'ds_add_rtn_u32 v5, v4, v6 offset:{addr}')
        A('s_mov_b64 exec, -1')
        A('s_waitcnt lgkmcnt(0)')
        A('v_readfirstlane_b32 s48, v5')
    def tag(self):
        A = self.A
        A('s_and_b32 s55, s54, 0x7f7f7f7f'); A('s_add_u32 s55, s55, 0x35172b4d'); A('s_and_b32 s8, s54, 0x80808080'); A('s_xor_b32 s55, s55, s8')
        A('s_and_b32 s8, s55, 0xff'); A('s_bfe_u32 s9, s55, 0x80008'); A('s_bfe_u32 s12, s55, 0x80010'); A('s_lshr_b32 s13, s55, 24')
    TB = ['s8', 's9', 's12', 's13']
    def embed(self, regs):
        for r in regs: self.A(f'v_and_or_b32 v{r}, v{r}, v56, {self.TB[r & 3]}')

    def perm_tile(self, src, tt, dst):
        i, h = tt >> 1, tt & 1
        sel = 's31' if h else 's30'
        for jp in range(4):
            self.A(f'v_perm_b32 v{dst+jp}, v{src+4*(2*jp+1)+i}, v{src+4*(2*jp)+i}, {sel}')

    def xg_reduce(self, op, regs, tmps):
        A = self.A
        for sw in ('v_permlane16_swap_b32', 'v_permlane32_swap_b32'):
            for r, t in zip(regs, tmps): A(f'v_mov_b32 v{t}, v{r}')
            A('s_nop 1')
            for r, t in zip(regs, tmps): A(f'{sw} v{r}, v{t}')
            A('s_nop 1')
            for r, t in zip(regs, tmps): A(f'{op} v{r}, v{r}, v{t}')
    def ror_reduce(self, op, regs, n):
        A = self.A
        A('s_nop 1')
        for r in regs: A(f'{op}_dpp v{r}, v{r}, v{r} row_ror:{n} row_mask:0xf bank_mask:0xf')

    def gather(self, dst, sbase, N, tagged):
        A = self.A
        l = self.newlab('G'); d = self.newlab('GD')
        A('s_setprio 3')
        A(f's_add_u32 s51, {sbase}, 4096')
        A('s_mov_b32 s49, 0x8000')
        self.lab(l)
        for k in range(N):
            r = dst + 4 * k
            A(f'buffer_load_dwordx4 v[{r}:{r+3}], v1, s[44:47], {sbase if k < 4 else "s51"} offen offset:{1024*(k&3)} sc1')
        for k in range(N):
            r = dst + 4 * k
            A(f's_waitcnt vmcnt({N-1-k})')
            if tagged:
                if k == 0:
                    A(f'v_min_u32 v5, v{r+1}, v{r+3}'); A(f'v_max_u32 v7, v{r+1}, v{r+3}')
                else:
                    A(f'v_min3_u32 v5, v5, v{r+1}, v{r+3}'); A(f'v_max3_u32 v7, v7, v{r+1}, v{r+3}')
            else:
                if k == 0:
                    A(f'v_xor_b32 v5, s8, v{r}'); A(f'v_xor_b32 v7, s9, v{r+1}')
                else:
                    A(f'v_bitop3_b32 v5, s8, v5, v{r} bitop3:0xde'); A(f'v_bitop3_b32 v7, s9, v7, v{r+1} bitop3:0xde')
                A(f'v_bitop3_b32 v5, s12, v5, v{r+2} bitop3:0xde'); A(f'v_bitop3_b32 v7, s13, v7, v{r+3} bitop3:0xde')
        if tagged:
            A('v_cmp_ne_u32 vcc, s55, v5')
            A('v_cmp_ne_u32 s[66:67], s55, v7')
            A('s_or_b64 s[66:67], s[66:67], vcc')
            A(f's_cbranch_scc0 {d}')
        else:
            A('v_or_b32 v5, v5, v7')
            A('v_and_b32 v5, 0xff, v5')
            A('v_cmp_ne_u32 vcc, 0, v5')
            A(f's_cbranch_vccz {d}')
        A('s_sub_u32 s49, s49, 1')
        A(f's_cbranch_scc0 {l}')
        self.lab(d)

    MK = [50, 52, 56, 58, 60, 62, 64, 66]
    def mgather(self, sets):
        A = self.A
        l = self.newlab('MG'); d = self.newlab('MGD')
        A('s_setprio 3')
        for k in range(8):
            for dst, lo, hi, tg in sets:
                A(f'buffer_load_dwordx4 v[{dst+4*k}:{dst+4*k+3}], v1, s[44:47], {lo if k < 4 else hi} offen offset:{1024*(k&3)} sc1')
        def check(k):
            first = True
            for dst, lo, hi, tg in sets:
                r = dst + 4 * k
                if tg:
                    A(f'v_xor_b32 v7, s55, v{r+1}'); A(f'v_bitop3_b32 v7, s55, v7, v{r+3} bitop3:0xde')
                else:
                    A(f'v_xor_b32 v5, s8, v{r}'); A(f'v_bitop3_b32 v5, s9, v5, v{r+1} bitop3:0xde')
                    A(f'v_bitop3_b32 v5, s12, v5, v{r+2} bitop3:0xde'); A(f'v_bitop3_b32 v5, s13, v5, v{r+3} bitop3:0xde')
            if len(sets) == 2: A('v_and_or_b32 v5, v5, v15, v7')
            else: A('v_and_b32 v5, v5, v15')
            m = self.MK[k]
            A(f'v_cmp_ne_u32 s[{m}:{m+1}], 0, v5')
        n = len(sets)
        for k in range(8):
            A(f's_waitcnt vmcnt({(7-k)*n})')
            check(k)
        A('s_mov_b32 s49, 0x40000')
        self.lab(l)
        A('s_or_b64 vcc, s[50:51], s[52:53]')
        for k in range(2, 8): A(f's_or_b64 vcc, vcc, s[{self.MK[k]}:{self.MK[k]+1}]')
        A(f's_cbranch_scc0 {d}')
        for k in range(8):
            sk = self.newlab('MS'); m = self.MK[k]
            A(f's_mov_b64 exec, s[{m}:{m+1}]')
            A(f's_cbranch_execz {sk}')
            for dst, lo, hi, tg in sets:
                A(f'buffer_load_dwordx4 v[{dst+4*k}:{dst+4*k+3}], v1, s[44:47], {lo if k < 4 else hi} offen offset:{1024*(k&3)} sc1')
            self.lab(sk)
        A('s_mov_b64 exec, -1')
        A(f's_waitcnt vmcnt({self.o.get("pp", 0)})')
        for k in range(8):
            sk = self.newlab('MC'); m = self.MK[k]
            A(f's_cmp_eq_u64 s[{m}:{m+1}], 0')
            A(f's_cbranch_scc1 {sk}')
            check(k)
            self.lab(sk)
        A('s_sub_u32 s49, s49, 1')
        A(f's_cbranch_scc0 {l}')
        self.lab(d)

    def q_gather(self, br):
        A = self.A
        if self.o.get('drop', 0) & 8 or (br and self.o.get('drop', 0) & 16):
            A(f'ds_write_b32 v4, v6 offset:{F_QB if br else F_QA}')
            return
        A('v_lshrrev_b32 v8, 5, v0'); A('v_and_b32 v5, 31, v0')
        A(f'v_mul_u32_u24 v8, {QSTR}, v8'); A('v_lshl_add_u32 v8, v5, 3, v8')
        A('s_lshl_b32 s52, s22, 2'); A('s_and_b32 s51, s2, 3'); A('s_add_u32 s52, s52, s51')
        A(f's_mul_i32 s52, s52, {IB}'); A(f's_add_u32 s52, s52, {WS_Q + br * 16 * IB}')
        self.gather(32, 's52', 8, False)
        for k in range(4):
            r = 32 + 4 * k
            for e in range(4): A(f'v_add_f32 v{r+e}, v{r+e}, v{r+16+e}')
            A(f'v_cvt_pk_bf16_f32 v{r}, v{r}, v{r+1}'); A(f'v_cvt_pk_bf16_f32 v{r+1}, v{r+2}, v{r+3}')
            A(f'ds_write_b64 v8, v[{r}:{r+1}] offset:{(L_QB if br else L_QA) + 2*QSTR*k}')
        A(f'ds_write_b32 v4, v6 offset:{F_QB if br else F_QA}')
        A('s_setprio 2')

    def k_quarter(self, i, soff):
        for nn in range(2):
            for hf in range(2):
                r = 64 + 16 * i + 8 * nn + 4 * hf
                self.A(f'buffer_load_dwordx4 v[{r}:{r+3}], v2, s[32:35], {soff} offen offset:{1024*nn+128*hf} nt')
                self.A('s_nop 0')
    def v_issue(self, sig=False):
        self.A('s_setprio 1')
        for i in range(4):
            if sig and i == self.o.get('go', 2):
                sk = self.newlab('GO')
                self.A('s_cmp_lt_u32 s3, 8'); self.A(f's_cbranch_scc1 {sk}')
                self.A(f'ds_write_b32 v4, v6 offset:{F_GO}')
                self.lab(sk)
            for T in range(2):
                for nn in range(2):
                    r = 64 + 32 * T + 4 * (2 * i + nn)
                    self.A(f'buffer_load_dwordx4 v[{r}:{r+3}], v1, s[36:39], s{96+i} offen offset:{2048*T+1024*nn} nt')
                    self.A('s_nop 0')
        self.A('s_setprio 2')
    def v_from_lds(self, areg, base, quarters):
        for i in quarters:
            for T in range(2):
                for nn in range(2):
                    r = 64 + 32 * T + 4 * (2 * (i & 3) + nn)
                    self.A(f'ds_read_b128 v[{r}:{r+3}], v{areg} offset:{base + 4096*i + 2048*T + 1024*nn}')
    def vS(self, reg):
        A = self.A
        A(f'v_lshrrev_b32 v{reg}, 3, v0'); A(f'v_mul_u32_u24 v{reg}, {IB}, v{reg}'); A(f'v_lshl_add_u32 v{reg}, v10, 2, v{reg}')
    def ml_store(self, br):
        A = self.A
        A('s_setprio 3')
        A('v_mov_b32 v13, s55'); A('v_mov_b32 v15, s55')
        self.vS(7)
        if br: A(f's_add_u32 s5, s5, {16*IB}')
        A('s_mov_b64 exec, 0xffffffff')
        A(f'buffer_store_dwordx4 v[12:15], v7, s[44:47], s5 offen sc1')
        A('s_mov_b64 exec, -1')
        A('s_setprio 2')
    def op_offsets(self, br):
        for q in range(4): self.A(f's_add_u32 s{56+q}, s6, {br * 128 * IB + 8 * q * IB}')
    def read_q(self, LQ):
        for hf in range(2):
            self.A(f'ds_read_b128 v[{16+4*hf}:{19+4*hf}], v3 offset:{LQ + 128*hf}')
        self.A('s_waitcnt lgkmcnt(0)')
    def qk(self, blocks, D0, R):
        A = self.A
        N = len(blocks)
        for hf in range(2):
            for i, n in enumerate(blocks):
                r = 64 + 8 * n + 4 * hf; d = D0 + 4 * i
                c = '0' if hf == 0 else f'v[{d}:{d+3}]'
                A(f'v_mfma_f32_16x16x32_bf16 v[{d}:{d+3}], v[{r}:{r+3}], v[{16+4*hf}:{19+4*hf}], {c}')
        A(f's_nop {max(0, 8 - N)}')
        for i in range(N):
            d = D0 + 4 * i
            A(f'v_cndmask_b32 v{d}, v{d+3}, v{d}, s[14:15]')
            A(f'v_cndmask_b32 v{d+1}, v{d+1}, v{d+2}, s[14:15]')
        if N < 3: A('s_nop 1')
        for i in range(N):
            d = D0 + 4 * i
            A(f'v_add_f32_dpp v{R[i]}, v{d+1}, v{d} row_ror:8 row_mask:0xf bank_mask:0xf')
    def rowmax(self, S):
        A = self.A
        A(f'v_max3_f32 v8, v{S[0]}, v{S[1]}, v{S[2]}')
        for k in range(3, len(S) - 1, 2): A(f'v_max3_f32 v8, v8, v{S[k]}, v{S[k+1]}')
        A(f'v_max_f32 v8, v8, v{S[-1]}')
        self.ror_reduce('v_max_f32', [8], 8)
        self.xg_reduce('v_max_f32', [8], [9])
    def post_max(self):
        A = self.A
        A('s_mov_b64 exec, 0xff')
        A(f'ds_max_f32 v10, v8 offset:{L_MA}')
        A('s_mov_b64 exec, 1')
        A(f'ds_add_u32 v4, v6 offset:{C_M}')
        A('s_mov_b64 exec, -1')
    def round_chain(self, S, T):
        A = self.A
        n = len(S) // 2
        for rep in range(2):
            for k in range(n): A(f'v_cvt_pk_bf16_f32 v{T+k}, v{S[2*k]}, v{S[2*k+1]}')
            for k in range(n):
                A(f'v_lshlrev_b32 v{S[2*k]}, 16, v{T+k}')
                A(f'v_and_b32 v{S[2*k+1]}, s100, v{T+k}')
            if rep == 0:
                for x in S: A(f'v_mul_f32 v{x}, s101, v{x}')
    def softmax(self, S, PK, shared):
        A = self.A
        if shared:
            self.lds_wait(C_M, self.o['ns'])
            self.stamp(5)
            A(f'ds_read_b32 v8, v10 offset:{L_MA}')
            A('s_waitcnt lgkmcnt(0)')
        A('v_cvt_pk_bf16_f32 v8, v8, v8')
        A('v_and_b32 v8, s100, v8')
        A('v_mul_f32 v8, s101, v8')
        A('v_cvt_pk_bf16_f32 v8, v8, v8')
        A('v_and_b32 v12, s100, v8')
        for x in S: A(f'v_sub_f32 v{x}, v{x}, v12')
        for x in S: A(f'v_mul_f32 v{x}, 0x3fb8aa3b, v{x}')
        for x in S: A(f'v_exp_f32 v{x}, v{x}')
        A('s_nop 0')
        n = len(S) // 2
        for k in range(n): A(f'v_cvt_pk_bf16_f32 v{PK+k}, v{S[2*k]}, v{S[2*k+1]}')
        A(f'v_add_f32 v14, v{S[0]}, v{S[1]}'); A(f'v_add_f32 v9, v{S[2]}, v{S[3]}')
        for k in range(4, len(S), 2):
            A(f'v_add_f32 v14, v14, v{S[k]}'); A(f'v_add_f32 v9, v9, v{S[k+1]}')
        A('v_add_f32 v14, v14, v9')
        self.ror_reduce('v_add_f32', [14], 8)
        self.xg_reduce('v_add_f32', [14], [9])
        if shared:
            A('s_mov_b64 exec, 0xff')
            A(f'ds_add_f32 v10, v14 offset:{L_LA}')
            A('s_mov_b64 exec, 1')
            A(f'ds_add_u32 v4, v6 offset:{C_L}')
            A('s_mov_b64 exec, -1')
        else:
            self.ml_store(1)
    def expand_p(self, PK):
        A = self.A
        for k in range(4): A(f'v_cndmask_b32 v{16+k}, 0, v{PK+k}, s[14:15]')
        for k in range(4): A(f'v_cndmask_b32 v{28+k}, v{PK+k}, 0, s[14:15]')
        for k in range(4): A(f'v_mov_b32_dpp v{24+k}, v{16+k} row_ror:8 row_mask:0xf bank_mask:0xf')
        for k in range(4): A(f'v_mov_b32_dpp v{20+k}, v{28+k} row_ror:8 row_mask:0xf bank_mask:0xf')
    def pv(self, vm):
        A = self.A
        tq = [48, 52]
        for T in range(2):
            if vm: A(f's_waitcnt vmcnt({2 if T == 0 else 0})')
            src = 64 + 32 * T
            self.perm_tile(src, 0, tq[0])
            for tt in range(8):
                if tt < 7: self.perm_tile(src, tt + 1, tq[(tt + 1) & 1])
                else: A('s_nop 1')
                q = tq[tt & 1]
                d = 32 + 4 * (tt & 3)
                p = (16 if tt < 4 else 24) + 4 * T
                A(f'v_mfma_f32_16x16x32_bf16 v[{d}:{d+3}], v[{q}:{q+3}], v[{p}:{p+3}], v[{d}:{d+3}]')
    def task_static(self):
        A = self.A
        for i in range(4): self.k_quarter(i, f's{96+i}')
        nb = self.newlab('NB')
        A('s_cmp_lt_u32 s3, 8'); A(f's_cbranch_scc1 {nb}')
        A('s_mov_b32 s56, s16'); A('s_mov_b32 s57, s17'); A('s_mov_b32 s58, 0x4000000'); A('s_mov_b32 s59, 0x20000')
        A('s_mov_b32 s60, s18'); A('s_mov_b32 s61, s19'); A('s_mov_b32 s62, 0x4000000'); A('s_mov_b32 s63, 0x20000')
        A('s_lshl_b32 s50, s22, 24'); A('s_lshl_b32 s48, s23, 14'); A('s_add_u32 s50, s50, s48'); A(f's_add_u32 s50, s50, {61440*256 - 8*4096}')
        A('s_lshl_b32 s48, s3, 12'); A('s_add_u32 s50, s50, s48')
        A(f's_add_u32 s48, s48, {L_B - 8*4096}')
        self.kdma(56)
        A(f's_add_u32 s48, s48, {16384 - 1920}')
        A('s_mov_b32 m0, s48'); A('s_nop 0')
        for j in range(4):
            A(f'buffer_load_dwordx4 v1, s[60:63], s50 offen offset:{1024*j} nt lds')
            A('s_nop 0')
        self.lab(nb)
        self.stamp(2)
        nq = self.newlab('NQ')
        A(f's_cmp_lg_u32 s3, {self.o["qw"]}'); A(f's_cbranch_scc1 {nq}')
        self.q_gather(0)
        self.stamp(9)
        self.lab(nq)
        self.lds_wait(F_QA, 1)
        self.tag()
        self.read_q(L_QA)
        kw = self.newlab('KW')
        A('s_waitcnt vmcnt(8)')
        A('s_cmp_ge_u32 s3, 8'); A(f's_cbranch_scc1 {kw}')
        A('s_waitcnt vmcnt(0)')
        self.lab(kw)
        self.stamp(3)
        S = list(range(24, 32))
        self.qk(list(range(8)), 32, S)
        self.rowmax(S)
        self.post_max()
        self.stamp(4)
        nqb = self.newlab('NQB')
        A('s_cmp_lg_u32 s3, 9'); A(f's_cbranch_scc1 {nqb}')
        self.q_gather(1)
        self.lab(nqb)
        young = self.newlab('Y')
        self.round_chain(S, 32)
        A(f's_cmp_ge_u32 s3, {self.o["oldv"]}')
        A(f's_cbranch_scc1 {young}')
        self.v_issue()
        self.stamp(10)
        self.lab(young)
        self.softmax(S, 32, True)
        self.expand_p(32)
        A('v_lshrrev_b32 v57, 10, v11')
        for x in range(32, 48): A(f'v_mov_b32 v{x}, 0')
        A('s_lshr_b32 s52, s3, 2')
        old = self.newlab('O'); noch = self.newlab('NC')
        A(f's_cmp_lt_u32 s3, {self.o["oldv"]}')
        A(f's_cbranch_scc1 {old}')
        nsb = self.newlab('NSB')
        A('s_cmp_lt_u32 s3, 8'); A(f's_cbranch_scc1 {nsb}')
        A('s_waitcnt vmcnt(0)')
        self.lds_inc(C_B)
        self.lab(nsb)
        self.v_issue(True)
        self.stamp(10)
        self.lab(old)
        A('s_cmp_eq_u32 s52, 0'); A(f's_cbranch_scc1 {noch}')
        self.lds_wait(F_CH, 's52', areg=57)
        for q in range(4): A(f'ds_read_b128 v[{32+4*q}:{35+4*q}], v11 offset:{L_CH + 1024*q}')
        self.lab(noch)
        self.stamp(6)
        A('s_waitcnt lgkmcnt(0)')
        self.pv(True)
        self.stamp(7)
        A('s_nop 7')
        for q in range(4): A(f'ds_write_b128 v11, v[{32+4*q}:{35+4*q}] offset:{L_CH + 1024*q}')
        self.lds_inc(F_CH, areg=57)

    def ticket_req(self):
        self.A('s_mov_b32 s66, 1'); self.A('s_mov_b32 s67, 0')
        self.A('s_atomic_add_x2 s[66:67], s[28:29], s53 glc')
    def wait3(self, a, b, c):
        A = self.A
        d = self.newlab('WT')
        A(f's_waitcnt vmcnt({a})')
        A('s_cmp_eq_u32 s65, 0'); A(f's_cbranch_scc1 {d}')
        A(f's_waitcnt vmcnt({b})')
        A('s_cmp_eq_u32 s65, 1'); A(f's_cbranch_scc1 {d}')
        A(f's_waitcnt vmcnt({c})')
        self.lab(d)
    def kdma(self, srd, need=None):
        A = self.A
        for j, (imm, adj) in enumerate(((0, 896), (128, 128), (1024, 896), (1152, 0))):
            if need == j:
                A('s_mov_b64 exec, 1'); A(f'ds_max_u32 v4, v62 offset:{NEED}'); A('s_mov_b64 exec, -1')
            A('s_mov_b32 m0, s48'); A(f's_add_u32 s48, s48, {adj}')
            A(f'buffer_load_dwordx4 v2, s[{srd}:{srd+3}], s50 offen offset:{imm} nt lds')

    def task_dynamic(self):
        A = self.A
        ns = self.o['ns']; shl = self.o.get('shl', 4); ntick = (16 - ns) << shl
        A('s_setprio 1')
        A('s_sub_u32 s52, s3, 12')
        A(f's_mul_i32 s27, s52, {3*4096}'); A(f's_add_u32 s27, s27, {L_KD}')
        A('v_add_u32 v63, s27, v1')
        for x in range(32, 48): A(f'v_mov_b32 v{x}, 0')
        A('v_mov_b32 v12, 0xf149f2ca'); A('v_mov_b32 v14, 0')
        A('v_lshrrev_b32 v57, 10, v11')
        A('v_mov_b32 v56, 0xffffff00')
        self.vS(58)
        A('v_lshl_add_u32 v59, v57, 8, v1')
        A('v_lshlrev_b32 v61, 3, v10'); A('v_lshl_add_u32 v60, v57, 1, v61')
        A(f's_lshr_b32 s53, s2, {shl}'); A('s_lshl_b32 s53, s53, 8'); A(f's_add_u32 s53, s53, {WS_T}')
        A(f's_lshr_b32 s48, s23, {shl}'); A(f's_lshl_b32 s48, s48, {16 + shl}'); A('s_add_u32 s26, s26, s48')
        A('s_lshl_b32 s48, s52, 12'); A('s_add_u32 s26, s26, s48'); A('s_sub_u32 s26, s26, 16384')
        A('v_mov_b32 v62, 0')
        A('s_waitcnt lgkmcnt(0)')
        self.tag()
        ni = self.newlab('NI')
        A(f's_and_b32 s48, s2, {(1 << shl) - 1}'); A('s_or_b32 s48, s48, s52'); A(f's_cbranch_scc1 {ni}')
        A('v_mov_b32 v5, s55')
        A('s_mov_b64 exec, 1')
        A('s_setprio 3')
        A('buffer_store_dwordx2 v[4:5], v4, s[44:47], s53 offen sc1')
        A('s_setprio 1')
        A('s_mov_b64 exec, -1')
        self.lab(ni)
        np_ = self.newlab('NPI')
        A('s_xor_b32 s48, s52, 1'); A('s_or_b32 s48, s48, s23'); A(f's_cbranch_scc1 {np_}')
        A('v_mov_b32 v5, s55'); A('v_lshlrev_b32 v8, 10, v0')
        A('s_lshl_b32 s48, s22, 8'); A(f's_add_u32 s48, s48, {WS_P}')
        A('s_mov_b64 exec, 3')
        A('s_setprio 3')
        A('buffer_store_dwordx2 v[4:5], v8, s[44:47], s48 offen sc1')
        A('s_setprio 1')
        A('s_mov_b64 exec, -1')
        self.lab(np_)
        self.stamp(2)
        A(f's_mul_i32 s56, s52, {8*IB}'); A('s_add_u32 s56, s56, s6')
        A('s_mov_b32 s21, 0')
        A('s_mov_b32 s64, 0')
        A('s_mov_b32 s65, 0')
        self.lab('L_dl')
        for b in range(3):
            rt = self.newlab('RT'); ok = self.newlab('OK'); pr = self.newlab('PR'); ex = self.newlab('EX'); dr = self.newlab('DR'); nx = self.newlab('NX'); nf = self.newlab('NF')
            A('s_cmp_lg_u32 s65, 0'); A(f's_cbranch_scc1 {dr}')
            self.lds_wait(L_T, 1, sleep=1, areg=62)
            A('v_add_u32 v62, 4, v62')
            A('s_sub_u32 s49, s48, 1')
            A(f's_cmp_ge_u32 s49, {ntick}'); A(f's_cbranch_scc1 {ex}')
            A('s_lshl_b32 s50, s48, 14'); A('s_add_u32 s50, s50, s26')
            A(f's_add_u32 s48, s27, {4096*b}')
            self.kdma(32, self.o.get('need', 0))
            for j in range(4):
                r = 80 + 16 * b + 4 * j
                A(f'buffer_load_dwordx4 v[{r}:{r+3}], v1, s[36:39], s50 offen offset:{1024*j} nt')
                A('s_nop 0')
            A('s_add_u32 s64, s64, 1')
            A(f's_branch {pr}')
            self.lab(ex)
            A('s_getpc_b64 s[62:63]')
            A('s_branch L_exh')
            self.lab(dr)
            A('s_add_u32 s65, s65, 1')
            A('s_cmp_gt_u32 s65, 2'); A('s_cbranch_scc1 L_dfin')
            self.lab(pr)
            A('s_cmp_lt_u32 s21, 2'); A(f's_cbranch_scc1 {nx}')
            A(f's_cbranch_scc0 {nf}') if False else None
            A('s_cmp_lg_u32 s21, 2'); A(f's_cbranch_scc1 {nf}')
            self.lds_wait(F_QA, 1)
            self.read_q(L_QA)
            self.lab(nf)
            pb = (b + 1) % 3
            self.wait3(20, 12, 4)
            for n in range(4): A(f'ds_read_b128 v[{64+4*n}:{67+4*n}], v63 offset:{4096*pb + 1024*n}')
            A('s_waitcnt lgkmcnt(0)')
            self.qk([0, 1], 48, [24, 25])
            self.round_chain([24, 25], 26)
            A('v_max3_f32 v8, v24, v25, v12')
            self.ror_reduce('v_max_f32', [8], 8)
            self.xg_reduce('v_max_f32', [8], [9])
            A('v_sub_f32 v9, v12, v8'); A('v_sub_f32 v24, v24, v8'); A('v_sub_f32 v25, v25, v8')
            A('v_mul_f32 v9, 0x3fb8aa3b, v9'); A('v_mul_f32 v24, 0x3fb8aa3b, v24'); A('v_mul_f32 v25, 0x3fb8aa3b, v25')
            A('v_exp_f32 v9, v9'); A('v_exp_f32 v24, v24'); A('v_exp_f32 v25, v25')
            A('v_mov_b32 v12, v8')
            A('v_cvt_pk_bf16_f32 v26, v24, v25')
            A('v_fma_f32 v14, v14, v9, v24')
            A('v_add_f32 v14, v14, v25')
            A('v_mov_b32_dpp v27, v26 row_ror:8 row_mask:0xf bank_mask:0xf')
            for x in range(32, 48): A(f'v_mul_f32 v{x}, v{x}, v9')
            A('v_cndmask_b32 v28, 0, v26, s[14:15]'); A('v_cndmask_b32 v29, 0, v27, s[14:15]')
            A('v_cndmask_b32 v30, v27, 0, s[14:15]'); A('v_cndmask_b32 v31, v26, 0, s[14:15]')
            self.wait3(16, 8, 0)
            vb = 80 + 16 * pb
            for tt in range(8):
                i, h = tt >> 1, tt & 1
                sel = 's31' if h else 's30'
                A(f'v_perm_b32 v{64+2*tt}, v{vb+4+i}, v{vb+i}, {sel}')
                A(f'v_perm_b32 v{65+2*tt}, v{vb+12+i}, v{vb+8+i}, {sel}')
            for tt in range(8):
                d = 32 + 4 * (tt & 3); p = 28 if tt < 4 else 30
                A(f'v_mfma_f32_16x16x16_bf16 v[{d}:{d+3}], v[{64+2*tt}:{65+2*tt}], v[{p}:{p+1}], v[{d}:{d+3}]')
            self.lab(nx)
            A('s_add_u32 s21, s21, 1')
        A('s_branch L_dl')
        self.lab('L_exh')
        self.stamp(10)
        A('s_setprio 2')
        A(f'ds_write_b32 v57, v6 offset:{F_EX}')
        self.lds_wait(F_CH, ns // 4, areg=57)
        for q in range(4): A(f'ds_read_b128 v[{64+4*q}:{67+4*q}], v11 offset:{L_CH + 1024*q}')
        A(f'ds_read_b32 v8, v10 offset:{L_MA}')
        self.lds_wait(C_L, ns)
        A(f'ds_read_b32 v13, v10 offset:{L_LA}')
        A('v_cvt_pk_bf16_f32 v8, v8, v8'); A('v_and_b32 v8, s100, v8'); A('v_mul_f32 v8, s101, v8')
        A('v_cvt_pk_bf16_f32 v8, v8, v8'); A('v_and_b32 v8, s100, v8')
        A('v_max_f32 v7, v8, v12')
        A('v_sub_f32 v9, v12, v7'); A('v_sub_f32 v8, v8, v7')
        A('v_mul_f32 v9, 0x3fb8aa3b, v9'); A('v_mul_f32 v8, 0x3fb8aa3b, v8')
        A('v_exp_f32 v9, v9'); A('v_exp_f32 v8, v8')
        A('v_mov_b32 v12, v7')
        A('s_waitcnt lgkmcnt(0)')
        A('v_mul_f32 v13, 0x3d000000, v13')
        A('v_mul_f32 v14, v14, v9')
        A('v_fmac_f32 v14, v13, v8')
        for x in range(32, 48): A(f'v_mul_f32 v{x}, v{x}, v9')
        for x in range(32, 48): A(f'v_fmac_f32 v{x}, v{x+32}, v8')
        A('v_mov_b32 v7, 0x3fb8aa3b')
        A('s_add_u32 s62, s62, 4'); A('s_addc_u32 s63, s63, 0')
        A('s_setpc_b64 s[62:63]')
        self.lab('L_dfin')
        A('s_setprio 3')
        self.stamp(7)
        A('s_nop 0')
        for q in range(4): A(f'ds_write_b128 v11, v[{32+4*q}:{35+4*q}] offset:{L_CH + 1024*q}')
        A('v_add_f32_dpp v13, v14, v14 row_ror:8 row_mask:0xf bank_mask:0xf')
        self.xg_reduce('v_add_f32', [13], [9])
        A(f'ds_write_b64 v60, v[12:13] offset:{L_M4}')
        self.lds_inc(C_D)
        A('v_mov_b32 v13, s55'); A('v_mov_b32 v15, s55')
        A('s_mov_b32 s49, 0x40000')
        self.lab('L_mw')
        A(f'ds_read_b32 v5, v4 offset:{C_D}')
        A(f'ds_read_b128 v[16:19], v61 offset:{L_M4}')
        A(f'ds_read_b128 v[20:23], v61 offset:{L_M4+16}')
        for w in range(4): A(f'ds_read_b128 v[{64+4*w}:{67+4*w}], v59 offset:{L_CH + 4096*w}')
        A('s_waitcnt lgkmcnt(6)')
        A('v_readfirstlane_b32 s48, v5')
        A('s_cmp_ge_u32 s48, 4'); A('s_cbranch_scc1 L_mwd')
        A('s_sub_u32 s49, s49, 1')
        A('s_cbranch_scc0 L_mw')
        self.lab('L_mwd')
        A('s_waitcnt lgkmcnt(4)')
        A('v_max3_f32 v12, v16, v18, v20'); A('v_max_f32 v12, v12, v22')
        A('v_mul_f32 v8, 0x3fb8aa3b, v12')
        for w in range(4): A(f'v_fma_f32 v{16+2*w}, v{16+2*w}, v7, -v8')
        for w in range(4): A(f'v_exp_f32 v{16+2*w}, v{16+2*w}')
        A('s_waitcnt lgkmcnt(0)')
        for e in range(4): A(f'v_mul_f32 v{32+e}, v{64+e}, v16')
        for w in range(1, 4):
            for e in range(4): A(f'v_fmac_f32 v{32+e}, v{64+4*w+e}, v{16+2*w}')
        self.embed(range(32, 36))
        self.stamp(5)
        A('buffer_store_dwordx4 v[32:35], v58, s[44:47], s56 offen sc1')
        A('s_cmp_lg_u32 s3, 12'); A('s_cbranch_scc1 L_noml')
        A('v_mul_f32 v14, v17, v16')
        for w in range(1, 4): A(f'v_fmac_f32 v14, v{17+2*w}, v{16+2*w}')
        A('s_mov_b64 exec, 0xffffffff')
        A('buffer_store_dwordx4 v[12:15], v58, s[44:47], s5 offen sc1')
        A('s_mov_b64 exec, -1')
        self.hint(0)
        self.lab('L_noml')
        self.lds_inc(C_O)
        self.stamp(8)
        if self.stamps:
            A('s_mul_i32 s70, s64, 100'); A('s_add_u32 s70, s70, s68'); A('s_mov_b32 s71, s69')
        A('s_branch L_fin')

    def hint(self, br):
        A = self.A
        A('s_lshl_b32 s48, s22, 8'); A(f's_add_u32 s48, s48, {WS_P + br * 1024}')
        A('s_mov_b32 s49, 1')
        A('s_atomic_add s49, s[28:29], s48')

    def task_b(self):
        A = self.A
        A(f'v_add_u32 v13, {L_B}, v1')
        self.lds_wait(C_B, 4)
        for n in range(16): A(f'ds_read_b128 v[{64+4*n}:{67+4*n}], v13 offset:{1024*n}')
        self.lds_wait(F_QB, 1)
        self.read_q(L_QB)
        S = list(range(24, 32))
        self.qk(list(range(8)), 32, S)
        self.rowmax(S)
        self.v_from_lds(13, 16384, range(4))
        self.round_chain(S, 32)
        self.softmax(S, 32, False)
        self.expand_p(32)
        A('v_mov_b32 v56, 0xffffff00')
        self.vS(58)
        self.op_offsets(1)
        for x in range(32, 48): A(f'v_mov_b32 v{x}, 0')
        A('s_waitcnt lgkmcnt(0)')
        self.pv(False)
        A('s_setprio 3')
        A('s_nop 6')
        self.embed(range(32, 48))
        for q in range(4):
            A(f'buffer_store_dwordx4 v[{32+4*q}:{35+4*q}], v58, s[44:47], s{56+q} offen sc1')
        self.hint(1)

    def proj_result(self):
        A = self.A
        for tt in (0, 4, 1, 5, 2, 6, 3, 7):
            A(f'v_mfma_f32_16x16x32_bf16 v[{24+4*tt}:{27+4*tt}], v[16:19], v[{96+4*tt}:{99+4*tt}], 0')
        A('s_nop 1')
        for k in range(4):
            d0 = 24 + 4 * k; d4 = 24 + 4 * (k + 4)
            A(f'v_cndmask_b32 v{d0+2}, v{d4+1}, v{d0}, s[14:15]')
            A(f'v_cndmask_b32 v{d0+3}, v{d0+1}, v{d4}, s[14:15]')
        A('s_mov_b64 exec, 0xffff')
        for k in range(4):
            d0 = 24 + 4 * k
            A(f'v_add_f32_dpp v{20+k}, v{d0+3}, v{d0+2} row_ror:8 row_mask:0xf bank_mask:0xf')

    def build(self):
        A = self.A; o = self.o
        L = self.L
        L.append(HEADER.rstrip())
        L.append(f'; @launch grid=(256,1,1) block=(1024,1,1) lds={LDS_BYTES}')
        L.append('.amdgcn_target "amdgcn-amd-amdhsa--gfx950"')
        L.append('.text')
        L.append(f'.globl {NAME}_kernel')
        L.append('.p2align 8')
        L.append(f'.type {NAME}_kernel,@function')
        L.append(f'{NAME}_kernel:')
        A('s_cmp_ge_u32 s2, 256')
        A('s_cbranch_scc1 L_end')
        A('s_load_dwordx16 s[4:19], s[0:1], 0')
        A('s_load_dwordx8 s[20:27], s[0:1], 64')
        A('s_load_dwordx2 s[28:29], s[0:1], 96')
        if self.stamps:
            for i in range(70, 96): A(f's_mov_b32 s{i}, 0')
        self.stamp(0)
        A('v_lshrrev_b32 v5, 6, v0')
        A('v_mov_b32 v4, 0')
        A('v_readfirstlane_b32 s3, v5')
        A('v_and_b32 v0, 63, v0')
        A('v_lshrrev_b32 v8, 4, v0')
        A('v_and_b32 v7, 7, v0')
        A('v_lshlrev_b32 v10, 2, v7')
        A('v_and_b32 v12, 8, v0')
        A('v_lshlrev_b32 v14, 15, v12'); A('v_lshl_add_u32 v14, v8, 16, v14'); A('v_lshl_add_u32 v14, v10, 2, v14')
        A('v_and_b32 v2, 1, v0'); A('v_lshlrev_b32 v15, 6, v2'); A('v_lshl_add_u32 v15, v8, 4, v15')
        A('s_and_b32 s49, s2, 1'); A('s_lshl_b32 s49, s49, 9'); A('s_lshl_b32 s48, s3, 6'); A('s_add_u32 s49, s49, s48')
        A('s_bfe_u32 s52, s2, 0x60001')
        A('s_lshl_b32 s48, s49, 13'); A('s_lshl_b32 s50, s52, 7'); A('s_add_u32 s48, s48, s50')
        A('s_lshl_b32 s49, s49, 1'); A('v_add_u32 v15, s49, v15')
        A('s_mov_b32 s42, 0x800000'); A('s_mov_b32 s43, 0x20000')
        A('s_setprio 2')
        A('s_cmp_lt_u32 s2, 128')
        A('s_waitcnt lgkmcnt(0)')
        A('s_cselect_b32 s40, s10, s20'); A('s_cselect_b32 s41, s11, s21')
        A('s_cselect_b32 s66, s4, s14');  A('s_cselect_b32 s67, s5, s15')
        A('s_cselect_b32 s10, s12, s22'); A('s_cselect_b32 s11, s13, s23')
        A('s_cmp_ge_u32 s3, 8')
        A('s_cbranch_scc1 L_nowq')
        for j in range(8):
            A(f'buffer_load_dwordx4 v[{64+4*j}:{67+4*j}], v14, s[40:43], s48 offen nt')
            if j < 7: A('s_add_u32 s48, s48, 8192')
        A('global_load_dwordx4 v[16:19], v15, s[66:67]')
        self.lab('L_nowq')
        if o.get('early'): self.stamp(13)
        A('v_mov_b32 v6, 1')
        A('v_lshlrev_b32 v1, 4, v0')
        A('v_and_b32 v57, 3, v5')
        A('v_lshl_add_u32 v11, v57, 12, v1')
        A('v_and_b32 v9, 15, v0')
        A('v_lshrrev_b32 v13, 2, v9')
        A('v_lshlrev_b32 v2, 4, v2')
        A('v_lshl_add_u32 v2, v13, 8, v2')
        A('v_lshl_add_u32 v2, v8, 5, v2')
        A('v_and_b32 v13, 2, v0')
        A('v_lshl_add_u32 v2, v13, 10, v2')
        A(f'v_mul_u32_u24 v3, {QSTR}, v7')
        A('v_lshl_add_u32 v3, v8, 5, v3')
        A('v_lshl_add_u32 v3, v12, 1, v3')
        A('s_mov_b32 s30, 0x05040100')
        A('s_mov_b32 s31, 0x07060302')
        A('s_mov_b32 s100, 0xffff0000')
        A('s_mov_b32 s101, 0x3db504f3')
        A('s_mov_b32 s32, s6');  A('s_mov_b32 s33, s7');  A('s_mov_b32 s34, 0x4000000'); A('s_mov_b32 s35, 0x20000')
        A('s_mov_b32 s36, s8');  A('s_mov_b32 s37, s9');  A('s_mov_b32 s38, 0x4000000'); A('s_mov_b32 s39, 0x20000')
        A('s_mov_b32 s44, s28'); A('s_mov_b32 s45, s29'); A(f's_mov_b32 s46, {WS_BYTES}'); A('s_mov_b32 s47, 0x20000')
        A('s_lshr_b32 s20, s2, 7')
        A('s_and_b32 s4, s2, 7'); A('s_bfe_u32 s7, s2, 0x30004'); A('s_lshl_b32 s7, s7, 3'); A('s_add_u32 s4, s4, s7')
        A('s_bfe_u32 s7, s2, 0x10003')
        A('s_lshr_b32 s22, s2, 6')
        A('s_and_b32 s23, s2, 63')
        A('s_mov_b32 s14, 0x00ff00ff'); A('s_mov_b32 s15, 0x00ff00ff')
        A('s_lshl_b32 s48, s23, 7')
        A(f's_mul_i32 s6, s22, {32*IB}'); A('s_add_u32 s6, s6, s48'); A(f's_add_u32 s6, s6, {WS_I1}')
        A(f's_mul_i32 s5, s22, {4*IB}'); A('s_add_u32 s5, s5, s48'); A(f's_add_u32 s5, s5, {WS_ML}')
        A('s_lshl_b32 s96, s22, 24')
        A('s_lshr_b32 s48, s3, 2'); A('s_add_u32 s48, s48, s22'); A('s_and_b32 s48, s48, 3'); A('s_lshl_b32 s48, s48, 22'); A('s_add_u32 s96, s96, s48')
        A('s_mov_b32 s26, s96')
        A('s_lshl_b32 s48, s23, 16'); A('s_add_u32 s96, s96, s48')
        A('s_and_b32 s48, s3, 3'); A('s_lshl_b32 s48, s48, 12'); A('s_add_u32 s96, s96, s48')
        A('s_add_u32 s97, s96, 16384'); A('s_add_u32 s98, s96, 32768'); A('s_add_u32 s99, s96, 49152')
        A('s_cmp_ge_u32 s3, 8')
        A('s_cbranch_scc1 L_young0')
        A('s_load_dword s54, s[28:29], 0')
        A('s_lshr_b32 s56, s2, 5'); A(f's_mul_i32 s56, s56, {4*IB}'); A('s_and_b32 s48, s2, 1'); A('s_lshl_b32 s48, s48, 12'); A('s_add_u32 s56, s56, s48')
        A('s_and_b32 s48, s52, 15'); A('s_lshl_b32 s48, s48, 8'); A('s_add_u32 s56, s56, s48'); A(f's_add_u32 s56, s56, {WS_Q}')
        A(f'v_mul_u32_u24 v60, {IB}, v8'); A('v_lshl_add_u32 v60, v9, 4, v60')
        A('v_lshlrev_b32 v7, 3, v10'); A('v_lshl_add_u32 v7, v12, 1, v7')
        A('s_lshl_b32 s48, s3, 8'); A('v_add_u32 v7, s48, v7')
        A('v_mov_b32 v56, 0xffffff00')
        A('s_barrier')
        if o.get('early'):
            self.stamp(8); A('s_waitcnt vmcnt(8)'); self.stamp(9)
        A('s_waitcnt vmcnt(0)')
        if o.get('early'): self.stamp(12); A('s_branch L_fin')
        for tt in range(8): self.perm_tile(64, tt, 96 + 4 * tt)
        A('s_nop 1')
        self.proj_result()
        A(f'ds_write_b128 v7, v[20:23] offset:{L_QS}')
        A('s_mov_b64 exec, -1')
        self.lds_inc_rtn(C_Q)
        self.stamp(1)
        self.tag()
        A('s_cmp_lg_u32 s48, 7')
        A('s_cbranch_scc1 L_task')
        A('s_setprio 3')
        for k in range(2): A(f'ds_read_b128 v[{32+4*k}:{35+4*k}], v1 offset:{L_QS + 1024*k}')
        A('s_waitcnt lgkmcnt(0)')
        for e in range(4): A(f'v_add_f32 v{32+e}, v{32+e}, v{36+e}')
        self.xg_reduce('v_add_f32', [32, 33, 34, 35], [36, 37, 38, 39])
        self.embed(range(32, 36))
        A('buffer_store_dwordx4 v[32:35], v60, s[44:47], s56 offen sc1')
        A('s_setprio 2')
        A('s_branch L_task')
        self.lab('L_young0')
        A('v_mov_b32 v5, 0xff800000')
        A('v_cmp_gt_u32 vcc, 16, v0')
        A('v_lshlrev_b32 v7, 2, v0')
        A('s_nop 0')
        A('v_cndmask_b32 v5, v4, v5, vcc')
        A(f'ds_write_b32 v7, v5 offset:{L_MISC}')
        A('s_lshl_b32 s48, s3, 8'); A('v_add_u32 v9, s48, v7')
        A(f'ds_write_b32 v9, v4 offset:{L_T - 2048}')
        A('s_waitcnt lgkmcnt(0)')
        A('s_barrier')
        A('s_load_dword s54, s[28:29], 0')
        if o.get('early'): self.stamp(8); A('s_branch L_fin')
        A('s_cmp_ge_u32 s3, 12')
        A('s_cbranch_scc1 L_dyn')
        if o['ns'] == 8:
            A('s_waitcnt lgkmcnt(0)'); self.tag(); A('s_branch L_c')
        self.lab('L_task')
        self.task_static()
        A('s_cmp_ge_u32 s3, 8')
        A('s_cbranch_scc1 L_c')
        A('s_cmp_lg_u32 s3, 0'); A('s_cbranch_scc1 L_nd')
        shl = o['shl']; ntick = (16 - o['ns']) << shl
        A(f's_lshr_b32 s53, s2, {shl}'); A('s_lshl_b32 s53, s53, 8'); A(f's_add_u32 s53, s53, {WS_T}')
        A('s_mov_b32 s52, 0'); A('s_mov_b32 s50, 0')
        A('s_setprio 3')
        self.lds_wait(F_GO, 1, sleep=2)
        self.lab('L_deal')
        A('s_mov_b32 s51, 0x8000')
        self.lab('L_drt')
        self.ticket_req()
        A('s_waitcnt lgkmcnt(0)')
        A('s_cmp_eq_u32 s67, s55'); A('s_cbranch_scc1 L_dok')
        A('s_sub_u32 s51, s51, 1'); A('s_cbranch_scc0 L_drt')
        A('s_mov_b32 s66, 0x10000')
        self.lab('L_dok')
        A('s_add_u32 s66, s66, 1')
        A('v_mov_b32 v8, s66'); A('v_mov_b32 v9, s52')
        A(f'ds_write_b32 v9, v8 offset:{L_T}')
        A(f's_cmp_gt_u32 s66, {ntick}'); A('s_cbranch_scc1 L_ddone')
        A('s_add_u32 s52, s52, 4')
        kap = o.get('kap', -1)
        S = 1 << shl
        if kap >= 0:
            A('s_sub_u32 s56, s66, s50')
            A('s_lshr_b32 s57, s66, 2'); A(f's_add_u32 s57, s57, {S}')
            A('s_cmp_eq_u32 s50, 0')
            A('s_cselect_b32 s56, s57, s56')
            A('s_mov_b32 s50, s66')
            A(f's_mul_i32 s57, s56, {kap + 2}'); A('s_lshr_b32 s57, s57, 1'); A('s_add_u32 s57, s57, s66')
            A(f's_cmp_le_u32 s56, {S + o.get("dm", 0)}'); A('s_cselect_b32 s57, 0, s57')
            A(f's_cmp_le_u32 s66, {S + 1}'); A('s_cselect_b32 s57, 0, s57')
            A('s_mov_b32 s66, 0x10000')
            A(f's_cmp_gt_u32 s57, {ntick + (kap * S) // 2}'); A('s_cbranch_scc1 L_dok')
        self.lds_wait(NEED, 's52', sleep=0)
        A('s_branch L_deal')
        self.lab('L_ddone')
        A('s_setprio 2')
        self.lab('L_nd')
        A('s_cmp_lg_u32 s3, 1'); A('s_cbranch_scc1 L_wo')
        self.task_b()
        A('s_setprio 2')
        A('v_lshrrev_b32 v57, 10, v11')
        self.stamp(9)
        self.lab('L_wo')
        A('s_mov_b32 s40, s10'); A('s_mov_b32 s41, s11')
        A('s_lshr_b32 s50, s4, 4'); A('s_lshl_b32 s50, s50, 10')
        A('s_and_b32 s51, s4, 3'); A('s_lshl_b32 s51, s51, 5'); A('s_add_u32 s50, s50, s51')
        A('s_bfe_u32 s51, s4, 0x20002'); A('s_add_u32 s50, s50, s51')
        A('s_lshl_b32 s50, s50, 11'); A('s_lshl_b32 s51, s7, 10'); A('s_add_u32 s50, s50, s51'); A('s_lshl_b32 s51, s3, 7'); A('s_add_u32 s50, s50, s51')
        A('v_lshrrev_b32 v8, 4, v0')
        A('v_lshlrev_b32 v58, 19, v8'); A('v_lshl_add_u32 v58, v10, 2, v58'); A('v_and_b32 v5, 8, v0'); A('v_lshl_add_u32 v58, v5, 10, v58')
        A('v_mov_b32 v56, 0xffffff00'); A('v_mov_b32 v61, v5')
        ge = self.newlab('GE')
        if o['woe']:
            A(f's_cmp_lt_u32 s3, {o["woe"]}'); A(f's_cbranch_scc1 {ge}')
        self.lds_wait(F_EX, 1, sleep=2, areg=57)
        A('s_setprio 0')
        self.lab(ge)
        for j in range(8):
            A(f'buffer_load_dwordx4 v[{64+4*j}:{67+4*j}], v58, s[40:43], s50 offen nt')
            if j < 7: A(f's_add_u32 s50, s50, {16384 if j != 3 else (128 - 24) * 2048}')
        self.stamp(11)
        A('s_setprio 2')
        self.lds_inc(C_W)
        A('v_and_b32 v60, 1, v0'); A('v_lshlrev_b32 v60, 6, v60'); A('v_lshl_add_u32 v60, v8, 4, v60')
        A('v_bfe_u32 v59, v0, 2, 1'); A(f'v_mul_u32_u24 v59, {IB}, v59')
        A('v_and_b32 v7, 3, v0'); A('v_lshl_add_u32 v59, v7, 5, v59'); A('v_lshl_add_u32 v59, v61, 1, v59')
        A('s_lshl_b32 s53, s20, 5'); A('s_lshl_b32 s48, s7, 4'); A('s_add_u32 s53, s53, s48'); A('s_lshl_b32 s48, s3, 1'); A('s_add_u32 s53, s53, s48')
        A(f's_mul_i32 s53, s53, {IB}'); A('s_lshl_b32 s48, s4, 7'); A('s_add_u32 s53, s53, s48'); A(f's_add_u32 s53, s53, {WS_I2}')
        A('s_waitcnt vmcnt(0)')
        A('s_mov_b64 exec, 1'); A(f'ds_add_u32 v4, v6 offset:{C_W}'); A(f'ds_add_u32 v4, v6 offset:{F_X3}'); A('s_mov_b64 exec, -1')
        for tt in range(8): self.perm_tile(64, tt, 96 + 4 * tt)
        self.stamp(12)
        if o.get('notail'): A('s_branch L_fin')
        if o.get('pt', 0) & 1:
            A('s_lshl_b32 s48, s4, 7'); A('s_sub_u32 s48, s53, s48'); A('s_add_u32 s48, s48, 8192')
            A('s_mov_b64 exec, 0x11')
            A('buffer_load_dword v62, v59, s[44:47], s48 offen')
            A('s_mov_b64 exec, -1')
        A('s_mov_b32 s49, 0x40000')
        self.lab('L_ow')
        A(f'ds_read_b32 v5, v4 offset:{F_O}')
        A(f'ds_read_b128 v[16:19], v60 offset:{L_O}')
        A('s_waitcnt lgkmcnt(0)')
        A('v_readfirstlane_b32 s48, v5')
        A('s_cmp_ge_u32 s48, 2'); A('s_cbranch_scc1 L_owd')
        A('s_sub_u32 s49, s49, 1')
        A('s_cbranch_scc0 L_ow')
        self.lab('L_owd')
        self.proj_result()
        self.embed(range(20, 24))
        A('buffer_store_dwordx4 v[20:23], v59, s[44:47], s53 offen sc1')
        A('s_mov_b64 exec, -1')
        if o.get('rs', 2) == 3:
            A('s_waitcnt vmcnt(0)')
            self.lds_inc(C_W)
        self.stamp(13)
        A('s_branch L_fin')
        self.lab('L_dyn')
        self.task_dynamic()
        self.lab('L_c')
        A('s_cmp_eq_u32 s3, 11')
        A('s_cbranch_scc1 L_red')
        A('s_cmp_lg_u32 s3, 8')
        A('s_cbranch_scc1 L_comb')
        if o.get('notail') or not o.get('hint', 0): A('s_branch L_fin')
        A('s_lshr_b32 s40, s4, 4'); A('s_lshl_b32 s41, s20, 2'); A('s_add_u32 s40, s40, s41'); A('s_lshl_b32 s40, s40, 8'); A(f's_add_u32 s40, s40, {WS_P}')
        A('v_mov_b32 v13, 16'); A('s_mov_b32 s50, 0x8000')
        A('s_cmp_lg_u32 s20, 0'); A('s_cbranch_scc1 L_hp')
        self.lds_wait(C_O, 4, sleep=2)
        self.lab('L_hp')
        A('s_load_dwordx2 s[56:57], s[28:29], s40 glc')
        A(f'ds_read_b32 v5, v4 offset:{C_W}')
        A('s_waitcnt lgkmcnt(0)')
        A('v_readfirstlane_b32 s48, v5')
        A('s_cmp_ge_u32 s48, 16'); A('s_cbranch_scc1 L_fin')
        A('s_cmp_lg_u32 s57, s55'); A('s_cbranch_scc1 L_fin')
        A(f's_cmp_ge_u32 s56, {o.get("hn", 64)}'); A('s_cbranch_scc1 L_hok')
        A(f's_sleep {o.get("hs", 4)}')
        A('s_sub_u32 s50, s50, 1')
        A('s_cbranch_scc0 L_hp')
        self.lab('L_hok')
        A('s_mov_b64 exec, 1')
        A(f'ds_add_u32 v4, v13 offset:{C_W}')
        A('s_mov_b64 exec, -1')
        self.stamp(9)
        A('s_branch L_fin')
        self.lab('L_comb')
        if o.get('notail'): A('s_branch L_fin')
        A('s_lshr_b32 s40, s4, 4'); A('s_lshl_b32 s41, s20, 2'); A('s_add_u32 s40, s40, s41')
        A('s_lshl_b32 s41, s40, 2'); A('s_and_b32 s42, s2, 3'); A('s_add_u32 s41, s41, s42'); A(f's_mul_i32 s41, s41, {IB}'); A(f's_add_u32 s41, s41, {WS_ML}')
        A('s_lshl_b32 s40, s40, 5'); A('s_and_b32 s42, s4, 15'); A('s_lshl_b32 s42, s42, 1'); A('s_add_u32 s40, s40, s42')
        A('s_and_b32 s42, s3, 1'); A('s_add_u32 s40, s40, s42'); A(f's_mul_i32 s40, s40, {IB}'); A(f's_add_u32 s40, s40, {WS_I1}')
        A('s_lshl_b32 s42, s42, 6'); A('v_lshlrev_b32 v12, 3, v0'); A('v_add_u32 v12, s42, v12')
        A('s_add_u32 s42, s41, 4096'); A('s_add_u32 s43, s40, 4096')
        A('v_mov_b32 v15, 0xff'); A('v_mov_b32 v14, 0x3fb8aa3b')
        self.lds_wait(C_W, o.get('cw', 16), sleep=1)
        pass
        self.stamp(11)
        M = [96 + 4 * k for k in range(8)]
        self.mgather([(96, 's41', 's42', True), (64, 's40', 's43', False)])
        self.stamp(12)
        A(f'v_max3_f32 v32, v{M[0]}, v{M[1]}, v{M[2]}'); A(f'v_max3_f32 v33, v{M[3]}, v{M[4]}, v{M[5]}'); A(f'v_max3_f32 v32, v32, v{M[6]}, v{M[7]}'); A('v_max_f32 v32, v32, v33')
        self.ror_reduce('v_max_f32', [32], 8)
        self.xg_reduce('v_max_f32', [32], [33])
        A('v_mul_f32 v32, 0x3fb8aa3b, v32')
        for k in range(8): A(f'v_fma_f32 v{16+k}, v{M[k]}, v14, -v32')
        for k in range(8): A(f'v_exp_f32 v{16+k}, v{16+k}')
        A(f'v_mul_f32 v36, v16, v{M[0]+2}')
        for k in range(1, 8): A(f'v_fmac_f32 v36, v{16+k}, v{M[k]+2}')
        for e in range(4): A(f'v_mul_f32 v{32+e}, v16, v{64+e}')
        for k in range(1, 8):
            for e in range(4): A(f'v_fmac_f32 v{32+e}, v{16+k}, v{64+4*k+e}')
        self.ror_reduce('v_add_f32', [36, 32, 33, 34, 35], 8)
        self.xg_reduce('v_add_f32', [36, 32, 33, 34, 35], [41, 37, 38, 39, 40])
        A('v_rcp_f32 v37, v36')
        A('s_nop 0')
        A('v_fma_f32 v38, -v36, v37, 1.0')
        A('v_fma_f32 v37, v38, v37, v37')
        for e in range(4): A(f'v_mul_f32 v{32+e}, v{32+e}, v37')
        A('v_cvt_pk_bf16_f32 v32, v32, v33'); A('v_cvt_pk_bf16_f32 v33, v34, v35')
        A('s_mov_b64 exec, 0xff')
        A(f'ds_write_b64 v12, v[32:33] offset:{L_O}')
        A('s_mov_b64 exec, 1')
        A(f'ds_add_u32 v4, v6 offset:{F_O}')
        A('s_mov_b64 exec, -1')
        self.stamp(13)
        A('s_branch L_fin')
        self.lab('L_red')
        if o.get('notail'):
            A('s_cmp_lg_u32 s2, 0'); A('s_cbranch_scc1 L_fin')
            self.lds_wait(C_O, 4)
            A('v_mov_b32 v13, s55'); A('s_mov_b64 exec, 1'); A('global_store_dword v4, v13, s[28:29]'); A('s_mov_b64 exec, -1')
            A('s_branch L_fin')
        A('s_bfe_u32 s40, s2, 0x20003'); A('s_cmp_lg_u32 s40, 0')
        A('s_cbranch_scc1 L_fin')
        A('s_lshr_b32 s40, s2, 5'); A('s_lshl_b32 s40, s40, 3'); A('s_and_b32 s41, s2, 7'); A('s_add_u32 s40, s40, s41')
        A('s_lshl_b32 s42, s40, 6'); A('v_lshlrev_b32 v12, 3, v0'); A('v_add_u32 v12, s42, v12')
        A(f's_mul_i32 s40, s40, {IB}'); A(f's_add_u32 s40, s40, {WS_I2}')
        A('v_mov_b32 v13, s55'); A('v_mov_b32 v15, 0xff'); A('s_add_u32 s43, s40, 4096')
        rs = o.get('rs', 2)
        if rs == 0: self.lds_wait(F_O, 2, sleep=2)
        elif rs == 1: self.lds_wait(C_W, 16, sleep=2)
        elif rs == 2:
            self.lds_wait(C_O, 4, sleep=2)
            for k in range(8): A(f'buffer_load_dwordx4 v[{64+4*k}:{67+4*k}], v1, s[44:47], {"s40" if k < 4 else "s43"} offen offset:{1024*(k&3)} sc1')
            A('s_waitcnt vmcnt(0)')
            self.lds_wait(F_X3, 8, sleep=1)
            if o.get('pt', 0) & 2:
                A('s_mov_b64 exec, 1'); A('global_load_dword v62, v12, s[24:25]'); A('s_mov_b64 exec, -1')
            self.lds_wait(F_O, 2, sleep=1)
        elif rs == 3:
            self.lds_wait(C_W, 24, sleep=1)
        self.stamp(11)
        self.mgather([(64, 's40', 's43', False)])
        self.stamp(12)
        for k in range(4):
            for e in (0, 2): A(f'v_pk_add_f32 v[{40+4*k+e}:{41+4*k+e}], v[{64+4*k+e}:{65+4*k+e}], v[{80+4*k+e}:{81+4*k+e}]')
        for k in range(2):
            for e in (0, 2): A(f'v_pk_add_f32 v[{40+4*k+e}:{41+4*k+e}], v[{40+4*k+e}:{41+4*k+e}], v[{48+4*k+e}:{49+4*k+e}]')
        for e in (0, 2): A(f'v_pk_add_f32 v[{40+e}:{41+e}], v[{40+e}:{41+e}], v[{44+e}:{45+e}]')
        self.ror_reduce('v_add_f32', [40, 41, 42, 43], 8)
        self.xg_reduce('v_add_f32', [40, 41, 42, 43], [36, 37, 38, 39])
        A('v_cvt_pk_bf16_f32 v32, v40, v41'); A('v_cvt_pk_bf16_f32 v33, v42, v43')
        A('s_mov_b64 exec, 0xff')
        A('global_store_dwordx2 v12, v[32:33], s[24:25]')
        A('s_cmp_lg_u32 s2, 0')
        A('s_cbranch_scc1 L_nogen')
        A('s_mov_b64 exec, 1')
        A('global_store_dword v4, v13, s[28:29]')
        self.lab('L_nogen')
        A('s_mov_b64 exec, -1')
        self.stamp(13)
        if o.get('spin'):
            self.lab('L_spin')
            A('s_memrealtime s[60:61]'); A('s_waitcnt lgkmcnt(0)'); A('s_sub_u32 s60, s60, s68'); A(f's_cmp_lt_u32 s60, {o["spin"]}'); A('s_cbranch_scc1 L_spin')
            A('s_branch L_end')
        if o.get('dbgt'):
            A('s_load_dwordx2 s[60:61], s[0:1], 88')
            A('s_waitcnt lgkmcnt(0)')
            A('s_sub_u32 s48, s94, s68'); A('v_mov_b32 v20, s48')
            A('s_lshr_b32 s48, s2, 5'); A('s_lshl_b32 s48, s48, 1'); A('s_and_b32 s49, s2, 7'); A('s_cmp_ge_u32 s49, 2'); A('s_cbranch_scc1 L_end')
            A('s_add_u32 s48, s48, s49'); A('s_lshl_b32 s48, s48, 2'); A('v_mov_b32 v7, s48')
            A('s_mov_b64 exec, 1')
            A('global_store_dword v7, v20, s[60:61]')
            A('s_branch L_end')
        if not o.get('lite'): self.lab('L_fin')
        if self.stamps:
            A('s_waitcnt vmcnt(0) lgkmcnt(0)')
            A('s_getreg_b32 s48, hwreg(HW_REG_XCC_ID)')
            A('s_getreg_b32 s49, hwreg(HW_REG_HW_ID)')
            for i in range(28): A(f'v_writelane_b32 v20, s{68+i}, {i}')
            A('v_writelane_b32 v20, s48, 28')
            A('v_writelane_b32 v20, s49, 29')
            A('s_lshl_b32 s48, s2, 4'); A('s_add_u32 s48, s48, s3'); A('s_lshl_b32 s48, s48, 7'); A(f's_add_u32 s48, s48, {STAMP_OFF}')
            A('v_lshlrev_b32 v7, 2, v0'); A('v_add_u32 v7, s48, v7')
            A('s_mov_b64 exec, 0xffffffff')
            A('global_store_dword v7, v20, s[28:29]')
        if o.get('lite'): self.lab('L_fin')
        self.lab('L_end')
        A('s_endpgm')
        L.append('.section .rodata,"a"')
        L.append('.p2align 6')
        L.append(f'.amdhsa_kernel {NAME}_kernel')
        L.append('  .amdhsa_next_free_vgpr 128')
        L.append('  .amdhsa_next_free_sgpr 102')
        L.append('  .amdhsa_accum_offset 128')
        L.append('  .amdhsa_group_segment_fixed_size 0')
        L.append('  .amdhsa_kernarg_size 104')
        L.append('  .amdhsa_user_sgpr_count 2')
        L.append('  .amdhsa_user_sgpr_kernarg_segment_ptr 1')
        L.append('  .amdhsa_system_sgpr_workgroup_id_x 1')
        L.append('.end_amdhsa_kernel')
        return '\n'.join(L) + '\n'

if __name__ == '__main__':
    out = sys.argv[1]
    stamps = 'stamps' in sys.argv[2:]
    opts = {}
    for a in sys.argv[2:]:
        if '=' in a:
            k, v = a.split('='); opts[k] = int(v)
    open(out, 'w').write(Gen(stamps, opts).build())
```

```python
import sys
NAME = 'concat_heads__gqa_block_cached__sliding_block_cached__decode'

HEADER = open('cdna_kernels/' + NAME + '.s.ref').read().split('; Override launch')[0]

IB = 8448
WS_T = 0x1000
WS_P = 0x3000
WS_Q = 0x4000
WS_ML = 0x50000
WS_I1 = 0xA0000
WS_I2 = 0x2C0000
WS_BYTES = 0x400000
STAMP_OFF = 0x10000000
L_CH, L_QS, L_QA, L_QB, L_MISC = 0, 16384, 20480, 22784, 25088
QSTR = 272
L_MA, L_LA = L_MISC, L_MISC + 64
L_C = L_MISC + 128
C_Q, C_M, C_O, C_L, F_QA, F_QB, F_O, C_B, C_D, C_W, F_X2, F_X3, F_CH = [L_C + 4 * i for i in range(13)]
F_GO = L_C + 80
F_EX = L_C + 64
L_O = L_MISC + 256
L_M4 = L_MISC + 384
L_T = L_MISC + 1024
NEED = F_X2
WGL = L_C + 96
L_B = L_T + 2048
L_KD = L_B + 32768
LDS_BYTES = L_KD + 4 * 3 * 4096

class Gen:
    def __init__(self, stamps=False, opts=None):
        self.L = []
        self.stamps = stamps
        self.nlab = 0
        self.o = dict(qw=4, oldv=8, ns=12, woe=0, shl=5, rk=8, rk2=20, eg=64)
        if opts: self.o.update(opts)
    def A(self, s):
        dr = self.o.get('drop', 0)
        if s.startswith('buffer_store'):
            if 'v58' in s and self.o.get('inB') and dr & 1: return
            if 'v58' in s and not self.o.get('inB') and dr & 2: return
            if 'v[12:15]' in s and dr & 4: return
            if 'v60' in s and dr & 8: return
        if s: self.L.append('    ' + s)
    def lab(self, s): self.L.append(s + ':')
    def newlab(self, p='L'):
        self.nlab += 1
        return f'{p}_{self.nlab}'
    def stamp(self, i):
        if self.o.get('lite') and i not in (0, 13): return
        if self.stamps: self.A(f's_memrealtime s[{68+2*i}:{69+2*i}]')

    def lds_wait(self, addr, val, sleep=1, areg=4):
        A = self.A
        l = self.newlab('W'); d = self.newlab('D')
        A('s_mov_b32 s49, 0x40000')
        self.lab(l)
        A(f'ds_read_b32 v5, v{areg} offset:{addr}')
        A('s_waitcnt lgkmcnt(0)')
        A('v_readfirstlane_b32 s48, v5')
        A(f's_cmp_ge_u32 s48, {val}')
        A(f's_cbranch_scc1 {d}')
        if sleep: A(f's_sleep {sleep}')
        A('s_sub_u32 s49, s49, 1')
        A(f's_cbranch_scc0 {l}')
        self.lab(d)
    def lds_inc(self, addr, areg=4):
        A = self.A
        A('s_mov_b64 exec, 1')
        A(f'ds_add_u32 v{areg}, v6 offset:{addr}')
        A('s_mov_b64 exec, -1')
    def lds_inc_rtn(self, addr):
        A = self.A
        A('s_mov_b64 exec, 1')
        A(f'ds_add_rtn_u32 v5, v4, v6 offset:{addr}')
        A('s_mov_b64 exec, -1')
        A('s_waitcnt lgkmcnt(0)')
        A('v_readfirstlane_b32 s48, v5')
    def tag(self):
        A = self.A
        A('s_and_b32 s55, s54, 0x7f7f7f7f'); A('s_add_u32 s55, s55, 0x35172b4d'); A('s_and_b32 s8, s54, 0x80808080'); A('s_xor_b32 s55, s55, s8')
        A('s_and_b32 s8, s55, 0xff'); A('s_bfe_u32 s9, s55, 0x80008'); A('s_bfe_u32 s12, s55, 0x80010'); A('s_lshr_b32 s13, s55, 24')
    TB = ['s8', 's9', 's12', 's13']
    def embed(self, regs):
        for r in regs: self.A(f'v_and_or_b32 v{r}, v{r}, v56, {self.TB[r & 3]}')

    def perm_tile(self, src, tt, dst):
        i, h = tt >> 1, tt & 1
        sel = 's31' if h else 's30'
        for jp in range(4):
            self.A(f'v_perm_b32 v{dst+jp}, v{src+4*(2*jp+1)+i}, v{src+4*(2*jp)+i}, {sel}')

    def xg_reduce(self, op, regs, tmps):
        A = self.A
        for sw in ('v_permlane16_swap_b32', 'v_permlane32_swap_b32'):
            for r, t in zip(regs, tmps): A(f'v_mov_b32 v{t}, v{r}')
            A('s_nop 1')
            for r, t in zip(regs, tmps): A(f'{sw} v{r}, v{t}')
            A('s_nop 1')
            for r, t in zip(regs, tmps): A(f'{op} v{r}, v{r}, v{t}')
    def ror_reduce(self, op, regs, n):
        A = self.A
        A('s_nop 1')
        for r in regs: A(f'{op}_dpp v{r}, v{r}, v{r} row_ror:{n} row_mask:0xf bank_mask:0xf')

    def gather(self, dst, sbase, N, tagged):
        A = self.A
        l = self.newlab('G'); d = self.newlab('GD')
        A('s_setprio 3')
        A(f's_add_u32 s51, {sbase}, 4096')
        A('s_mov_b32 s49, 0x8000')
        self.lab(l)
        for k in range(N):
            r = dst + 4 * k
            A(f'buffer_load_dwordx4 v[{r}:{r+3}], v1, s[44:47], {sbase if k < 4 else "s51"} offen offset:{1024*(k&3)} sc1')
        for k in range(N):
            r = dst + 4 * k
            A(f's_waitcnt vmcnt({N-1-k})')
            if tagged:
                if k == 0:
                    A(f'v_min_u32 v5, v{r+1}, v{r+3}'); A(f'v_max_u32 v7, v{r+1}, v{r+3}')
                else:
                    A(f'v_min3_u32 v5, v5, v{r+1}, v{r+3}'); A(f'v_max3_u32 v7, v7, v{r+1}, v{r+3}')
            else:
                if k == 0:
                    A(f'v_xor_b32 v5, s8, v{r}'); A(f'v_xor_b32 v7, s9, v{r+1}')
                else:
                    A(f'v_bitop3_b32 v5, s8, v5, v{r} bitop3:0xde'); A(f'v_bitop3_b32 v7, s9, v7, v{r+1} bitop3:0xde')
                A(f'v_bitop3_b32 v5, s12, v5, v{r+2} bitop3:0xde'); A(f'v_bitop3_b32 v7, s13, v7, v{r+3} bitop3:0xde')
        if tagged:
            A('v_cmp_ne_u32 vcc, s55, v5')
            A('v_cmp_ne_u32 s[66:67], s55, v7')
            A('s_or_b64 s[66:67], s[66:67], vcc')
            A(f's_cbranch_scc0 {d}')
        else:
            A('v_or_b32 v5, v5, v7')
            A('v_and_b32 v5, 0xff, v5')
            A('v_cmp_ne_u32 vcc, 0, v5')
            A(f's_cbranch_vccz {d}')
        A('s_sub_u32 s49, s49, 1')
        A(f's_cbranch_scc0 {l}')
        self.lab(d)

    MK = [50, 52, 56, 58, 60, 62, 64, 66]
    def mgather(self, sets):
        A = self.A
        l = self.newlab('MG'); d = self.newlab('MGD')
        A('s_setprio 3')
        for k in range(8):
            for dst, lo, hi, tg in sets:
                A(f'buffer_load_dwordx4 v[{dst+4*k}:{dst+4*k+3}], v1, s[44:47], {lo if k < 4 else hi} offen offset:{1024*(k&3)} sc1')
        def check(k):
            first = True
            for dst, lo, hi, tg in sets:
                r = dst + 4 * k
                if tg:
                    A(f'v_xor_b32 v7, s55, v{r+1}'); A(f'v_bitop3_b32 v7, s55, v7, v{r+3} bitop3:0xde')
                else:
                    A(f'v_xor_b32 v5, s8, v{r}'); A(f'v_bitop3_b32 v5, s9, v5, v{r+1} bitop3:0xde')
                    A(f'v_bitop3_b32 v5, s12, v5, v{r+2} bitop3:0xde'); A(f'v_bitop3_b32 v5, s13, v5, v{r+3} bitop3:0xde')
            if len(sets) == 2: A('v_and_or_b32 v5, v5, v15, v7')
            else: A('v_and_b32 v5, v5, v15')
            m = self.MK[k]
            A(f'v_cmp_ne_u32 s[{m}:{m+1}], 0, v5')
        n = len(sets)
        for k in range(8):
            A(f's_waitcnt vmcnt({(7-k)*n})')
            check(k)
        A('s_mov_b32 s49, 0x40000')
        self.lab(l)
        A('s_or_b64 vcc, s[50:51], s[52:53]')
        for k in range(2, 8): A(f's_or_b64 vcc, vcc, s[{self.MK[k]}:{self.MK[k]+1}]')
        A(f's_cbranch_scc0 {d}')
        for k in range(8):
            sk = self.newlab('MS'); m = self.MK[k]
            A(f's_mov_b64 exec, s[{m}:{m+1}]')
            A(f's_cbranch_execz {sk}')
            for dst, lo, hi, tg in sets:
                A(f'buffer_load_dwordx4 v[{dst+4*k}:{dst+4*k+3}], v1, s[44:47], {lo if k < 4 else hi} offen offset:{1024*(k&3)} sc1')
            self.lab(sk)
        A('s_mov_b64 exec, -1')
        A(f's_waitcnt vmcnt({self.o.get("pp", 0)})')
        for k in range(8):
            sk = self.newlab('MC'); m = self.MK[k]
            A(f's_cmp_eq_u64 s[{m}:{m+1}], 0')
            A(f's_cbranch_scc1 {sk}')
            check(k)
            self.lab(sk)
        A('s_sub_u32 s49, s49, 1')
        A(f's_cbranch_scc0 {l}')
        self.lab(d)

    def q_gather(self, br):
        A = self.A
        if self.o.get('drop', 0) & 8 or (br and self.o.get('drop', 0) & 16):
            A(f'ds_write_b32 v4, v6 offset:{F_QB if br else F_QA}')
            return
        A('v_lshrrev_b32 v8, 5, v0'); A('v_and_b32 v5, 31, v0')
        A(f'v_mul_u32_u24 v8, {QSTR}, v8'); A('v_lshl_add_u32 v8, v5, 3, v8')
        A('s_lshl_b32 s52, s22, 2'); A('s_and_b32 s51, s2, 3'); A('s_add_u32 s52, s52, s51')
        A(f's_mul_i32 s52, s52, {IB}'); A(f's_add_u32 s52, s52, {WS_Q + br * 16 * IB}')
        self.gather(32, 's52', 8, False)
        for k in range(4):
            r = 32 + 4 * k
            for e in range(4): A(f'v_add_f32 v{r+e}, v{r+e}, v{r+16+e}')
            A(f'v_cvt_pk_bf16_f32 v{r}, v{r}, v{r+1}'); A(f'v_cvt_pk_bf16_f32 v{r+1}, v{r+2}, v{r+3}')
            A(f'ds_write_b64 v8, v[{r}:{r+1}] offset:{(L_QB if br else L_QA) + 2*QSTR*k}')
        A(f'ds_write_b32 v4, v6 offset:{F_QB if br else F_QA}')
        A('s_setprio 2')

    def k_quarter(self, i, soff):
        for nn in range(2):
            for hf in range(2):
                r = 64 + 16 * i + 8 * nn + 4 * hf
                self.A(f'buffer_load_dwordx4 v[{r}:{r+3}], v2, s[32:35], {soff} offen offset:{1024*nn+128*hf} nt')
                self.A('s_nop 0')
    def v_issue(self, sig=False):
        self.A('s_setprio 1')
        for i in range(4):
            if sig and i == self.o.get('go', 2):
                sk = self.newlab('GO')
                self.A('s_cmp_lt_u32 s3, 8'); self.A(f's_cbranch_scc1 {sk}')
                self.A(f'ds_write_b32 v4, v6 offset:{F_GO}')
                self.lab(sk)
            for T in range(2):
                for nn in range(2):
                    r = 64 + 32 * T + 4 * (2 * i + nn)
                    self.A(f'buffer_load_dwordx4 v[{r}:{r+3}], v1, s[36:39], s{96+i} offen offset:{2048*T+1024*nn} nt')
                    self.A('s_nop 0')
        self.A('s_setprio 2')
    def v_from_lds(self, areg, base, quarters):
        for i in quarters:
            for T in range(2):
                for nn in range(2):
                    r = 64 + 32 * T + 4 * (2 * (i & 3) + nn)
                    self.A(f'ds_read_b128 v[{r}:{r+3}], v{areg} offset:{base + 4096*i + 2048*T + 1024*nn}')
    def vS(self, reg):
        A = self.A
        A(f'v_lshrrev_b32 v{reg}, 3, v0'); A(f'v_mul_u32_u24 v{reg}, {IB}, v{reg}'); A(f'v_lshl_add_u32 v{reg}, v10, 2, v{reg}')
    def ml_store(self, br):
        A = self.A
        A('s_setprio 3')
        A('v_mov_b32 v13, s55'); A('v_mov_b32 v15, s55')
        self.vS(7)
        if br: A(f's_add_u32 s5, s5, {16*IB}')
        A('s_mov_b64 exec, 0xffffffff')
        A(f'buffer_store_dwordx4 v[12:15], v7, s[44:47], s5 offen sc1')
        A('s_mov_b64 exec, -1')
        A('s_setprio 2')
    def op_offsets(self, br):
        for q in range(4): self.A(f's_add_u32 s{56+q}, s6, {br * 128 * IB + 8 * q * IB}')
    def read_q(self, LQ):
        for hf in range(2):
            self.A(f'ds_read_b128 v[{16+4*hf}:{19+4*hf}], v3 offset:{LQ + 128*hf}')
        self.A('s_waitcnt lgkmcnt(0)')
    def qk(self, blocks, D0, R):
        A = self.A
        N = len(blocks)
        for hf in range(2):
            for i, n in enumerate(blocks):
                r = 64 + 8 * n + 4 * hf; d = D0 + 4 * i
                c = '0' if hf == 0 else f'v[{d}:{d+3}]'
                A(f'v_mfma_f32_16x16x32_bf16 v[{d}:{d+3}], v[{r}:{r+3}], v[{16+4*hf}:{19+4*hf}], {c}')
        A(f's_nop {max(0, 8 - N)}')
        for i in range(N):
            d = D0 + 4 * i
            A(f'v_cndmask_b32 v{d}, v{d+3}, v{d}, s[14:15]')
            A(f'v_cndmask_b32 v{d+1}, v{d+1}, v{d+2}, s[14:15]')
        if N < 3: A('s_nop 1')
        for i in range(N):
            d = D0 + 4 * i
            A(f'v_add_f32_dpp v{R[i]}, v{d+1}, v{d} row_ror:8 row_mask:0xf bank_mask:0xf')
    def rowmax(self, S):
        A = self.A
        A(f'v_max3_f32 v8, v{S[0]}, v{S[1]}, v{S[2]}')
        for k in range(3, len(S) - 1, 2): A(f'v_max3_f32 v8, v8, v{S[k]}, v{S[k+1]}')
        A(f'v_max_f32 v8, v8, v{S[-1]}')
        self.ror_reduce('v_max_f32', [8], 8)
        self.xg_reduce('v_max_f32', [8], [9])
    def post_max(self):
        A = self.A
        A('s_mov_b64 exec, 0xff')
        A(f'ds_max_f32 v10, v8 offset:{L_MA}')
        A('s_mov_b64 exec, 1')
        A(f'ds_add_u32 v4, v6 offset:{C_M}')
        A('s_mov_b64 exec, -1')
    def round_chain(self, S, T):
        A = self.A
        n = len(S) // 2
        for rep in range(2):
            for k in range(n): A(f'v_cvt_pk_bf16_f32 v{T+k}, v{S[2*k]}, v{S[2*k+1]}')
            for k in range(n):
                A(f'v_lshlrev_b32 v{S[2*k]}, 16, v{T+k}')
                A(f'v_and_b32 v{S[2*k+1]}, s100, v{T+k}')
            if rep == 0:
                for x in S: A(f'v_mul_f32 v{x}, s101, v{x}')
    def softmax(self, S, PK, shared):
        A = self.A
        if shared:
            self.lds_wait(C_M, self.o['ns'])
            self.stamp(5)
            A(f'ds_read_b32 v8, v10 offset:{L_MA}')
            A('s_waitcnt lgkmcnt(0)')
        A('v_cvt_pk_bf16_f32 v8, v8, v8')
        A('v_and_b32 v8, s100, v8')
        A('v_mul_f32 v8, s101, v8')
        A('v_cvt_pk_bf16_f32 v8, v8, v8')
        A('v_and_b32 v12, s100, v8')
        for x in S: A(f'v_sub_f32 v{x}, v{x}, v12')
        for x in S: A(f'v_mul_f32 v{x}, 0x3fb8aa3b, v{x}')
        for x in S: A(f'v_exp_f32 v{x}, v{x}')
        A('s_nop 0')
        n = len(S) // 2
        for k in range(n): A(f'v_cvt_pk_bf16_f32 v{PK+k}, v{S[2*k]}, v{S[2*k+1]}')
        A(f'v_add_f32 v14, v{S[0]}, v{S[1]}'); A(f'v_add_f32 v9, v{S[2]}, v{S[3]}')
        for k in range(4, len(S), 2):
            A(f'v_add_f32 v14, v14, v{S[k]}'); A(f'v_add_f32 v9, v9, v{S[k+1]}')
        A('v_add_f32 v14, v14, v9')
        self.ror_reduce('v_add_f32', [14], 8)
        self.xg_reduce('v_add_f32', [14], [9])
        if shared:
            A('s_mov_b64 exec, 0xff')
            A(f'ds_add_f32 v10, v14 offset:{L_LA}')
            A('s_mov_b64 exec, 1')
            A(f'ds_add_u32 v4, v6 offset:{C_L}')
            A('s_mov_b64 exec, -1')
        else:
            self.ml_store(1)
    def expand_p(self, PK):
        A = self.A
        for k in range(4): A(f'v_cndmask_b32 v{16+k}, 0, v{PK+k}, s[14:15]')
        for k in range(4): A(f'v_cndmask_b32 v{28+k}, v{PK+k}, 0, s[14:15]')
        for k in range(4): A(f'v_mov_b32_dpp v{24+k}, v{16+k} row_ror:8 row_mask:0xf bank_mask:0xf')
        for k in range(4): A(f'v_mov_b32_dpp v{20+k}, v{28+k} row_ror:8 row_mask:0xf bank_mask:0xf')
    def pv(self, vm):
        A = self.A
        tq = [48, 52]
        for T in range(2):
            if vm: A(f's_waitcnt vmcnt({2 if T == 0 else 0})')
            src = 64 + 32 * T
            self.perm_tile(src, 0, tq[0])
            for tt in range(8):
                if tt < 7: self.perm_tile(src, tt + 1, tq[(tt + 1) & 1])
                else: A('s_nop 1')
                q = tq[tt & 1]
                d = 32 + 4 * (tt & 3)
                p = (16 if tt < 4 else 24) + 4 * T
                A(f'v_mfma_f32_16x16x32_bf16 v[{d}:{d+3}], v[{q}:{q+3}], v[{p}:{p+3}], v[{d}:{d+3}]')
    def task_static(self):
        A = self.A
        for i in range(4): self.k_quarter(i, f's{96+i}')
        nb = self.newlab('NB')
        A('s_cmp_lt_u32 s3, 8'); A(f's_cbranch_scc1 {nb}')
        A('s_mov_b32 s56, s16'); A('s_mov_b32 s57, s17'); A('s_mov_b32 s58, 0x4000000'); A('s_mov_b32 s59, 0x20000')
        A('s_mov_b32 s60, s18'); A('s_mov_b32 s61, s19'); A('s_mov_b32 s62, 0x4000000'); A('s_mov_b32 s63, 0x20000')
        A('s_lshl_b32 s50, s22, 24'); A('s_lshl_b32 s48, s23, 14'); A('s_add_u32 s50, s50, s48'); A(f's_add_u32 s50, s50, {61440*256 - 8*4096}')
        A('s_lshl_b32 s48, s3, 12'); A('s_add_u32 s50, s50, s48')
        A(f's_add_u32 s48, s48, {L_B - 8*4096}')
        self.kdma(56)
        A(f's_add_u32 s48, s48, {16384 - 1920}')
        A('s_mov_b32 m0, s48'); A('s_nop 0')
        for j in range(4):
            A(f'buffer_load_dwordx4 v1, s[60:63], s50 offen offset:{1024*j} nt lds')
            A('s_nop 0')
        self.lab(nb)
        self.stamp(2)
        nq = self.newlab('NQ')
        A(f's_cmp_lg_u32 s3, {self.o["qw"]}'); A(f's_cbranch_scc1 {nq}')
        self.q_gather(0)
        self.stamp(9)
        self.lab(nq)
        self.lds_wait(F_QA, 1)
        self.tag()
        self.read_q(L_QA)
        kw = self.newlab('KW')
        A('s_waitcnt vmcnt(8)')
        A('s_cmp_ge_u32 s3, 8'); A(f's_cbranch_scc1 {kw}')
        A('s_waitcnt vmcnt(0)')
        self.lab(kw)
        self.stamp(3)
        S = list(range(24, 32))
        self.qk(list(range(8)), 32, S)
        self.rowmax(S)
        self.post_max()
        self.stamp(4)
        nqb = self.newlab('NQB')
        A('s_cmp_lg_u32 s3, 9'); A(f's_cbranch_scc1 {nqb}')
        self.q_gather(1)
        self.lab(nqb)
        young = self.newlab('Y')
        self.round_chain(S, 32)
        A(f's_cmp_ge_u32 s3, {self.o["oldv"]}')
        A(f's_cbranch_scc1 {young}')
        self.v_issue()
        self.stamp(10)
        self.lab(young)
        self.softmax(S, 32, True)
        self.expand_p(32)
        A('v_lshrrev_b32 v57, 10, v11')
        for x in range(32, 48): A(f'v_mov_b32 v{x}, 0')
        A('s_lshr_b32 s52, s3, 2')
        old = self.newlab('O'); noch = self.newlab('NC')
        A(f's_cmp_lt_u32 s3, {self.o["oldv"]}')
        A(f's_cbranch_scc1 {old}')
        nsb = self.newlab('NSB')
        A('s_cmp_lt_u32 s3, 8'); A(f's_cbranch_scc1 {nsb}')
        A('s_waitcnt vmcnt(0)')
        self.lds_inc(C_B)
        self.lab(nsb)
        self.v_issue(True)
        self.stamp(10)
        self.lab(old)
        A('s_cmp_eq_u32 s52, 0'); A(f's_cbranch_scc1 {noch}')
        self.lds_wait(F_CH, 's52', areg=57)
        for q in range(4): A(f'ds_read_b128 v[{32+4*q}:{35+4*q}], v11 offset:{L_CH + 1024*q}')
        self.lab(noch)
        self.stamp(6)
        A('s_waitcnt lgkmcnt(0)')
        self.pv(True)
        self.stamp(7)
        A('s_nop 7')
        for q in range(4): A(f'ds_write_b128 v11, v[{32+4*q}:{35+4*q}] offset:{L_CH + 1024*q}')
        self.lds_inc(F_CH, areg=57)

    def ticket_req(self):
        self.A('s_mov_b32 s66, 1'); self.A('s_mov_b32 s67, 0')
        self.A('s_atomic_add_x2 s[66:67], s[28:29], s53 glc')
    def wait3(self, a, b, c):
        A = self.A
        d = self.newlab('WT')
        A(f's_waitcnt vmcnt({a})')
        A('s_cmp_eq_u32 s65, 0'); A(f's_cbranch_scc1 {d}')
        A(f's_waitcnt vmcnt({b})')
        A('s_cmp_eq_u32 s65, 1'); A(f's_cbranch_scc1 {d}')
        A(f's_waitcnt vmcnt({c})')
        self.lab(d)
    def kdma(self, srd, need=None):
        A = self.A
        for j, (imm, adj) in enumerate(((0, 896), (128, 128), (1024, 896), (1152, 0))):
            if need == j:
                A('s_mov_b64 exec, 1'); A(f'ds_max_u32 v4, v62 offset:{NEED}'); A('s_mov_b64 exec, -1')
            A('s_mov_b32 m0, s48'); A(f's_add_u32 s48, s48, {adj}')
            A(f'buffer_load_dwordx4 v2, s[{srd}:{srd+3}], s50 offen offset:{imm} nt lds')

    def task_dynamic(self):
        A = self.A
        ns = self.o['ns']; shl = self.o.get('shl', 4); ntick = (16 - ns) << shl
        A('s_setprio 1')
        A('s_sub_u32 s52, s3, 12')
        A(f's_mul_i32 s27, s52, {3*4096}'); A(f's_add_u32 s27, s27, {L_KD}')
        A('v_add_u32 v63, s27, v1')
        for x in range(32, 48): A(f'v_mov_b32 v{x}, 0')
        A('v_mov_b32 v12, 0xf149f2ca'); A('v_mov_b32 v14, 0')
        A('v_lshrrev_b32 v57, 10, v11')
        A('v_mov_b32 v56, 0xffffff00')
        self.vS(58)
        A('v_lshl_add_u32 v59, v57, 8, v1')
        A('v_lshlrev_b32 v61, 3, v10'); A('v_lshl_add_u32 v60, v57, 1, v61')
        A(f's_lshr_b32 s53, s2, {shl}'); A('s_lshl_b32 s53, s53, 8'); A(f's_add_u32 s53, s53, {WS_T}')
        A(f's_lshr_b32 s48, s23, {shl}'); A(f's_lshl_b32 s48, s48, {16 + shl}'); A('s_add_u32 s26, s26, s48')
        A('s_lshl_b32 s48, s52, 12'); A('s_add_u32 s26, s26, s48'); A('s_sub_u32 s26, s26, 16384')
        A('v_mov_b32 v62, 0')
        A('s_waitcnt lgkmcnt(0)')
        self.tag()
        ni = self.newlab('NI')
        A(f's_and_b32 s48, s2, {(1 << shl) - 1}'); A('s_or_b32 s48, s48, s52'); A(f's_cbranch_scc1 {ni}')
        A('v_mov_b32 v5, s55')
        A('s_mov_b64 exec, 1')
        A('s_setprio 3')
        A('buffer_store_dwordx2 v[4:5], v4, s[44:47], s53 offen sc1')
        A('s_setprio 1')
        A('s_mov_b64 exec, -1')
        self.lab(ni)
        np_ = self.newlab('NPI')
        if not self.o.get('hint', 1): A(f's_branch {np_}')
        A('s_xor_b32 s48, s52, 1'); A('s_or_b32 s48, s48, s23'); A(f's_cbranch_scc1 {np_}')
        A('v_mov_b32 v5, s55'); A('v_lshlrev_b32 v8, 10, v0')
        A('s_lshl_b32 s48, s22, 8'); A(f's_add_u32 s48, s48, {WS_P}')
        A('s_mov_b64 exec, 3')
        A('s_setprio 3')
        A('buffer_store_dwordx2 v[4:5], v8, s[44:47], s48 offen sc1')
        A('s_setprio 1')
        A('s_mov_b64 exec, -1')
        self.lab(np_)
        self.stamp(2)
        A(f's_mul_i32 s56, s52, {8*IB}'); A('s_add_u32 s56, s56, s6')
        A('s_mov_b32 s21, 0')
        A('s_mov_b32 s64, 0')
        A('s_mov_b32 s65, 0')
        self.lab('L_dl')
        for b in range(3):
            rt = self.newlab('RT'); ok = self.newlab('OK'); pr = self.newlab('PR'); ex = self.newlab('EX'); dr = self.newlab('DR'); nx = self.newlab('NX'); nf = self.newlab('NF')
            A('s_cmp_lg_u32 s65, 0'); A(f's_cbranch_scc1 {dr}')
            self.lds_wait(L_T, 1, sleep=1, areg=62)
            A('v_add_u32 v62, 4, v62')
            A('s_sub_u32 s49, s48, 1')
            A(f's_cmp_ge_u32 s49, {ntick}'); A(f's_cbranch_scc1 {ex}')
            A('s_lshl_b32 s50, s48, 14'); A('s_add_u32 s50, s50, s26')
            A(f's_add_u32 s48, s27, {4096*b}')
            self.kdma(32, self.o.get('need', 0))
            if self.o.get('eg'): A('v_add_u32 v5, 2, v62')
            for j in range(4):
                r = 80 + 16 * b + 4 * j
                if self.o.get('eg') and j == self.o.get('egj', 3):
                    A('s_mov_b64 exec, 1'); A(f'ds_max_u32 v4, v5 offset:{NEED}'); A('s_mov_b64 exec, -1')
                A(f'buffer_load_dwordx4 v[{r}:{r+3}], v1, s[36:39], s50 offen offset:{1024*j} nt')
                A('s_nop 0')
            A('s_add_u32 s64, s64, 1')
            A(f's_branch {pr}')
            self.lab(ex)
            A('s_getpc_b64 s[62:63]')
            A('s_branch L_exh')
            self.lab(dr)
            A('s_add_u32 s65, s65, 1')
            A('v_mov_b32 v5, s65')
            A(f'ds_write_b32 v57, v5 offset:{F_EX}')
            A('s_cmp_gt_u32 s65, 2'); A('s_cbranch_scc1 L_dfin')
            self.lab(pr)
            A('s_cmp_lt_u32 s21, 2'); A(f's_cbranch_scc1 {nx}')
            A(f's_cbranch_scc0 {nf}') if False else None
            A('s_cmp_lg_u32 s21, 2'); A(f's_cbranch_scc1 {nf}')
            self.lds_wait(F_QA, 1)
            self.read_q(L_QA)
            self.lab(nf)
            pb = (b + 1) % 3
            self.wait3(20, 12, 4)
            for n in range(4): A(f'ds_read_b128 v[{64+4*n}:{67+4*n}], v63 offset:{4096*pb + 1024*n}')
            A('s_waitcnt lgkmcnt(0)')
            self.qk([0, 1], 48, [24, 25])
            self.round_chain([24, 25], 26)
            A('v_max3_f32 v8, v24, v25, v12')
            self.ror_reduce('v_max_f32', [8], 8)
            self.xg_reduce('v_max_f32', [8], [9])
            A('v_sub_f32 v9, v12, v8'); A('v_sub_f32 v24, v24, v8'); A('v_sub_f32 v25, v25, v8')
            A('v_mul_f32 v9, 0x3fb8aa3b, v9'); A('v_mul_f32 v24, 0x3fb8aa3b, v24'); A('v_mul_f32 v25, 0x3fb8aa3b, v25')
            A('v_exp_f32 v9, v9'); A('v_exp_f32 v24, v24'); A('v_exp_f32 v25, v25')
            A('v_mov_b32 v12, v8')
            A('v_cvt_pk_bf16_f32 v26, v24, v25')
            A('v_fma_f32 v14, v14, v9, v24')
            A('v_add_f32 v14, v14, v25')
            A('v_mov_b32_dpp v27, v26 row_ror:8 row_mask:0xf bank_mask:0xf')
            for x in range(32, 48): A(f'v_mul_f32 v{x}, v{x}, v9')
            A('v_cndmask_b32 v28, 0, v26, s[14:15]'); A('v_cndmask_b32 v29, 0, v27, s[14:15]')
            A('v_cndmask_b32 v30, v27, 0, s[14:15]'); A('v_cndmask_b32 v31, v26, 0, s[14:15]')
            self.wait3(16, 8, 0)
            vb = 80 + 16 * pb
            for tt in range(8):
                i, h = tt >> 1, tt & 1
                sel = 's31' if h else 's30'
                A(f'v_perm_b32 v{64+2*tt}, v{vb+4+i}, v{vb+i}, {sel}')
                A(f'v_perm_b32 v{65+2*tt}, v{vb+12+i}, v{vb+8+i}, {sel}')
            for tt in range(8):
                d = 32 + 4 * (tt & 3); p = 28 if tt < 4 else 30
                A(f'v_mfma_f32_16x16x16_bf16 v[{d}:{d+3}], v[{64+2*tt}:{65+2*tt}], v[{p}:{p+1}], v[{d}:{d+3}]')
            self.lab(nx)
            A('s_add_u32 s21, s21, 1')
        A('s_branch L_dl')
        self.lab('L_exh')
        self.stamp(10)
        A('s_setprio 2')
        A(f'ds_write_b32 v57, v6 offset:{F_EX}')
        self.lds_wait(F_CH, ns // 4, areg=57)
        for q in range(4): A(f'ds_read_b128 v[{64+4*q}:{67+4*q}], v11 offset:{L_CH + 1024*q}')
        A(f'ds_read_b32 v8, v10 offset:{L_MA}')
        self.lds_wait(C_L, ns)
        A(f'ds_read_b32 v13, v10 offset:{L_LA}')
        A('v_cvt_pk_bf16_f32 v8, v8, v8'); A('v_and_b32 v8, s100, v8'); A('v_mul_f32 v8, s101, v8')
        A('v_cvt_pk_bf16_f32 v8, v8, v8'); A('v_and_b32 v8, s100, v8')
        A('v_max_f32 v7, v8, v12')
        A('v_sub_f32 v9, v12, v7'); A('v_sub_f32 v8, v8, v7')
        A('v_mul_f32 v9, 0x3fb8aa3b, v9'); A('v_mul_f32 v8, 0x3fb8aa3b, v8')
        A('v_exp_f32 v9, v9'); A('v_exp_f32 v8, v8')
        A('v_mov_b32 v12, v7')
        A('s_waitcnt lgkmcnt(0)')
        A('v_mul_f32 v13, 0x3d000000, v13')
        A('v_mul_f32 v14, v14, v9')
        A('v_fmac_f32 v14, v13, v8')
        for x in range(32, 48): A(f'v_mul_f32 v{x}, v{x}, v9')
        for x in range(32, 48): A(f'v_fmac_f32 v{x}, v{x+32}, v8')
        A('v_mov_b32 v7, 0x3fb8aa3b')
        A('s_add_u32 s62, s62, 4'); A('s_addc_u32 s63, s63, 0')
        A('s_setpc_b64 s[62:63]')
        self.lab('L_dfin')
        A('s_setprio 3')
        self.stamp(7)
        A('s_nop 0')
        for q in range(4): A(f'ds_write_b128 v11, v[{32+4*q}:{35+4*q}] offset:{L_CH + 1024*q}')
        A('v_add_f32_dpp v13, v14, v14 row_ror:8 row_mask:0xf bank_mask:0xf')
        self.xg_reduce('v_add_f32', [13], [9])
        A(f'ds_write_b64 v60, v[12:13] offset:{L_M4}')
        self.lds_inc(C_D)
        A('v_mov_b32 v13, s55'); A('v_mov_b32 v15, s55')
        A('s_mov_b32 s49, 0x40000')
        self.lab('L_mw')
        A(f'ds_read_b32 v5, v4 offset:{C_D}')
        A(f'ds_read_b128 v[16:19], v61 offset:{L_M4}')
        A(f'ds_read_b128 v[20:23], v61 offset:{L_M4+16}')
        for w in range(4): A(f'ds_read_b128 v[{64+4*w}:{67+4*w}], v59 offset:{L_CH + 4096*w}')
        A('s_waitcnt lgkmcnt(6)')
        A('v_readfirstlane_b32 s48, v5')
        A('s_cmp_ge_u32 s48, 4'); A('s_cbranch_scc1 L_mwd')
        A('s_sub_u32 s49, s49, 1')
        A('s_cbranch_scc0 L_mw')
        self.lab('L_mwd')
        A('s_waitcnt lgkmcnt(4)')
        A('v_max3_f32 v12, v16, v18, v20'); A('v_max_f32 v12, v12, v22')
        A('v_mul_f32 v8, 0x3fb8aa3b, v12')
        for w in range(4): A(f'v_fma_f32 v{16+2*w}, v{16+2*w}, v7, -v8')
        for w in range(4): A(f'v_exp_f32 v{16+2*w}, v{16+2*w}')
        A('s_waitcnt lgkmcnt(0)')
        for e in range(4): A(f'v_mul_f32 v{32+e}, v{64+e}, v16')
        for w in range(1, 4):
            for e in range(4): A(f'v_fmac_f32 v{32+e}, v{64+4*w+e}, v{16+2*w}')
        self.embed(range(32, 36))
        self.stamp(5)
        A('buffer_store_dwordx4 v[32:35], v58, s[44:47], s56 offen sc1')
        A('s_cmp_lg_u32 s3, 12'); A('s_cbranch_scc1 L_noml')
        A('v_mul_f32 v14, v17, v16')
        for w in range(1, 4): A(f'v_fmac_f32 v14, v{17+2*w}, v{16+2*w}')
        A('s_mov_b64 exec, 0xffffffff')
        A('buffer_store_dwordx4 v[12:15], v58, s[44:47], s5 offen sc1')
        A('s_mov_b64 exec, -1')
        self.hint(0)
        self.lab('L_noml')
        A('v_mov_b32 v5, 4')
        A(f'ds_write_b32 v57, v5 offset:{F_EX}')
        self.lds_inc(C_O)
        self.stamp(8)
        if self.stamps:
            A('s_mul_i32 s70, s64, 100'); A('s_add_u32 s70, s70, s68'); A('s_mov_b32 s71, s69')
        A('s_branch L_fin')

    def hint(self, br):
        A = self.A
        if not self.o.get('hint', 1): return
        A('s_lshl_b32 s48, s22, 8'); A(f's_add_u32 s48, s48, {WS_P + br * 1024}')
        A('s_mov_b32 s49, 1')
        A('s_atomic_add s49, s[28:29], s48')

    def task_b(self):
        A = self.A
        A(f'v_add_u32 v13, {L_B}, v1')
        self.lds_wait(C_B, 4)
        for n in range(16): A(f'ds_read_b128 v[{64+4*n}:{67+4*n}], v13 offset:{1024*n}')
        self.lds_wait(F_QB, 1)
        self.read_q(L_QB)
        S = list(range(24, 32))
        self.qk(list(range(8)), 32, S)
        self.rowmax(S)
        self.v_from_lds(13, 16384, range(4))
        self.round_chain(S, 32)
        self.softmax(S, 32, False)
        self.expand_p(32)
        A('v_mov_b32 v56, 0xffffff00')
        self.vS(58)
        self.op_offsets(1)
        for x in range(32, 48): A(f'v_mov_b32 v{x}, 0')
        A('s_waitcnt lgkmcnt(0)')
        self.pv(False)
        A('s_setprio 3')
        A('s_nop 6')
        self.embed(range(32, 48))
        for q in range(4):
            A(f'buffer_store_dwordx4 v[{32+4*q}:{35+4*q}], v58, s[44:47], s{56+q} offen sc1')

    def proj_result(self):
        A = self.A
        for tt in (0, 4, 1, 5, 2, 6, 3, 7):
            A(f'v_mfma_f32_16x16x32_bf16 v[{24+4*tt}:{27+4*tt}], v[16:19], v[{96+4*tt}:{99+4*tt}], 0')
        A('s_nop 1')
        for k in range(4):
            d0 = 24 + 4 * k; d4 = 24 + 4 * (k + 4)
            A(f'v_cndmask_b32 v{d0+2}, v{d4+1}, v{d0}, s[14:15]')
            A(f'v_cndmask_b32 v{d0+3}, v{d0+1}, v{d4}, s[14:15]')
        A('s_mov_b64 exec, 0xffff')
        for k in range(4):
            d0 = 24 + 4 * k
            A(f'v_add_f32_dpp v{20+k}, v{d0+3}, v{d0+2} row_ror:8 row_mask:0xf bank_mask:0xf')

    def build(self):
        A = self.A; o = self.o
        L = self.L
        L.append(HEADER.rstrip())
        L.append(f'; @launch grid=(256,1,1) block=(1024,1,1) lds={LDS_BYTES}')
        L.append('.amdgcn_target "amdgcn-amd-amdhsa--gfx950"')
        L.append('.text')
        L.append(f'.globl {NAME}_kernel')
        L.append('.p2align 8')
        L.append(f'.type {NAME}_kernel,@function')
        L.append(f'{NAME}_kernel:')
        A('s_cmp_ge_u32 s2, 256')
        A('s_cbranch_scc1 L_end')
        A('s_load_dwordx16 s[4:19], s[0:1], 0')
        A('s_load_dwordx8 s[20:27], s[0:1], 64')
        A('s_load_dwordx2 s[28:29], s[0:1], 96')
        if self.stamps:
            for i in range(70, 96): A(f's_mov_b32 s{i}, 0')
        self.stamp(0)
        A('v_lshrrev_b32 v5, 6, v0')
        A('v_mov_b32 v4, 0')
        A('v_readfirstlane_b32 s3, v5')
        A('v_and_b32 v0, 63, v0')
        A('v_lshrrev_b32 v8, 4, v0')
        A('v_and_b32 v7, 7, v0')
        A('v_lshlrev_b32 v10, 2, v7')
        A('v_and_b32 v12, 8, v0')
        A('v_lshlrev_b32 v14, 15, v12'); A('v_lshl_add_u32 v14, v8, 16, v14'); A('v_lshl_add_u32 v14, v10, 2, v14')
        A('v_and_b32 v2, 1, v0'); A('v_lshlrev_b32 v15, 6, v2'); A('v_lshl_add_u32 v15, v8, 4, v15')
        A('s_and_b32 s49, s2, 1'); A('s_lshl_b32 s49, s49, 9'); A('s_lshl_b32 s48, s3, 6'); A('s_add_u32 s49, s49, s48')
        A('s_bfe_u32 s52, s2, 0x60001')
        A('s_lshl_b32 s48, s49, 13'); A('s_lshl_b32 s50, s52, 7'); A('s_add_u32 s48, s48, s50')
        A('s_lshl_b32 s49, s49, 1'); A('v_add_u32 v15, s49, v15')
        A('s_mov_b32 s42, 0x800000'); A('s_mov_b32 s43, 0x20000')
        A('s_setprio 2')
        A('s_cmp_lt_u32 s2, 128')
        A('s_waitcnt lgkmcnt(0)')
        A('s_cselect_b32 s40, s10, s20'); A('s_cselect_b32 s41, s11, s21')
        A('s_cselect_b32 s66, s4, s14');  A('s_cselect_b32 s67, s5, s15')
        A('s_cselect_b32 s10, s12, s22'); A('s_cselect_b32 s11, s13, s23')
        A('s_cmp_ge_u32 s3, 8')
        A('s_cbranch_scc1 L_nowq')
        for j in range(8):
            A(f'buffer_load_dwordx4 v[{64+4*j}:{67+4*j}], v14, s[40:43], s48 offen nt')
            if j < 7: A('s_add_u32 s48, s48, 8192')
        A('global_load_dwordx4 v[16:19], v15, s[66:67]')
        self.lab('L_nowq')
        if o.get('early'): self.stamp(13)
        A('v_mov_b32 v6, 1')
        A('v_lshlrev_b32 v1, 4, v0')
        A('v_and_b32 v57, 3, v5')
        A('v_lshl_add_u32 v11, v57, 12, v1')
        A('v_and_b32 v9, 15, v0')
        A('v_lshrrev_b32 v13, 2, v9')
        A('v_lshlrev_b32 v2, 4, v2')
        A('v_lshl_add_u32 v2, v13, 8, v2')
        A('v_lshl_add_u32 v2, v8, 5, v2')
        A('v_and_b32 v13, 2, v0')
        A('v_lshl_add_u32 v2, v13, 10, v2')
        A(f'v_mul_u32_u24 v3, {QSTR}, v7')
        A('v_lshl_add_u32 v3, v8, 5, v3')
        A('v_lshl_add_u32 v3, v12, 1, v3')
        A('s_mov_b32 s30, 0x05040100')
        A('s_mov_b32 s31, 0x07060302')
        A('s_mov_b32 s100, 0xffff0000')
        A('s_mov_b32 s101, 0x3db504f3')
        A('s_mov_b32 s32, s6');  A('s_mov_b32 s33, s7');  A('s_mov_b32 s34, 0x4000000'); A('s_mov_b32 s35, 0x20000')
        A('s_mov_b32 s36, s8');  A('s_mov_b32 s37, s9');  A('s_mov_b32 s38, 0x4000000'); A('s_mov_b32 s39, 0x20000')
        A('s_mov_b32 s44, s28'); A('s_mov_b32 s45, s29'); A(f's_mov_b32 s46, {WS_BYTES}'); A('s_mov_b32 s47, 0x20000')
        A('s_lshr_b32 s20, s2, 7')
        A('s_and_b32 s4, s2, 7'); A('s_bfe_u32 s7, s2, 0x30004'); A('s_lshl_b32 s7, s7, 3'); A('s_add_u32 s4, s4, s7')
        A('s_bfe_u32 s7, s2, 0x10003')
        A('s_lshr_b32 s22, s2, 6')
        A('s_and_b32 s23, s2, 63')
        A('s_mov_b32 s14, 0x00ff00ff'); A('s_mov_b32 s15, 0x00ff00ff')
        A('s_lshl_b32 s48, s23, 7')
        A(f's_mul_i32 s6, s22, {32*IB}'); A('s_add_u32 s6, s6, s48'); A(f's_add_u32 s6, s6, {WS_I1}')
        A(f's_mul_i32 s5, s22, {4*IB}'); A('s_add_u32 s5, s5, s48'); A(f's_add_u32 s5, s5, {WS_ML}')
        A('s_lshl_b32 s96, s22, 24')
        A('s_lshr_b32 s48, s3, 2'); A('s_add_u32 s48, s48, s22'); A('s_and_b32 s48, s48, 3'); A('s_lshl_b32 s48, s48, 22'); A('s_add_u32 s96, s96, s48')
        A('s_mov_b32 s26, s96')
        mp = o.get('map', 12)
        if mp & 1:
            A('s_lshl_b32 s48, s22, 4'); A('s_add_u32 s48, s48, s23'); A('s_and_b32 s48, s48, 63'); A('s_lshl_b32 s48, s48, 16'); A('s_add_u32 s96, s96, s48')
        else:
            A('s_lshl_b32 s48, s23, 16'); A('s_add_u32 s96, s96, s48')
        if mp >= 18:
            A('s_and_b32 s48, s3, 3'); A('s_lshl_b32 s48, s48, 13'); A('s_add_u32 s96, s96, s48')
            A('s_add_u32 s97, s96, 4096'); A('s_add_u32 s98, s96, 32768'); A('s_add_u32 s99, s96, 36864')
        else:
            A('s_and_b32 s48, s3, 3'); A('s_lshl_b32 s48, s48, 12'); A('s_add_u32 s96, s96, s48')
            A('s_add_u32 s97, s96, 16384'); A('s_add_u32 s98, s96, 32768'); A('s_add_u32 s99, s96, 49152')
        A('s_cmp_ge_u32 s3, 8')
        A('s_cbranch_scc1 L_young0')
        A('s_load_dword s54, s[28:29], 0')
        A('s_lshr_b32 s56, s2, 5'); A(f's_mul_i32 s56, s56, {4*IB}'); A('s_and_b32 s48, s2, 1'); A('s_lshl_b32 s48, s48, 12'); A('s_add_u32 s56, s56, s48')
        A('s_and_b32 s48, s52, 15'); A('s_lshl_b32 s48, s48, 8'); A('s_add_u32 s56, s56, s48'); A(f's_add_u32 s56, s56, {WS_Q}')
        A(f'v_mul_u32_u24 v60, {IB}, v8'); A('v_lshl_add_u32 v60, v9, 4, v60')
        A('v_lshlrev_b32 v7, 3, v10'); A('v_lshl_add_u32 v7, v12, 1, v7')
        A('s_lshl_b32 s48, s3, 8'); A('v_add_u32 v7, s48, v7')
        A('v_mov_b32 v56, 0xffffff00')
        A('s_barrier')
        if o.get('early'):
            self.stamp(8); A('s_waitcnt vmcnt(8)'); self.stamp(9)
        A('s_waitcnt vmcnt(0)')
        if o.get('early'): self.stamp(12); A('s_branch L_fin')
        for tt in range(8): self.perm_tile(64, tt, 96 + 4 * tt)
        A('s_nop 1')
        self.proj_result()
        A(f'ds_write_b128 v7, v[20:23] offset:{L_QS}')
        A('s_mov_b64 exec, -1')
        self.lds_inc_rtn(C_Q)
        self.stamp(1)
        self.tag()
        A('s_cmp_lg_u32 s48, 7')
        A('s_cbranch_scc1 L_task')
        A('s_setprio 3')
        for k in range(2): A(f'ds_read_b128 v[{32+4*k}:{35+4*k}], v1 offset:{L_QS + 1024*k}')
        A('s_waitcnt lgkmcnt(0)')
        for e in range(4): A(f'v_add_f32 v{32+e}, v{32+e}, v{36+e}')
        self.xg_reduce('v_add_f32', [32, 33, 34, 35], [36, 37, 38, 39])
        self.embed(range(32, 36))
        A('buffer_store_dwordx4 v[32:35], v60, s[44:47], s56 offen sc1')
        A('s_setprio 2')
        A('s_branch L_task')
        self.lab('L_young0')
        A('v_mov_b32 v5, 0xff800000')
        A('v_cmp_gt_u32 vcc, 16, v0')
        A('v_lshlrev_b32 v7, 2, v0')
        A('s_nop 0')
        A('v_cndmask_b32 v5, v4, v5, vcc')
        A(f'ds_write_b32 v7, v5 offset:{L_MISC}')
        A('s_lshl_b32 s48, s3, 8'); A('v_add_u32 v9, s48, v7')
        A(f'ds_write_b32 v9, v4 offset:{L_T - 2048}')
        A('s_waitcnt lgkmcnt(0)')
        A('s_barrier')
        A('s_load_dword s54, s[28:29], 0')
        if o.get('early'): self.stamp(8); A('s_branch L_fin')
        A('s_cmp_ge_u32 s3, 12')
        A('s_cbranch_scc1 L_dyn')
        if o['ns'] == 8:
            A('s_waitcnt lgkmcnt(0)'); self.tag(); A('s_branch L_c')
        self.lab('L_task')
        self.task_static()
        A('s_cmp_ge_u32 s3, 8')
        A('s_cbranch_scc1 L_c')
        A('s_cmp_lg_u32 s3, 0'); A('s_cbranch_scc1 L_nd')
        shl = o['shl']; ntick = (16 - o['ns']) << shl
        A(f's_lshr_b32 s53, s2, {shl}'); A('s_lshl_b32 s53, s53, 8'); A(f's_add_u32 s53, s53, {WS_T}')
        A('s_mov_b32 s52, 0'); A('s_mov_b32 s50, 0')
        A('s_setprio 3')
        self.lds_wait(F_GO, 1, sleep=2)
        self.lab('L_deal')
        A('s_mov_b32 s51, 0x8000')
        self.lab('L_drt')
        self.ticket_req()
        A('s_waitcnt lgkmcnt(0)')
        A('s_cmp_eq_u32 s67, s55'); A('s_cbranch_scc1 L_dok')
        A('s_sub_u32 s51, s51, 1'); A('s_cbranch_scc0 L_drt')
        A('s_mov_b32 s66, 0x10000')
        self.lab('L_dok')
        A('s_add_u32 s66, s66, 1')
        A('v_mov_b32 v8, s66'); A('v_mov_b32 v9, s52')
        if o.get('rk'):
            A(f's_cmp_gt_u32 s66, {ntick + o.get("rk2", 64)}'); A('s_cselect_b32 s48, 1, 2')
            A(f's_cmp_gt_u32 s66, {ntick + o["rk"]}'); A('s_cselect_b32 s48, s48, 3'); A('v_mov_b32 v5, s48')
            A(f'ds_write_b32 v4, v5 offset:{WGL}')
        A(f'ds_write_b32 v9, v8 offset:{L_T}')
        A(f's_cmp_gt_u32 s66, {ntick}'); A('s_cbranch_scc1 L_ddone')
        A('s_add_u32 s52, s52, 4')
        kap = o.get('kap', -1)
        S = 1 << shl
        if kap >= 0:
            A('s_sub_u32 s56, s66, s50')
            A('s_lshr_b32 s57, s66, 2'); A(f's_add_u32 s57, s57, {S}')
            A('s_cmp_eq_u32 s50, 0')
            A('s_cselect_b32 s56, s57, s56')
            A('s_mov_b32 s50, s66')
            A(f's_mul_i32 s57, s56, {kap + 2}'); A('s_lshr_b32 s57, s57, 1'); A('s_add_u32 s57, s57, s66')
            A(f's_cmp_le_u32 s56, {S + o.get("dm", 0)}'); A('s_cselect_b32 s57, 0, s57')
            A(f's_cmp_le_u32 s66, {S + 1}'); A('s_cselect_b32 s57, 0, s57')
            A('s_mov_b32 s66, 0x10000')
            A(f's_cmp_gt_u32 s57, {ntick + (kap * S) // 2}'); A('s_cbranch_scc1 L_dok')
        A('s_mov_b32 s58, s52')
        if o.get('eg'):
            A('s_add_u32 s59, s52, 2'); A(f's_cmp_gt_u32 {"s50" if kap >= 0 else "s66"}, {ntick - o["eg"]}'); A('s_cselect_b32 s58, s59, s52')
        self.lds_wait(NEED, 's58', sleep=0)
        A('s_branch L_deal')
        self.lab('L_ddone')
        A('s_setprio 2')
        self.lab('L_nd')
        A('s_cmp_lg_u32 s3, 1'); A('s_cbranch_scc1 L_wo')
        self.task_b()
        A('s_setprio 2')
        A('v_lshrrev_b32 v57, 10, v11')
        self.stamp(9)
        self.lab('L_wo')
        A('s_mov_b32 s40, s10'); A('s_mov_b32 s41, s11')
        A('s_lshr_b32 s50, s4, 4'); A('s_lshl_b32 s50, s50, 10')
        A('s_and_b32 s51, s4, 3'); A('s_lshl_b32 s51, s51, 5'); A('s_add_u32 s50, s50, s51')
        A('s_bfe_u32 s51, s4, 0x20002'); A('s_add_u32 s50, s50, s51')
        A('s_lshl_b32 s50, s50, 11'); A('s_lshl_b32 s51, s7, 10'); A('s_add_u32 s50, s50, s51'); A('s_lshl_b32 s51, s3, 7'); A('s_add_u32 s50, s50, s51')
        A('v_lshrrev_b32 v8, 4, v0')
        A('v_lshlrev_b32 v58, 19, v8'); A('v_lshl_add_u32 v58, v10, 2, v58'); A('v_and_b32 v5, 8, v0'); A('v_lshl_add_u32 v58, v5, 10, v58')
        A('v_mov_b32 v56, 0xffffff00'); A('v_mov_b32 v61, v5')
        ge = self.newlab('GE')
        if o['woe']:
            A(f's_cmp_lt_u32 s3, {o["woe"]}'); A(f's_cbranch_scc1 {ge}')
        A(f's_cmp_lt_u32 s3, 4'); A(f's_cselect_b32 s52, {o.get("wga", 3)}, {o.get("wgb", 3)}')
        if o.get('rk'):
            self.lds_wait(F_EX, 1, sleep=1, areg=57)
            A(f'ds_read_b32 v5, v4 offset:{WGL}'); A('s_waitcnt lgkmcnt(0)'); A('v_readfirstlane_b32 s52, v5')
        if o.get('wA'):
            A('s_cmp_eq_u32 s20, 0'); A(f's_cselect_b32 s52, {o["wA"]}, ' + (str(o['wB']) if o.get('wB') else 's52'))
        self.lds_wait(F_EX, 's52', sleep=1, areg=57)
        A('s_setprio 0')
        self.lab(ge)
        for j in range(8):
            A(f'buffer_load_dwordx4 v[{64+4*j}:{67+4*j}], v58, s[40:43], s50 offen nt')
            if j < 7: A(f's_add_u32 s50, s50, {16384 if j != 3 else (128 - 24) * 2048}')
        self.stamp(11)
        A('s_setprio 2')
        self.lds_inc(C_W)
        A('v_and_b32 v60, 1, v0'); A('v_lshlrev_b32 v60, 6, v60'); A('v_lshl_add_u32 v60, v8, 4, v60')
        A('v_bfe_u32 v59, v0, 2, 1'); A(f'v_mul_u32_u24 v59, {IB}, v59')
        A('v_and_b32 v7, 3, v0'); A('v_lshl_add_u32 v59, v7, 5, v59'); A('v_lshl_add_u32 v59, v61, 1, v59')
        A('s_lshl_b32 s53, s20, 5'); A('s_lshl_b32 s48, s7, 4'); A('s_add_u32 s53, s53, s48'); A('s_lshl_b32 s48, s3, 1'); A('s_add_u32 s53, s53, s48')
        A(f's_mul_i32 s53, s53, {IB}'); A('s_lshl_b32 s48, s4, 7'); A('s_add_u32 s53, s53, s48'); A(f's_add_u32 s53, s53, {WS_I2}')
        A('s_waitcnt vmcnt(0)')
        A('s_mov_b64 exec, 1'); A(f'ds_add_u32 v4, v6 offset:{C_W}'); A(f'ds_add_u32 v4, v6 offset:{F_X3}'); A('s_mov_b64 exec, -1')
        for tt in range(8): self.perm_tile(64, tt, 96 + 4 * tt)
        self.stamp(12)
        if o.get('notail'): A('s_branch L_fin')
        if o.get('pt', 0) & 1:
            A('s_lshl_b32 s48, s4, 7'); A('s_sub_u32 s48, s53, s48'); A('s_add_u32 s48, s48, 8192')
            A('s_mov_b64 exec, 0x11')
            A('buffer_load_dword v62, v59, s[44:47], s48 offen')
            A('s_mov_b64 exec, -1')
        A('s_mov_b32 s49, 0x40000')
        self.lab('L_ow')
        A(f'ds_read_b32 v5, v4 offset:{F_O}')
        A(f'ds_read_b128 v[16:19], v60 offset:{L_O}')
        A('s_waitcnt lgkmcnt(0)')
        A('v_readfirstlane_b32 s48, v5')
        A('s_cmp_ge_u32 s48, 2'); A('s_cbranch_scc1 L_owd')
        A('s_sub_u32 s49, s49, 1')
        A('s_cbranch_scc0 L_ow')
        self.lab('L_owd')
        self.proj_result()
        self.embed(range(20, 24))
        A('buffer_store_dwordx4 v[20:23], v59, s[44:47], s53 offen sc1')
        A('s_mov_b64 exec, -1')
        if o.get('rs', 2) == 3:
            A('s_waitcnt vmcnt(0)')
            self.lds_inc(C_W)
        self.stamp(13)
        A('s_branch L_fin')
        self.lab('L_dyn')
        self.task_dynamic()
        self.lab('L_c')
        A('s_cmp_eq_u32 s3, 11')
        A('s_cbranch_scc1 L_red')
        A('s_cmp_lg_u32 s3, 8')
        A('s_cbranch_scc1 L_comb')
        if o.get('notail') or not o.get('hint', 1): A('s_branch L_fin')
        A('s_lshr_b32 s40, s4, 4'); A('s_lshl_b32 s41, s20, 2'); A('s_add_u32 s40, s40, s41'); A('s_lshl_b32 s40, s40, 8'); A(f's_add_u32 s40, s40, {WS_P}')
        A('v_mov_b32 v13, 16'); A('s_mov_b32 s50, 0x8000')
        A('s_cmp_lg_u32 s20, 0'); A('s_cbranch_scc1 L_fin')
        self.lds_wait(C_O, 4, sleep=1)
        self.lab('L_hp')
        A('s_load_dwordx2 s[56:57], s[28:29], s40 glc')
        A(f'ds_read_b32 v5, v4 offset:{C_W}')
        A('s_waitcnt lgkmcnt(0)')
        A('v_readfirstlane_b32 s48, v5')
        A('s_cmp_ge_u32 s48, 16'); A('s_cbranch_scc1 L_fin')
        A('s_cmp_lg_u32 s57, s55'); A('s_cbranch_scc1 L_fin')
        A(f's_cmp_ge_u32 s56, {o.get("hn", 60)}'); A('s_cbranch_scc1 L_hok')
        A(f's_sleep {o.get("hs", 4)}')
        A('s_sub_u32 s50, s50, 1')
        A('s_cbranch_scc0 L_hp')
        self.lab('L_hok')
        A('s_mov_b64 exec, 1')
        A(f'ds_add_u32 v4, v13 offset:{C_W}')
        A('s_mov_b64 exec, -1')
        self.stamp(9)
        A('s_branch L_fin')
        self.lab('L_comb')
        if o.get('notail'): A('s_branch L_fin')
        A('s_lshr_b32 s40, s4, 4'); A('s_lshl_b32 s41, s20, 2'); A('s_add_u32 s40, s40, s41')
        A('s_lshl_b32 s41, s40, 2'); A('s_and_b32 s42, s2, 3'); A('s_add_u32 s41, s41, s42'); A(f's_mul_i32 s41, s41, {IB}'); A(f's_add_u32 s41, s41, {WS_ML}')
        A('s_lshl_b32 s40, s40, 5'); A('s_and_b32 s42, s4, 15'); A('s_lshl_b32 s42, s42, 1'); A('s_add_u32 s40, s40, s42')
        A('s_and_b32 s42, s3, 1'); A('s_add_u32 s40, s40, s42'); A(f's_mul_i32 s40, s40, {IB}'); A(f's_add_u32 s40, s40, {WS_I1}')
        A('s_lshl_b32 s42, s42, 6'); A('v_lshlrev_b32 v12, 3, v0'); A('v_add_u32 v12, s42, v12')
        A('s_add_u32 s42, s41, 4096'); A('s_add_u32 s43, s40, 4096')
        A('v_mov_b32 v15, 0xff'); A('v_mov_b32 v14, 0x3fb8aa3b')
        A('s_cmp_eq_u32 s20, 0'); A(f's_cselect_b32 s52, {o.get("cw", 16)}, {o.get("cwb", 8)}')
        if o.get('bex'):
            bx = self.newlab('BX')
            A(f's_cbranch_scc1 {bx}')
            self.lds_wait(F_EX, o['bex'], sleep=1)
            A('s_mov_b32 s52, 0')
            self.lab(bx)
        self.lds_wait(C_O, 4, sleep=1)
        self.lds_wait(C_W, 's52', sleep=1)
        pass
        self.stamp(11)
        M = [96 + 4 * k for k in range(8)]
        self.mgather([(96, 's41', 's42', True), (64, 's40', 's43', False)])
        self.stamp(12)
        A(f'v_max3_f32 v32, v{M[0]}, v{M[1]}, v{M[2]}'); A(f'v_max3_f32 v33, v{M[3]}, v{M[4]}, v{M[5]}'); A(f'v_max3_f32 v32, v32, v{M[6]}, v{M[7]}'); A('v_max_f32 v32, v32, v33')
        self.ror_reduce('v_max_f32', [32], 8)
        self.xg_reduce('v_max_f32', [32], [33])
        A('v_mul_f32 v32, 0x3fb8aa3b, v32')
        for k in range(8): A(f'v_fma_f32 v{16+k}, v{M[k]}, v14, -v32')
        for k in range(8): A(f'v_exp_f32 v{16+k}, v{16+k}')
        A(f'v_mul_f32 v36, v16, v{M[0]+2}')
        for k in range(1, 8): A(f'v_fmac_f32 v36, v{16+k}, v{M[k]+2}')
        for e in range(4): A(f'v_mul_f32 v{32+e}, v16, v{64+e}')
        for k in range(1, 8):
            for e in range(4): A(f'v_fmac_f32 v{32+e}, v{16+k}, v{64+4*k+e}')
        self.ror_reduce('v_add_f32', [36, 32, 33, 34, 35], 8)
        self.xg_reduce('v_add_f32', [36, 32, 33, 34, 35], [41, 37, 38, 39, 40])
        A('v_rcp_f32 v37, v36')
        A('s_nop 0')
        A('v_fma_f32 v38, -v36, v37, 1.0')
        A('v_fma_f32 v37, v38, v37, v37')
        for e in range(4): A(f'v_mul_f32 v{32+e}, v{32+e}, v37')
        A('v_cvt_pk_bf16_f32 v32, v32, v33'); A('v_cvt_pk_bf16_f32 v33, v34, v35')
        A('s_mov_b64 exec, 0xff')
        A(f'ds_write_b64 v12, v[32:33] offset:{L_O}')
        A('s_mov_b64 exec, 1')
        A(f'ds_add_u32 v4, v6 offset:{F_O}')
        A('s_mov_b64 exec, -1')
        self.stamp(13)
        A('s_branch L_fin')
        self.lab('L_red')
        if o.get('notail'):
            A('s_cmp_lg_u32 s2, 0'); A('s_cbranch_scc1 L_fin')
            self.lds_wait(C_O, 4)
            A('v_mov_b32 v13, s55'); A('s_mov_b64 exec, 1'); A('global_store_dword v4, v13, s[28:29]'); A('s_mov_b64 exec, -1')
            A('s_branch L_fin')
        A('s_bfe_u32 s40, s2, 0x20003'); A('s_cmp_lg_u32 s40, 0')
        A('s_cbranch_scc1 L_fin')
        A('s_lshr_b32 s40, s2, 5'); A('s_lshl_b32 s40, s40, 3'); A('s_and_b32 s41, s2, 7'); A('s_add_u32 s40, s40, s41')
        A('s_lshl_b32 s42, s40, 6'); A('v_lshlrev_b32 v12, 3, v0'); A('v_add_u32 v12, s42, v12')
        A(f's_mul_i32 s40, s40, {IB}'); A(f's_add_u32 s40, s40, {WS_I2}')
        A('v_mov_b32 v13, s55'); A('v_mov_b32 v15, 0xff'); A('s_add_u32 s43, s40, 4096')
        rs = o.get('rs', 2)
        if rs == 0: self.lds_wait(F_O, 2, sleep=2)
        elif rs == 1: self.lds_wait(C_W, 16, sleep=2)
        elif rs == 2:
            self.lds_wait(C_O, 4, sleep=2)
            for k in range(8): A(f'buffer_load_dwordx4 v[{64+4*k}:{67+4*k}], v1, s[44:47], {"s40" if k < 4 else "s43"} offen offset:{1024*(k&3)} sc1')
            A('s_waitcnt vmcnt(0)')
            self.lds_wait(F_X3, 8, sleep=1)
            if o.get('pt', 0) & 2:
                A('s_mov_b64 exec, 1'); A('global_load_dword v62, v12, s[24:25]'); A('s_mov_b64 exec, -1')
            self.lds_wait(F_O, 2, sleep=1)
        elif rs == 3:
            self.lds_wait(C_W, 24, sleep=1)
        self.stamp(11)
        self.mgather([(64, 's40', 's43', False)])
        self.stamp(12)
        for k in range(4):
            for e in (0, 2): A(f'v_pk_add_f32 v[{40+4*k+e}:{41+4*k+e}], v[{64+4*k+e}:{65+4*k+e}], v[{80+4*k+e}:{81+4*k+e}]')
        for k in range(2):
            for e in (0, 2): A(f'v_pk_add_f32 v[{40+4*k+e}:{41+4*k+e}], v[{40+4*k+e}:{41+4*k+e}], v[{48+4*k+e}:{49+4*k+e}]')
        for e in (0, 2): A(f'v_pk_add_f32 v[{40+e}:{41+e}], v[{40+e}:{41+e}], v[{44+e}:{45+e}]')
        self.ror_reduce('v_add_f32', [40, 41, 42, 43], 8)
        self.xg_reduce('v_add_f32', [40, 41, 42, 43], [36, 37, 38, 39])
        A('v_cvt_pk_bf16_f32 v32, v40, v41'); A('v_cvt_pk_bf16_f32 v33, v42, v43')
        A('s_mov_b64 exec, 0xff')
        A('global_store_dwordx2 v12, v[32:33], s[24:25]')
        A('s_cmp_lg_u32 s2, 0')
        A('s_cbranch_scc1 L_nogen')
        A('s_mov_b64 exec, 1')
        A('global_store_dword v4, v13, s[28:29]')
        self.lab('L_nogen')
        A('s_mov_b64 exec, -1')
        self.stamp(13)
        if o.get('spin'):
            self.lab('L_spin')
            A('s_memrealtime s[60:61]'); A('s_waitcnt lgkmcnt(0)'); A('s_sub_u32 s60, s60, s68'); A(f's_cmp_lt_u32 s60, {o["spin"]}'); A('s_cbranch_scc1 L_spin')
            A('s_branch L_end')
        if o.get('dbgt'):
            A('s_load_dwordx2 s[60:61], s[0:1], 88')
            A('s_waitcnt lgkmcnt(0)')
            A('s_sub_u32 s48, s94, s68'); A('v_mov_b32 v20, s48')
            A('s_lshr_b32 s48, s2, 5'); A('s_lshl_b32 s48, s48, 1'); A('s_and_b32 s49, s2, 7'); A('s_cmp_ge_u32 s49, 2'); A('s_cbranch_scc1 L_end')
            A('s_add_u32 s48, s48, s49'); A('s_lshl_b32 s48, s48, 2'); A('v_mov_b32 v7, s48')
            A('s_mov_b64 exec, 1')
            A('global_store_dword v7, v20, s[60:61]')
            A('s_branch L_end')
        if o.get('amp'):
            A('s_waitcnt lgkmcnt(0)')
            A('s_sub_u32 s62, s94, s68'); A('s_lshl_b32 s62, s62, 2'); A('s_sub_u32 s62, s62, 6500'); A('s_min_u32 s62, s62, 30000')
            self.lab('L_amp')
            A('s_memrealtime s[60:61]'); A('s_waitcnt lgkmcnt(0)'); A('s_sub_u32 s60, s60, s68'); A('s_cmp_lt_u32 s60, s62'); A('s_cbranch_scc1 L_amp')
            A('s_branch L_end')
        if not o.get('lite'): self.lab('L_fin')
        if self.stamps:
            A('s_waitcnt vmcnt(0) lgkmcnt(0)')
            A('s_getreg_b32 s48, hwreg(HW_REG_XCC_ID)')
            A('s_getreg_b32 s49, hwreg(HW_REG_HW_ID)')
            for i in range(28): A(f'v_writelane_b32 v20, s{68+i}, {i}')
            A('v_writelane_b32 v20, s48, 28')
            A('v_writelane_b32 v20, s49, 29')
            A('s_lshl_b32 s48, s2, 4'); A('s_add_u32 s48, s48, s3'); A('s_lshl_b32 s48, s48, 7'); A(f's_add_u32 s48, s48, {STAMP_OFF}')
            A('v_lshlrev_b32 v7, 2, v0'); A('v_add_u32 v7, s48, v7')
            A('s_mov_b64 exec, 0xffffffff')
            A('global_store_dword v7, v20, s[28:29]')
        if o.get('lite'): self.lab('L_fin')
        self.lab('L_end')
        A('s_endpgm')
        L.append('.section .rodata,"a"')
        L.append('.p2align 6')
        L.append(f'.amdhsa_kernel {NAME}_kernel')
        L.append('  .amdhsa_next_free_vgpr 128')
        L.append('  .amdhsa_next_free_sgpr 102')
        L.append('  .amdhsa_accum_offset 128')
        L.append('  .amdhsa_group_segment_fixed_size 0')
        L.append('  .amdhsa_kernarg_size 104')
        L.append('  .amdhsa_user_sgpr_count 2')
        L.append('  .amdhsa_user_sgpr_kernarg_segment_ptr 1')
        L.append('  .amdhsa_system_sgpr_workgroup_id_x 1')
        L.append('.end_amdhsa_kernel')
        return '\n'.join(L) + '\n'

if __name__ == '__main__':
    out = sys.argv[1]
    stamps = 'stamps' in sys.argv[2:]
    opts = {}
    for a in sys.argv[2:]:
        if '=' in a:
            k, v = a.split('='); opts[k] = int(v)
    open(out, 'w').write(Gen(stamps, opts).build())
```

```python
import sys
NAME = 'concat_heads__gqa_block_cached__sliding_block_cached__decode'

HEADER = open('cdna_kernels/' + NAME + '.s.ref').read().split('; Override launch')[0]

IB = 8448
WS_T = 0x1000
WS_P = 0x3000
WS_Q = 0x4000
WS_ML = 0x50000
WS_I1 = 0xA0000
WS_I2 = 0x2C0000
WS_BYTES = 0x400000
STAMP_OFF = 0x10000000
L_CH, L_QS, L_QA, L_QB, L_MISC = 0, 16384, 20480, 22784, 25088
QSTR = 272
L_MA, L_LA = L_MISC, L_MISC + 64
L_C = L_MISC + 128
C_Q, C_M, C_O, C_L, F_QA, F_QB, F_O, C_B, C_D, C_W, F_X2, F_X3, F_CH = [L_C + 4 * i for i in range(13)]
F_GO = L_C + 80
F_EX = L_C + 64
L_O = L_MISC + 256
L_M4 = L_MISC + 384
L_T = L_MISC + 1024
NEED = F_X2
WGL = L_C + 96
L_B = L_T + 2048
L_KD = L_B + 32768
LDS_BYTES = L_KD + 4 * 3 * 4096

class Gen:
    def __init__(self, stamps=False, opts=None):
        self.L = []
        self.stamps = stamps
        self.nlab = 0
        self.o = dict(qw=4, oldv=8, ns=12, woe=0, shl=5, rk=14, rk2=24, eg=64, mlr=2, qr=2)
        if opts: self.o.update(opts)
    def A(self, s):
        dr = self.o.get('drop', 0)
        if s.startswith('buffer_store'):
            if 'v58' in s and self.o.get('inB') and dr & 1: return
            if 'v58' in s and not self.o.get('inB') and dr & 2: return
            if 'v[12:15]' in s and dr & 4: return
            if 'v60' in s and dr & 8: return
        if s: self.L.append('    ' + s)
    def lab(self, s): self.L.append(s + ':')
    def newlab(self, p='L'):
        self.nlab += 1
        return f'{p}_{self.nlab}'
    def stamp(self, i):
        if self.o.get('lite') and i not in (0, 13): return
        if self.stamps: self.A(f's_memrealtime s[{68+2*i}:{69+2*i}]')

    def lds_wait(self, addr, val, sleep=1, areg=4):
        A = self.A
        l = self.newlab('W'); d = self.newlab('D')
        A('s_mov_b32 s49, 0x40000')
        self.lab(l)
        A(f'ds_read_b32 v5, v{areg} offset:{addr}')
        A('s_waitcnt lgkmcnt(0)')
        A('v_readfirstlane_b32 s48, v5')
        A(f's_cmp_ge_u32 s48, {val}')
        A(f's_cbranch_scc1 {d}')
        if sleep: A(f's_sleep {sleep}')
        A('s_sub_u32 s49, s49, 1')
        A(f's_cbranch_scc0 {l}')
        self.lab(d)
    def lds_inc(self, addr, areg=4):
        A = self.A
        A('s_mov_b64 exec, 1')
        A(f'ds_add_u32 v{areg}, v6 offset:{addr}')
        A('s_mov_b64 exec, -1')
    def lds_inc_rtn(self, addr):
        A = self.A
        A('s_mov_b64 exec, 1')
        A(f'ds_add_rtn_u32 v5, v4, v6 offset:{addr}')
        A('s_mov_b64 exec, -1')
        A('s_waitcnt lgkmcnt(0)')
        A('v_readfirstlane_b32 s48, v5')
    def tag(self):
        A = self.A
        A('s_and_b32 s55, s54, 0x7f7f7f7f'); A('s_add_u32 s55, s55, 0x35172b4d'); A('s_and_b32 s8, s54, 0x80808080'); A('s_xor_b32 s55, s55, s8')
        A('s_and_b32 s8, s55, 0xff'); A('s_bfe_u32 s9, s55, 0x80008'); A('s_bfe_u32 s12, s55, 0x80010'); A('s_lshr_b32 s13, s55, 24')
    TB = ['s8', 's9', 's12', 's13']
    def embed(self, regs):
        for r in regs: self.A(f'v_and_or_b32 v{r}, v{r}, v56, {self.TB[r & 3]}')

    def perm_tile(self, src, tt, dst):
        i, h = tt >> 1, tt & 1
        sel = 's31' if h else 's30'
        for jp in range(4):
            self.A(f'v_perm_b32 v{dst+jp}, v{src+4*(2*jp+1)+i}, v{src+4*(2*jp)+i}, {sel}')

    def xg_reduce(self, op, regs, tmps):
        A = self.A
        for sw in ('v_permlane16_swap_b32', 'v_permlane32_swap_b32'):
            for r, t in zip(regs, tmps): A(f'v_mov_b32 v{t}, v{r}')
            A('s_nop 1')
            for r, t in zip(regs, tmps): A(f'{sw} v{r}, v{t}')
            A('s_nop 1')
            for r, t in zip(regs, tmps): A(f'{op} v{r}, v{r}, v{t}')
    def ror_reduce(self, op, regs, n):
        A = self.A
        A('s_nop 1')
        for r in regs: A(f'{op}_dpp v{r}, v{r}, v{r} row_ror:{n} row_mask:0xf bank_mask:0xf')

    def quad_reduce(self, a):
        A = self.A
        A('s_nop 1')
        A(f'v_permlane16_swap_b32 v{a}, v{a+1}'); A(f'v_permlane16_swap_b32 v{a+2}, v{a+3}')
        A('s_nop 0')
        A(f'v_add_f32 v{a}, v{a}, v{a+1}'); A(f'v_add_f32 v{a+2}, v{a+2}, v{a+3}')
        A('s_nop 1')
        A(f'v_permlane32_swap_b32 v{a}, v{a+2}')
        A('s_nop 1')
        A(f'v_add_f32 v{a}, v{a}, v{a+2}')
        A('s_nop 1')
        A(f'v_add_f32_dpp v{a}, v{a}, v{a} row_ror:8 row_mask:0xf bank_mask:0xf')

    def gather(self, dst, sbase, N, tagged):
        A = self.A
        l = self.newlab('G'); d = self.newlab('GD')
        A('s_setprio 3')
        A(f's_add_u32 s51, {sbase}, 4096')
        A('s_mov_b32 s49, 0x8000')
        self.lab(l)
        for k in range(N):
            r = dst + 4 * k
            A(f'buffer_load_dwordx4 v[{r}:{r+3}], v1, s[44:47], {sbase if k < 4 else "s51"} offen offset:{1024*(k&3)} sc1')
        for k in range(N):
            r = dst + 4 * k
            A(f's_waitcnt vmcnt({N-1-k})')
            if tagged:
                if k == 0:
                    A(f'v_min_u32 v5, v{r+1}, v{r+3}'); A(f'v_max_u32 v7, v{r+1}, v{r+3}')
                else:
                    A(f'v_min3_u32 v5, v5, v{r+1}, v{r+3}'); A(f'v_max3_u32 v7, v7, v{r+1}, v{r+3}')
            else:
                if k == 0:
                    A(f'v_xor_b32 v5, s8, v{r}'); A(f'v_xor_b32 v7, s9, v{r+1}')
                else:
                    A(f'v_bitop3_b32 v5, s8, v5, v{r} bitop3:0xde'); A(f'v_bitop3_b32 v7, s9, v7, v{r+1} bitop3:0xde')
                A(f'v_bitop3_b32 v5, s12, v5, v{r+2} bitop3:0xde'); A(f'v_bitop3_b32 v7, s13, v7, v{r+3} bitop3:0xde')
        if tagged:
            A('v_cmp_ne_u32 vcc, s55, v5')
            A('v_cmp_ne_u32 s[66:67], s55, v7')
            A('s_or_b64 s[66:67], s[66:67], vcc')
            A(f's_cbranch_scc0 {d}')
        else:
            A('v_or_b32 v5, v5, v7')
            A('v_and_b32 v5, 0xff, v5')
            A('v_cmp_ne_u32 vcc, 0, v5')
            A(f's_cbranch_vccz {d}')
        A('s_sub_u32 s49, s49, 1')
        A(f's_cbranch_scc0 {l}')
        self.lab(d)

    MK = [50, 52, 56, 58, 60, 62, 64, 66]
    def mgather(self, sets):
        A = self.A
        l = self.newlab('MG'); d = self.newlab('MGD')
        A('s_setprio 3')
        for k in range(8):
            for dst, lo, hi, tg in sets:
                A(f'buffer_load_dwordx4 v[{dst+4*k}:{dst+4*k+3}], v1, s[44:47], {lo if k < 4 else hi} offen offset:{1024*(k&3)} sc1')
        def check(k):
            first = True
            for dst, lo, hi, tg in sets:
                r = dst + 4 * k
                if tg:
                    A(f'v_xor_b32 v7, s55, v{r+1}'); A(f'v_bitop3_b32 v7, s55, v7, v{r+3} bitop3:0xde')
                else:
                    A(f'v_xor_b32 v5, s8, v{r}'); A(f'v_bitop3_b32 v5, s9, v5, v{r+1} bitop3:0xde')
                    A(f'v_bitop3_b32 v5, s12, v5, v{r+2} bitop3:0xde'); A(f'v_bitop3_b32 v5, s13, v5, v{r+3} bitop3:0xde')
            if len(sets) == 2: A('v_and_or_b32 v5, v5, v15, v7')
            else: A('v_and_b32 v5, v5, v15')
            m = self.MK[k]
            A(f'v_cmp_ne_u32 s[{m}:{m+1}], 0, v5')
        n = len(sets)
        for k in range(8):
            A(f's_waitcnt vmcnt({(7-k)*n})')
            check(k)
        A('s_mov_b32 s49, 0x40000')
        self.lab(l)
        A('s_or_b64 vcc, s[50:51], s[52:53]')
        for k in range(2, 8): A(f's_or_b64 vcc, vcc, s[{self.MK[k]}:{self.MK[k]+1}]')
        A(f's_cbranch_scc0 {d}')
        for k in range(8):
            sk = self.newlab('MS'); m = self.MK[k]
            A(f's_mov_b64 exec, s[{m}:{m+1}]')
            A(f's_cbranch_execz {sk}')
            for dst, lo, hi, tg in sets:
                A(f'buffer_load_dwordx4 v[{dst+4*k}:{dst+4*k+3}], v1, s[44:47], {lo if k < 4 else hi} offen offset:{1024*(k&3)} sc1')
            self.lab(sk)
        A('s_mov_b64 exec, -1')
        A(f's_waitcnt vmcnt({self.o.get("pp", 0)})')
        for k in range(8):
            sk = self.newlab('MC'); m = self.MK[k]
            A(f's_cmp_eq_u64 s[{m}:{m+1}], 0')
            A(f's_cbranch_scc1 {sk}')
            check(k)
            self.lab(sk)
        A('s_sub_u32 s49, s49, 1')
        A(f's_cbranch_scc0 {l}')
        self.lab(d)

    def q_gather(self, br):
        A = self.A
        if self.o.get('drop', 0) & 8 or (br and self.o.get('drop', 0) & 16):
            A(f'ds_write_b32 v4, v6 offset:{F_QB if br else F_QA}')
            return
        A('v_lshrrev_b32 v8, 5, v0'); A('v_and_b32 v5, 31, v0')
        A(f'v_mul_u32_u24 v8, {QSTR}, v8'); A('v_lshl_add_u32 v8, v5, 3, v8')
        A('s_lshl_b32 s52, s22, 2'); A(f's_and_b32 s51, s2, {self.o.get("qr", 4) - 1}'); A('s_add_u32 s52, s52, s51')
        A(f's_mul_i32 s52, s52, {IB}'); A(f's_add_u32 s52, s52, {WS_Q + br * 16 * IB}')
        self.gather(32, 's52', 8, False)
        for k in range(4):
            r = 32 + 4 * k
            for e in range(4): A(f'v_add_f32 v{r+e}, v{r+e}, v{r+16+e}')
            A(f'v_cvt_pk_bf16_f32 v{r}, v{r}, v{r+1}'); A(f'v_cvt_pk_bf16_f32 v{r+1}, v{r+2}, v{r+3}')
            A(f'ds_write_b64 v8, v[{r}:{r+1}] offset:{(L_QB if br else L_QA) + 2*QSTR*k}')
        A(f'ds_write_b32 v4, v6 offset:{F_QB if br else F_QA}')
        A('s_setprio 2')

    def k_quarter(self, i, soff):
        for nn in range(2):
            for hf in range(2):
                r = 64 + 16 * i + 8 * nn + 4 * hf
                self.A(f'buffer_load_dwordx4 v[{r}:{r+3}], v2, s[32:35], {soff} offen offset:{1024*nn+128*hf} nt')
                self.A('s_nop 0')
    def v_issue(self, sig=False):
        self.A('s_setprio 1')
        for i in range(4):
            if sig and i == self.o.get('go', 2):
                sk = self.newlab('GO')
                self.A('s_cmp_lt_u32 s3, 8'); self.A(f's_cbranch_scc1 {sk}')
                self.A(f'ds_write_b32 v4, v6 offset:{F_GO}')
                self.lab(sk)
            for T in range(2):
                for nn in range(2):
                    r = 64 + 32 * T + 4 * (2 * i + nn)
                    self.A(f'buffer_load_dwordx4 v[{r}:{r+3}], v1, s[36:39], s{96+i} offen offset:{2048*T+1024*nn} nt')
                    self.A('s_nop 0')
        self.A('s_setprio 2')
    def v_from_lds(self, areg, base, quarters):
        for i in quarters:
            for T in range(2):
                for nn in range(2):
                    r = 64 + 32 * T + 4 * (2 * (i & 3) + nn)
                    self.A(f'ds_read_b128 v[{r}:{r+3}], v{areg} offset:{base + 4096*i + 2048*T + 1024*nn}')
    def vS(self, reg):
        A = self.A
        A(f'v_lshrrev_b32 v{reg}, 3, v0'); A(f'v_mul_u32_u24 v{reg}, {IB}, v{reg}'); A(f'v_lshl_add_u32 v{reg}, v10, 2, v{reg}')
    def ml_store(self, br):
        A = self.A
        A('s_setprio 3')
        A('v_mov_b32 v13, s55'); A('v_mov_b32 v15, s55')
        self.vS(7)
        if br: A(f's_add_u32 s5, s5, {16*IB}')
        A(f's_mov_b64 exec, {hex((1 << (8 * self.o.get("mlr", 4))) - 1)}')
        A(f'buffer_store_dwordx4 v[12:15], v7, s[44:47], s5 offen sc1')
        A('s_mov_b64 exec, -1')
        A('s_setprio 2')
    def op_offsets(self, br):
        for q in range(4): self.A(f's_add_u32 s{56+q}, s6, {br * 128 * IB + 8 * q * IB}')
    def read_q(self, LQ):
        for hf in range(2):
            self.A(f'ds_read_b128 v[{16+4*hf}:{19+4*hf}], v3 offset:{LQ + 128*hf}')
        self.A('s_waitcnt lgkmcnt(0)')
    def qk(self, blocks, D0, R):
        A = self.A
        N = len(blocks)
        for hf in range(2):
            for i, n in enumerate(blocks):
                r = 64 + 8 * n + 4 * hf; d = D0 + 4 * i
                c = '0' if hf == 0 else f'v[{d}:{d+3}]'
                A(f'v_mfma_f32_16x16x32_bf16 v[{d}:{d+3}], v[{r}:{r+3}], v[{16+4*hf}:{19+4*hf}], {c}')
        A(f's_nop {max(0, 8 - N)}')
        for i in range(N):
            d = D0 + 4 * i
            A(f'v_cndmask_b32 v{d}, v{d+3}, v{d}, s[14:15]')
            A(f'v_cndmask_b32 v{d+1}, v{d+1}, v{d+2}, s[14:15]')
        if N < 3: A('s_nop 1')
        for i in range(N):
            d = D0 + 4 * i
            A(f'v_add_f32_dpp v{R[i]}, v{d+1}, v{d} row_ror:8 row_mask:0xf bank_mask:0xf')
    def rowmax(self, S):
        A = self.A
        A(f'v_max3_f32 v8, v{S[0]}, v{S[1]}, v{S[2]}')
        for k in range(3, len(S) - 1, 2): A(f'v_max3_f32 v8, v8, v{S[k]}, v{S[k+1]}')
        A(f'v_max_f32 v8, v8, v{S[-1]}')
        self.ror_reduce('v_max_f32', [8], 8)
        self.xg_reduce('v_max_f32', [8], [9])
    def post_max(self):
        A = self.A
        A('s_mov_b64 exec, 0xff')
        A(f'ds_max_f32 v10, v8 offset:{L_MA}')
        A('s_mov_b64 exec, 1')
        A(f'ds_add_u32 v4, v6 offset:{C_M}')
        A('s_mov_b64 exec, -1')
    def round_chain(self, S, T):
        A = self.A
        n = len(S) // 2
        for rep in range(2):
            for k in range(n): A(f'v_cvt_pk_bf16_f32 v{T+k}, v{S[2*k]}, v{S[2*k+1]}')
            for k in range(n):
                A(f'v_lshlrev_b32 v{S[2*k]}, 16, v{T+k}')
                A(f'v_and_b32 v{S[2*k+1]}, s100, v{T+k}')
            if rep == 0:
                for x in S: A(f'v_mul_f32 v{x}, s101, v{x}')
    def softmax(self, S, PK, shared):
        A = self.A
        if shared:
            self.lds_wait(C_M, self.o['ns'])
            self.stamp(5)
            A(f'ds_read_b32 v8, v10 offset:{L_MA}')
            A('s_waitcnt lgkmcnt(0)')
        A('v_cvt_pk_bf16_f32 v8, v8, v8')
        A('v_and_b32 v8, s100, v8')
        A('v_mul_f32 v8, s101, v8')
        A('v_cvt_pk_bf16_f32 v8, v8, v8')
        A('v_and_b32 v12, s100, v8')
        for x in S: A(f'v_sub_f32 v{x}, v{x}, v12')
        for x in S: A(f'v_mul_f32 v{x}, 0x3fb8aa3b, v{x}')
        for x in S: A(f'v_exp_f32 v{x}, v{x}')
        A('s_nop 0')
        n = len(S) // 2
        for k in range(n): A(f'v_cvt_pk_bf16_f32 v{PK+k}, v{S[2*k]}, v{S[2*k+1]}')
        A(f'v_add_f32 v14, v{S[0]}, v{S[1]}'); A(f'v_add_f32 v9, v{S[2]}, v{S[3]}')
        for k in range(4, len(S), 2):
            A(f'v_add_f32 v14, v14, v{S[k]}'); A(f'v_add_f32 v9, v9, v{S[k+1]}')
        A('v_add_f32 v14, v14, v9')
        self.ror_reduce('v_add_f32', [14], 8)
        self.xg_reduce('v_add_f32', [14], [9])
        if shared:
            A('s_mov_b64 exec, 0xff')
            A(f'ds_add_f32 v10, v14 offset:{L_LA}')
            A('s_mov_b64 exec, 1')
            A(f'ds_add_u32 v4, v6 offset:{C_L}')
            A('s_mov_b64 exec, -1')
        else:
            self.ml_store(1)
    def expand_p(self, PK):
        A = self.A
        for k in range(4): A(f'v_cndmask_b32 v{16+k}, 0, v{PK+k}, s[14:15]')
        for k in range(4): A(f'v_cndmask_b32 v{28+k}, v{PK+k}, 0, s[14:15]')
        for k in range(4): A(f'v_mov_b32_dpp v{24+k}, v{16+k} row_ror:8 row_mask:0xf bank_mask:0xf')
        for k in range(4): A(f'v_mov_b32_dpp v{20+k}, v{28+k} row_ror:8 row_mask:0xf bank_mask:0xf')
    def pv(self, vm):
        A = self.A
        tq = [48, 52]
        for T in range(2):
            if vm: A(f's_waitcnt vmcnt({2 if T == 0 else 0})')
            src = 64 + 32 * T
            self.perm_tile(src, 0, tq[0])
            for tt in range(8):
                if tt < 7: self.perm_tile(src, tt + 1, tq[(tt + 1) & 1])
                else: A('s_nop 1')
                q = tq[tt & 1]
                d = 32 + 4 * (tt & 3)
                p = (16 if tt < 4 else 24) + 4 * T
                A(f'v_mfma_f32_16x16x32_bf16 v[{d}:{d+3}], v[{q}:{q+3}], v[{p}:{p+3}], v[{d}:{d+3}]')
    def task_static(self):
        A = self.A
        for i in range(4): self.k_quarter(i, f's{96+i}')
        nb = self.newlab('NB')
        A('s_cmp_lt_u32 s3, 8'); A(f's_cbranch_scc1 {nb}')
        A('s_mov_b32 s56, s16'); A('s_mov_b32 s57, s17'); A('s_mov_b32 s58, 0x4000000'); A('s_mov_b32 s59, 0x20000')
        A('s_mov_b32 s60, s18'); A('s_mov_b32 s61, s19'); A('s_mov_b32 s62, 0x4000000'); A('s_mov_b32 s63, 0x20000')
        A('s_lshl_b32 s50, s22, 24'); A('s_lshl_b32 s48, s23, 14'); A('s_add_u32 s50, s50, s48'); A(f's_add_u32 s50, s50, {61440*256 - 8*4096}')
        A('s_lshl_b32 s48, s3, 12'); A('s_add_u32 s50, s50, s48')
        A(f's_add_u32 s48, s48, {L_B - 8*4096}')
        self.kdma(56)
        A(f's_add_u32 s48, s48, {16384 - 1920}')
        A('s_mov_b32 m0, s48'); A('s_nop 0')
        for j in range(4):
            A(f'buffer_load_dwordx4 v1, s[60:63], s50 offen offset:{1024*j} nt lds')
            A('s_nop 0')
        self.lab(nb)
        self.stamp(2)
        nq = self.newlab('NQ')
        A(f's_cmp_lg_u32 s3, {self.o["qw"]}'); A(f's_cbranch_scc1 {nq}')
        self.q_gather(0)
        self.stamp(9)
        self.lab(nq)
        self.lds_wait(F_QA, 1)
        self.tag()
        self.read_q(L_QA)
        kw = self.newlab('KW')
        A('s_waitcnt vmcnt(8)')
        A('s_cmp_ge_u32 s3, 8'); A(f's_cbranch_scc1 {kw}')
        A('s_waitcnt vmcnt(0)')
        self.lab(kw)
        self.stamp(3)
        S = list(range(24, 32))
        self.qk(list(range(8)), 32, S)
        self.rowmax(S)
        self.post_max()
        self.stamp(4)
        nqb = self.newlab('NQB')
        A('s_cmp_lg_u32 s3, 9'); A(f's_cbranch_scc1 {nqb}')
        self.q_gather(1)
        self.lab(nqb)
        young = self.newlab('Y')
        self.round_chain(S, 32)
        A(f's_cmp_ge_u32 s3, {self.o["oldv"]}')
        A(f's_cbranch_scc1 {young}')
        self.v_issue()
        self.stamp(10)
        self.lab(young)
        self.softmax(S, 32, True)
        self.expand_p(32)
        A('v_lshrrev_b32 v57, 10, v11')
        for x in range(32, 48): A(f'v_mov_b32 v{x}, 0')
        A('s_lshr_b32 s52, s3, 2')
        old = self.newlab('O'); noch = self.newlab('NC')
        A(f's_cmp_lt_u32 s3, {self.o["oldv"]}')
        A(f's_cbranch_scc1 {old}')
        nsb = self.newlab('NSB')
        A('s_cmp_lt_u32 s3, 8'); A(f's_cbranch_scc1 {nsb}')
        A('s_waitcnt vmcnt(0)')
        self.lds_inc(C_B)
        self.lab(nsb)
        self.v_issue(True)
        self.stamp(10)
        self.lab(old)
        A('s_cmp_eq_u32 s52, 0'); A(f's_cbranch_scc1 {noch}')
        self.lds_wait(F_CH, 's52', areg=57)
        for q in range(4): A(f'ds_read_b128 v[{32+4*q}:{35+4*q}], v11 offset:{L_CH + 1024*q}')
        self.lab(noch)
        self.stamp(6)
        A('s_waitcnt lgkmcnt(0)')
        self.pv(True)
        self.stamp(7)
        A('s_nop 7')
        for q in range(4): A(f'ds_write_b128 v11, v[{32+4*q}:{35+4*q}] offset:{L_CH + 1024*q}')
        self.lds_inc(F_CH, areg=57)

    def ticket_req(self):
        self.A('s_mov_b32 s66, 1'); self.A('s_mov_b32 s67, 0')
        self.A('s_atomic_add_x2 s[66:67], s[28:29], s53 glc')
    def wait3(self, a, b, c):
        A = self.A
        d = self.newlab('WT')
        A(f's_waitcnt vmcnt({a})')
        A('s_cmp_eq_u32 s61, 0'); A(f's_cbranch_scc1 {d}')
        A(f's_waitcnt vmcnt({b})')
        A('s_cmp_eq_u32 s61, 1'); A(f's_cbranch_scc1 {d}')
        A(f's_waitcnt vmcnt({c})')
        self.lab(d)
    def kdma(self, srd, need=None):
        A = self.A
        for j, (imm, adj) in enumerate(((0, 896), (128, 128), (1024, 896), (1152, 0))):
            if need == j:
                A('s_mov_b64 exec, 1'); A(f'ds_max_u32 v4, v62 offset:{NEED}'); A('s_mov_b64 exec, -1')
            A('s_mov_b32 m0, s48'); A(f's_add_u32 s48, s48, {adj}')
            A(f'buffer_load_dwordx4 v2, s[{srd}:{srd+3}], s50 offen offset:{imm} nt lds')

    def task_dynamic(self):
        A = self.A
        ns = self.o['ns']; shl = self.o.get('shl', 4); ntick = (16 - ns) << shl
        A('s_setprio 1')
        A('s_sub_u32 s52, s3, 12')
        A(f's_mul_i32 s27, s52, {3*4096}'); A(f's_add_u32 s27, s27, {L_KD}')
        A('v_add_u32 v63, s27, v1')
        for x in range(32, 48): A(f'v_mov_b32 v{x}, 0')
        A('v_mov_b32 v12, 0xf149f2ca'); A('v_mov_b32 v14, 0')
        A('v_lshrrev_b32 v57, 10, v11')
        A('v_mov_b32 v56, 0xffffff00')
        self.vS(58)
        A('v_lshl_add_u32 v59, v57, 8, v1')
        A('v_lshlrev_b32 v61, 3, v10'); A('v_lshl_add_u32 v60, v57, 1, v61')
        A(f's_lshr_b32 s53, s2, {shl}'); A('s_lshl_b32 s53, s53, 8'); A(f's_add_u32 s53, s53, {WS_T}')
        A(f's_lshr_b32 s48, s23, {shl}'); A(f's_lshl_b32 s48, s48, {16 + shl}'); A('s_add_u32 s26, s26, s48')
        A('s_lshl_b32 s48, s52, 12'); A('s_add_u32 s26, s26, s48'); A('s_sub_u32 s26, s26, 16384')
        A('v_mov_b32 v62, 0')
        tl = self.o.get('tlb', 0)
        if tl:
            nt_ = self.newlab('NTL')
            A('s_cmp_lg_u32 s3, 14'); A(f's_cbranch_scc1 {nt_}')
            if tl & 1:
                A('s_lshr_b32 s48, s23, 3'); A('s_cmp_lg_u32 s48, 0'); A(f's_cbranch_scc1 {nt_}')
            sh = self.o.get('tsh', 21)
            nl = 1 << (24 - sh)
            A(f'v_lshlrev_b32 v8, {sh}, v0'); A('s_lshl_b32 s48, s23, 7'); A('v_add_u32 v8, s48, v8')
            A('s_lshl_b32 s48, s22, 24')
            A('s_setprio 3')
            A(f's_mov_b64 exec, {hex((1 << nl) - 1) if nl < 64 else -1}')
            A('buffer_load_dword v16, v8, s[36:39], s48 offen nt')
            A('buffer_load_dword v17, v8, s[32:35], s48 offen nt')
            A(f's_mov_b64 exec, {hex((1 << (nl // 2)) - 1)}')
            A('global_load_dword v18, v8, s[10:11] nt')
            A(f's_mov_b64 exec, {hex((1 << max(1, nl // 4)) - 1)}')
            A('buffer_load_dword v19, v8, s[44:47], 0 offen offset:2048 nt')
            A('s_mov_b64 exec, 1')
            A(f's_add_u32 s48, s48, {61440*256}'); A('v_add_u32 v9, s48, v8')
            A('global_load_dword v20, v9, s[16:17] nt')
            A('global_load_dword v21, v9, s[18:19] nt')
            A('global_load_dword v22, v4, s[24:25] nt')
            A('s_mov_b64 exec, -1')
            A('s_setprio 1')
            A('s_waitcnt vmcnt(0)')
            self.lab(nt_)
        A('s_waitcnt lgkmcnt(0)')
        self.tag()
        ni = self.newlab('NI')
        A(f's_and_b32 s48, s2, {(1 << shl) - 1}'); A('s_or_b32 s48, s48, s52'); A(f's_cbranch_scc1 {ni}')
        A('v_mov_b32 v5, s55')
        A('s_mov_b64 exec, 1')
        A('s_setprio 3')
        A('buffer_store_dwordx2 v[4:5], v4, s[44:47], s53 offen sc1')
        A('s_setprio 1')
        A('s_mov_b64 exec, -1')
        self.lab(ni)
        np_ = self.newlab('NPI')
        if not self.o.get('hint', 1): A(f's_branch {np_}')
        A('s_xor_b32 s48, s52, 1'); A('s_or_b32 s48, s48, s23'); A(f's_cbranch_scc1 {np_}')
        A('v_mov_b32 v5, s55'); A('v_lshlrev_b32 v8, 10, v0')
        A('s_lshl_b32 s48, s22, 8'); A(f's_add_u32 s48, s48, {WS_P}')
        A('s_mov_b64 exec, 3')
        A('s_setprio 3')
        A('buffer_store_dwordx2 v[4:5], v8, s[44:47], s48 offen sc1')
        A('s_setprio 1')
        A('s_mov_b64 exec, -1')
        self.lab(np_)
        self.stamp(2)
        A(f's_mul_i32 s56, s52, {8*IB}'); A('s_add_u32 s56, s56, s6')
        A('s_mov_b32 s21, 0')
        A('s_mov_b32 s64, 0')
        A('s_mov_b32 s65, 0')
        A('s_mov_b32 s60, 0')
        A('s_mov_b32 s59, 0')
        A('v_mov_b32 v7, 0x3fb8aa3b')
        self.lds_wait(F_QA, 1, sleep=8)
        self.read_q(L_QA)
        self.lab('L_dl')
        for b in range(3):
            pr = self.newlab('PR'); ex = self.newlab('EX'); dr = self.newlab('DR'); nx = self.newlab('NX'); tk = self.newlab('TK'); no = self.newlab('NO'); pe = self.newlab('PE')
            self._st = (pr, ex, dr, nx, tk, pe)
            A('s_cmp_lg_u32 s65, 0'); A(f's_cbranch_scc1 {dr}')
            A(f'ds_read_b32 v5, v62 offset:{L_T}')
            A('s_waitcnt lgkmcnt(0)')
            A('v_readfirstlane_b32 s48, v5')
            A('s_cmp_eq_u32 s48, 0'); A(f's_cbranch_scc1 {no}')
            self.lab(tk)
            A('v_add_u32 v62, 4, v62')
            A('s_sub_u32 s49, s48, 1')
            A(f's_cmp_ge_u32 s49, {ntick}'); A(f's_cbranch_scc1 {ex}')
            A('s_lshl_b32 s50, s48, 14'); A('s_add_u32 s50, s50, s26')
            A(f's_add_u32 s48, s27, {4096*b}')
            self.kdma(32, 0)
            A('v_add_u32 v5, 2, v62')
            for j in range(4):
                r = 80 + 16 * b + 4 * j
                if j == 3:
                    A('s_mov_b64 exec, 1'); A(f'ds_max_u32 v4, v5 offset:{NEED}'); A('s_mov_b64 exec, -1')
                A(f'buffer_load_dwordx4 v[{r}:{r+3}], v1, s[36:39], s50 offen offset:{1024*j} nt')
                A('s_nop 0')
            A('s_add_u32 s64, s64, 1')
            A('s_mov_b32 s61, 0')
            A('s_cmp_eq_u32 s60, 0'); A('s_mov_b32 s60, 0'); A(f's_cbranch_scc1 {pr}')
            A(f's_branch {nx}')
            self.lab(no)
            A('s_mov_b32 s61, 1'); A('s_mov_b32 s60, 1')
            A(f's_branch {pr}')
            self.lab(ex)
            A('s_getpc_b64 s[62:63]')
            A('s_branch L_exh')
            A('s_mov_b32 s65, s60')
            A('s_cmp_lg_u32 s60, 0'); A('s_mov_b32 s60, 0'); A(f's_cbranch_scc1 {nx}')
            self.lab(dr)
            A('s_add_u32 s65, s65, 1')
            A('v_mov_b32 v5, s65')
            A(f'ds_write_b32 v57, v5 offset:{F_EX}')
            A('s_cmp_gt_u32 s65, 2'); A('s_cbranch_scc1 L_dfin')
            A('s_mov_b32 s61, s65')
            self.lab(pr)
            A('s_cmp_lt_u32 s21, 2'); A(f's_cbranch_scc1 {pe}')
            pb = (b + 1) % 3
            self.wait3(20, 12, 4)
            for n in range(4): A(f'ds_read_b128 v[{64+4*n}:{67+4*n}], v63 offset:{4096*pb + 1024*n}')
            A('s_waitcnt lgkmcnt(0)')
            self.qk([0, 1], 48, [24, 25])
            self.round_chain([24, 25], 26)
            A('v_max3_f32 v8, v24, v25, v12')
            self.ror_reduce('v_max_f32', [8], 8)
            self.xg_reduce('v_max_f32', [8], [9])
            A('v_sub_f32 v9, v12, v8'); A('v_sub_f32 v24, v24, v8'); A('v_sub_f32 v25, v25, v8')
            A('v_mul_f32 v9, 0x3fb8aa3b, v9'); A('v_mul_f32 v24, 0x3fb8aa3b, v24'); A('v_mul_f32 v25, 0x3fb8aa3b, v25')
            A('v_exp_f32 v9, v9'); A('v_exp_f32 v24, v24'); A('v_exp_f32 v25, v25')
            A('v_mov_b32 v12, v8')
            A('v_cvt_pk_bf16_f32 v26, v24, v25')
            A('v_fma_f32 v14, v14, v9, v24')
            A('v_add_f32 v14, v14, v25')
            A('v_mov_b32_dpp v27, v26 row_ror:8 row_mask:0xf bank_mask:0xf')
            for x in range(32, 48): A(f'v_mul_f32 v{x}, v{x}, v9')
            A('v_cndmask_b32 v28, 0, v26, s[14:15]'); A('v_cndmask_b32 v29, 0, v27, s[14:15]')
            A('v_cndmask_b32 v30, v27, 0, s[14:15]'); A('v_cndmask_b32 v31, v26, 0, s[14:15]')
            self.wait3(16, 8, 0)
            vb = 80 + 16 * pb
            for tt in range(8):
                i, h = tt >> 1, tt & 1
                sel = 's31' if h else 's30'
                A(f'v_perm_b32 v{64+2*tt}, v{vb+4+i}, v{vb+i}, {sel}')
                A(f'v_perm_b32 v{65+2*tt}, v{vb+12+i}, v{vb+8+i}, {sel}')
            for tt in range(8):
                d = 32 + 4 * (tt & 3); p = 28 if tt < 4 else 30
                A(f'v_mfma_f32_16x16x16_bf16 v[{d}:{d+3}], v[{64+2*tt}:{65+2*tt}], v[{p}:{p+1}], v[{d}:{d+3}]')
            self.lab(pe)
            A('s_cmp_eq_u32 s60, 0'); A(f's_cbranch_scc1 {nx}')
            A('s_getpc_b64 s[62:63]')
            A('s_branch L_tryf')
            self.lds_wait(L_T, 1, sleep=1, areg=62)
            A(f's_branch {tk}')
            self.lab(nx)
            A('s_add_u32 s21, s21, 1')
        A('s_branch L_dl')
        self.lab('L_tryf')
        A('s_cmp_lg_u32 s59, 0'); A('s_cbranch_scc1 L_ret')
        A(f'ds_read_b32 v5, v57 offset:{F_CH}')
        A('s_waitcnt lgkmcnt(0)')
        A('v_readfirstlane_b32 s48, v5')
        A(f's_cmp_ge_u32 s48, {ns // 4}'); A('s_cbranch_scc1 L_fold')
        A('s_branch L_ret')
        self.lab('L_exh')
        self.stamp(10)
        A('s_setprio 2')
        A(f'ds_write_b32 v57, v6 offset:{F_EX}')
        A('s_cmp_lg_u32 s59, 0'); A('s_cbranch_scc1 L_ret')
        self.lds_wait(F_CH, ns // 4, areg=57)
        self.lab('L_fold')
        A('s_mov_b32 s59, 1')
        for q in range(4): A(f'ds_read_b128 v[{64+4*q}:{67+4*q}], v11 offset:{L_CH + 1024*q}')
        A(f'ds_read_b32 v8, v10 offset:{L_MA}')
        self.lds_wait(C_L, ns)
        A(f'ds_read_b32 v13, v10 offset:{L_LA}')
        A('v_cvt_pk_bf16_f32 v8, v8, v8'); A('v_and_b32 v8, s100, v8'); A('v_mul_f32 v8, s101, v8')
        A('v_cvt_pk_bf16_f32 v8, v8, v8'); A('v_and_b32 v8, s100, v8')
        A('v_max_f32 v7, v8, v12')
        A('v_sub_f32 v9, v12, v7'); A('v_sub_f32 v8, v8, v7')
        A('v_mul_f32 v9, 0x3fb8aa3b, v9'); A('v_mul_f32 v8, 0x3fb8aa3b, v8')
        A('v_exp_f32 v9, v9'); A('v_exp_f32 v8, v8')
        A('v_mov_b32 v12, v7')
        A('s_waitcnt lgkmcnt(0)')
        A('v_mul_f32 v13, 0x3d000000, v13')
        A('v_mul_f32 v14, v14, v9')
        A('v_fmac_f32 v14, v13, v8')
        for x in range(32, 48): A(f'v_mul_f32 v{x}, v{x}, v9')
        for x in range(32, 48): A(f'v_fmac_f32 v{x}, v{x+32}, v8')
        A('v_mov_b32 v7, 0x3fb8aa3b')
        self.lab('L_ret')
        A('s_add_u32 s62, s62, 4'); A('s_addc_u32 s63, s63, 0')
        A('s_setpc_b64 s[62:63]')
        self.lab('L_dfin')
        A('s_setprio 3')
        self.stamp(7)
        A('s_nop 0')
        for q in range(4): A(f'ds_write_b128 v11, v[{32+4*q}:{35+4*q}] offset:{L_CH + 1024*q}')
        A('v_add_f32_dpp v13, v14, v14 row_ror:8 row_mask:0xf bank_mask:0xf')
        self.xg_reduce('v_add_f32', [13], [9])
        A(f'ds_write_b64 v60, v[12:13] offset:{L_M4}')
        self.lds_inc(C_D)
        A('v_mov_b32 v13, s55'); A('v_mov_b32 v15, s55')
        A('s_mov_b32 s49, 0x40000')
        self.lab('L_mw')
        A(f'ds_read_b32 v5, v4 offset:{C_D}')
        A(f'ds_read_b128 v[16:19], v61 offset:{L_M4}')
        A(f'ds_read_b128 v[20:23], v61 offset:{L_M4+16}')
        for w in range(4): A(f'ds_read_b128 v[{64+4*w}:{67+4*w}], v59 offset:{L_CH + 4096*w}')
        A('s_waitcnt lgkmcnt(6)')
        A('v_readfirstlane_b32 s48, v5')
        A('s_cmp_ge_u32 s48, 4'); A('s_cbranch_scc1 L_mwd')
        A('s_sub_u32 s49, s49, 1')
        A('s_cbranch_scc0 L_mw')
        self.lab('L_mwd')
        A('s_waitcnt lgkmcnt(4)')
        A('v_max3_f32 v12, v16, v18, v20'); A('v_max_f32 v12, v12, v22')
        A('v_mul_f32 v8, 0x3fb8aa3b, v12')
        for w in range(4): A(f'v_fma_f32 v{16+2*w}, v{16+2*w}, v7, -v8')
        for w in range(4): A(f'v_exp_f32 v{16+2*w}, v{16+2*w}')
        A('s_waitcnt lgkmcnt(0)')
        for e in range(4): A(f'v_mul_f32 v{32+e}, v{64+e}, v16')
        for w in range(1, 4):
            for e in range(4): A(f'v_fmac_f32 v{32+e}, v{64+4*w+e}, v{16+2*w}')
        self.embed(range(32, 36))
        self.stamp(5)
        A('buffer_store_dwordx4 v[32:35], v58, s[44:47], s56 offen sc1')
        A('s_cmp_lg_u32 s3, 12'); A('s_cbranch_scc1 L_noml')
        A('v_mul_f32 v14, v17, v16')
        for w in range(1, 4): A(f'v_fmac_f32 v14, v{17+2*w}, v{16+2*w}')
        A(f's_mov_b64 exec, {hex((1 << (8 * self.o.get("mlr", 4))) - 1)}')
        A('buffer_store_dwordx4 v[12:15], v58, s[44:47], s5 offen sc1')
        A('s_mov_b64 exec, -1')
        self.hint(0)
        self.lab('L_noml')
        A('v_mov_b32 v5, 4')
        A(f'ds_write_b32 v57, v5 offset:{F_EX}')
        self.lds_inc(C_O)
        self.stamp(8)
        if self.stamps:
            A('s_mul_i32 s70, s64, 100'); A('s_add_u32 s70, s70, s68'); A('s_mov_b32 s71, s69')
        A('s_branch L_fin')

    def hint(self, br):
        A = self.A
        if not self.o.get('hint', 1): return
        A('s_lshl_b32 s48, s22, 8'); A(f's_add_u32 s48, s48, {WS_P + br * 1024}')
        A('s_mov_b32 s49, 1')
        A('s_atomic_add s49, s[28:29], s48')

    def task_b(self):
        A = self.A
        A(f'v_add_u32 v13, {L_B}, v1')
        self.lds_wait(C_B, 4)
        for n in range(16): A(f'ds_read_b128 v[{64+4*n}:{67+4*n}], v13 offset:{1024*n}')
        self.lds_wait(F_QB, 1)
        self.read_q(L_QB)
        S = list(range(24, 32))
        self.qk(list(range(8)), 32, S)
        self.rowmax(S)
        self.v_from_lds(13, 16384, range(4))
        self.round_chain(S, 32)
        self.softmax(S, 32, False)
        self.expand_p(32)
        A('v_mov_b32 v56, 0xffffff00')
        self.vS(58)
        self.op_offsets(1)
        for x in range(32, 48): A(f'v_mov_b32 v{x}, 0')
        A('s_waitcnt lgkmcnt(0)')
        self.pv(False)
        A('s_setprio 3')
        A('s_nop 6')
        self.embed(range(32, 48))
        for q in range(4):
            A(f'buffer_store_dwordx4 v[{32+4*q}:{35+4*q}], v58, s[44:47], s{56+q} offen sc1')

    def proj_result(self):
        A = self.A
        for tt in (0, 4, 1, 5, 2, 6, 3, 7):
            A(f'v_mfma_f32_16x16x32_bf16 v[{24+4*tt}:{27+4*tt}], v[16:19], v[{96+4*tt}:{99+4*tt}], 0')
        A('s_nop 1')
        for k in range(4):
            d0 = 24 + 4 * k; d4 = 24 + 4 * (k + 4)
            A(f'v_cndmask_b32 v{d0+2}, v{d4+1}, v{d0}, s[14:15]')
            A(f'v_cndmask_b32 v{d0+3}, v{d0+1}, v{d4}, s[14:15]')
        A('s_mov_b64 exec, 0xffff')
        for k in range(4):
            d0 = 24 + 4 * k
            A(f'v_add_f32_dpp v{20+k}, v{d0+3}, v{d0+2} row_ror:8 row_mask:0xf bank_mask:0xf')

    def build(self):
        A = self.A; o = self.o
        L = self.L
        L.append(HEADER.rstrip())
        L.append(f'; @launch grid=(256,1,1) block=(1024,1,1) lds={LDS_BYTES}')
        L.append('.amdgcn_target "amdgcn-amd-amdhsa--gfx950"')
        L.append('.text')
        L.append(f'.globl {NAME}_kernel')
        L.append('.p2align 8')
        L.append(f'.type {NAME}_kernel,@function')
        L.append(f'{NAME}_kernel:')
        A('s_cmp_ge_u32 s2, 256')
        A('s_cbranch_scc1 L_end')
        A('s_load_dwordx16 s[4:19], s[0:1], 0')
        A('s_load_dwordx8 s[20:27], s[0:1], 64')
        A('s_load_dwordx2 s[28:29], s[0:1], 96')
        if self.stamps:
            for i in range(70, 96): A(f's_mov_b32 s{i}, 0')
        self.stamp(0)
        A('v_lshrrev_b32 v5, 6, v0')
        A('v_mov_b32 v4, 0')
        A('v_readfirstlane_b32 s3, v5')
        A('v_and_b32 v0, 63, v0')
        A('v_lshrrev_b32 v8, 4, v0')
        A('v_and_b32 v7, 7, v0')
        A('v_lshlrev_b32 v10, 2, v7')
        A('v_and_b32 v12, 8, v0')
        A('v_lshlrev_b32 v14, 15, v12'); A('v_lshl_add_u32 v14, v8, 16, v14'); A('v_lshl_add_u32 v14, v10, 2, v14')
        A('v_and_b32 v2, 1, v0'); A('v_lshlrev_b32 v15, 6, v2'); A('v_lshl_add_u32 v15, v8, 4, v15')
        A('s_and_b32 s49, s2, 1'); A('s_lshl_b32 s49, s49, 9'); A('s_lshl_b32 s48, s3, 6'); A('s_add_u32 s49, s49, s48')
        A('s_bfe_u32 s52, s2, 0x60001')
        A('s_lshl_b32 s48, s49, 13'); A('s_lshl_b32 s50, s52, 7'); A('s_add_u32 s48, s48, s50')
        A('s_lshl_b32 s49, s49, 1'); A('v_add_u32 v15, s49, v15')
        A('s_mov_b32 s42, 0x800000'); A('s_mov_b32 s43, 0x20000')
        A('s_setprio 2')
        A('s_cmp_lt_u32 s2, 128')
        A('s_waitcnt lgkmcnt(0)')
        if o.get('early'): self.stamp(11)
        A('s_cselect_b32 s40, s10, s20'); A('s_cselect_b32 s41, s11, s21')
        A('s_cselect_b32 s66, s4, s14');  A('s_cselect_b32 s67, s5, s15')
        A('s_cselect_b32 s10, s12, s22'); A('s_cselect_b32 s11, s13, s23')
        A('s_cmp_ge_u32 s3, 8')
        A('s_cbranch_scc1 L_nowq')
        for j in range(8):
            A(f'buffer_load_dwordx4 v[{64+4*j}:{67+4*j}], v14, s[40:43], s48 offen nt')
            if j < 7: A('s_add_u32 s48, s48, 8192')
        A('global_load_dwordx4 v[16:19], v15, s[66:67]')
        self.lab('L_nowq')
        if o.get('early'): self.stamp(13)
        A('v_mov_b32 v6, 1')
        A('v_lshlrev_b32 v1, 4, v0')
        A('v_and_b32 v57, 3, v5')
        A('v_lshl_add_u32 v11, v57, 12, v1')
        A('v_and_b32 v9, 15, v0')
        A('v_lshrrev_b32 v13, 2, v9')
        A('v_lshlrev_b32 v2, 4, v2')
        A('v_lshl_add_u32 v2, v13, 8, v2')
        A('v_lshl_add_u32 v2, v8, 5, v2')
        A('v_and_b32 v13, 2, v0')
        A('v_lshl_add_u32 v2, v13, 10, v2')
        A(f'v_mul_u32_u24 v3, {QSTR}, v7')
        A('v_lshl_add_u32 v3, v8, 5, v3')
        A('v_lshl_add_u32 v3, v12, 1, v3')
        A('s_mov_b32 s30, 0x05040100')
        A('s_mov_b32 s31, 0x07060302')
        A('s_mov_b32 s100, 0xffff0000')
        A('s_mov_b32 s101, 0x3db504f3')
        A('s_mov_b32 s32, s6');  A('s_mov_b32 s33, s7');  A('s_mov_b32 s34, 0x4000000'); A('s_mov_b32 s35, 0x20000')
        A('s_mov_b32 s36, s8');  A('s_mov_b32 s37, s9');  A('s_mov_b32 s38, 0x4000000'); A('s_mov_b32 s39, 0x20000')
        A('s_mov_b32 s44, s28'); A('s_mov_b32 s45, s29'); A(f's_mov_b32 s46, {WS_BYTES}'); A('s_mov_b32 s47, 0x20000')
        A('s_lshr_b32 s20, s2, 7')
        A('s_and_b32 s4, s2, 7'); A('s_bfe_u32 s7, s2, 0x30004'); A('s_lshl_b32 s7, s7, 3'); A('s_add_u32 s4, s4, s7')
        A('s_bfe_u32 s7, s2, 0x10003')
        A('s_lshr_b32 s22, s2, 6')
        A('s_and_b32 s23, s2, 63')
        A('s_mov_b32 s14, 0x00ff00ff'); A('s_mov_b32 s15, 0x00ff00ff')
        A('s_lshl_b32 s48, s23, 7')
        A(f's_mul_i32 s6, s22, {32*IB}'); A('s_add_u32 s6, s6, s48'); A(f's_add_u32 s6, s6, {WS_I1}')
        A(f's_mul_i32 s5, s22, {4*IB}'); A('s_add_u32 s5, s5, s48'); A(f's_add_u32 s5, s5, {WS_ML}')
        A('s_lshl_b32 s96, s22, 24')
        A('s_lshr_b32 s48, s3, 2'); A('s_add_u32 s48, s48, s22'); A('s_and_b32 s48, s48, 3'); A('s_lshl_b32 s48, s48, 22'); A('s_add_u32 s96, s96, s48')
        A('s_mov_b32 s26, s96')
        mp = o.get('map', 12)
        if mp & 1:
            A('s_lshl_b32 s48, s22, 4'); A('s_add_u32 s48, s48, s23'); A('s_and_b32 s48, s48, 63'); A('s_lshl_b32 s48, s48, 16'); A('s_add_u32 s96, s96, s48')
        else:
            A('s_lshl_b32 s48, s23, 16'); A('s_add_u32 s96, s96, s48')
        if mp >= 18:
            A('s_and_b32 s48, s3, 3'); A('s_lshl_b32 s48, s48, 13'); A('s_add_u32 s96, s96, s48')
            A('s_add_u32 s97, s96, 4096'); A('s_add_u32 s98, s96, 32768'); A('s_add_u32 s99, s96, 36864')
        else:
            A('s_and_b32 s48, s3, 3'); A('s_lshl_b32 s48, s48, 12'); A('s_add_u32 s96, s96, s48')
            A('s_add_u32 s97, s96, 16384'); A('s_add_u32 s98, s96, 32768'); A('s_add_u32 s99, s96, 49152')
        A('s_cmp_ge_u32 s3, 8')
        A('s_cbranch_scc1 L_young0')
        A('s_load_dword s54, s[28:29], 0')
        A('s_lshr_b32 s56, s2, 5'); A(f's_mul_i32 s56, s56, {4*IB}'); A('s_and_b32 s48, s2, 1'); A('s_lshl_b32 s48, s48, 12'); A('s_add_u32 s56, s56, s48')
        A('s_and_b32 s48, s52, 15'); A('s_lshl_b32 s48, s48, 8'); A('s_add_u32 s56, s56, s48'); A(f's_add_u32 s56, s56, {WS_Q}')
        A(f'v_mul_u32_u24 v60, {IB}, v8'); A('v_lshl_add_u32 v60, v9, 4, v60')
        A('v_lshlrev_b32 v7, 3, v10'); A('v_lshl_add_u32 v7, v12, 1, v7')
        A('s_lshl_b32 s48, s3, 8'); A('v_add_u32 v7, s48, v7')
        A('v_mov_b32 v56, 0xffffff00')
        if o.get('early'):
            A('s_waitcnt vmcnt(8)'); self.stamp(9)
        A('s_barrier')
        if o.get('early'):
            self.stamp(8)
        A('s_waitcnt vmcnt(0)')
        if o.get('early'): self.stamp(12); A('s_branch L_fin')
        for tt in range(8): self.perm_tile(64, tt, 96 + 4 * tt)
        A('s_nop 1')
        self.proj_result()
        A(f'ds_write_b128 v7, v[20:23] offset:{L_QS}')
        A('s_mov_b64 exec, -1')
        self.lds_inc_rtn(C_Q)
        self.stamp(1)
        self.tag()
        A('s_cmp_lg_u32 s48, 7')
        A('s_cbranch_scc1 L_task')
        A('s_setprio 3')
        for k in range(2): A(f'ds_read_b128 v[{32+4*k}:{35+4*k}], v1 offset:{L_QS + 1024*k}')
        A('s_waitcnt lgkmcnt(0)')
        for e in range(4): A(f'v_add_f32 v{32+e}, v{32+e}, v{36+e}')
        self.xg_reduce('v_add_f32', [32, 33, 34, 35], [36, 37, 38, 39])
        self.embed(range(32, 36))
        if o.get('qr', 4) < 4: A(f's_mov_b64 exec, {hex((1 << (16 * o["qr"])) - 1)}')
        A('buffer_store_dwordx4 v[32:35], v60, s[44:47], s56 offen sc1')
        A('s_mov_b64 exec, -1')
        A('s_setprio 2')
        A('s_branch L_task')
        self.lab('L_young0')
        A('v_mov_b32 v5, 0xff800000')
        A('v_cmp_gt_u32 vcc, 16, v0')
        A('v_lshlrev_b32 v7, 2, v0')
        A('s_nop 0')
        A('v_cndmask_b32 v5, v4, v5, vcc')
        A(f'ds_write_b32 v7, v5 offset:{L_MISC}')
        A('s_lshl_b32 s48, s3, 8'); A('v_add_u32 v9, s48, v7')
        A(f'ds_write_b32 v9, v4 offset:{L_T - 2048}')
        A('s_waitcnt lgkmcnt(0)')
        A('s_barrier')
        A('s_load_dword s54, s[28:29], 0')
        if o.get('early'): self.stamp(8); A('s_branch L_fin')
        A('s_cmp_ge_u32 s3, 12')
        A('s_cbranch_scc1 L_dyn')
        if o['ns'] == 8:
            A('s_waitcnt lgkmcnt(0)'); self.tag(); A('s_branch L_c')
        self.lab('L_task')
        self.task_static()
        A('s_cmp_ge_u32 s3, 8')
        A('s_cbranch_scc1 L_c')
        A('s_cmp_lg_u32 s3, 0'); A('s_cbranch_scc1 L_nd')
        shl = o['shl']; ntick = (16 - o['ns']) << shl
        A(f's_lshr_b32 s53, s2, {shl}'); A('s_lshl_b32 s53, s53, 8'); A(f's_add_u32 s53, s53, {WS_T}')
        A('s_mov_b32 s52, 0'); A('s_mov_b32 s50, 0')
        A('s_setprio 3')
        self.lds_wait(F_GO, 1, sleep=2)
        self.lab('L_deal')
        A('s_mov_b32 s51, 0x8000')
        self.lab('L_drt')
        self.ticket_req()
        A('s_waitcnt lgkmcnt(0)')
        A('s_cmp_eq_u32 s67, s55'); A('s_cbranch_scc1 L_dok')
        A('s_sub_u32 s51, s51, 1'); A('s_cbranch_scc0 L_drt')
        A('s_mov_b32 s66, 0x10000')
        self.lab('L_dok')
        A('s_add_u32 s66, s66, 1')
        A('v_mov_b32 v8, s66'); A('v_mov_b32 v9, s52')
        if o.get('rk'):
            A(f's_cmp_gt_u32 s66, {ntick + o.get("rk2", 64)}'); A('s_cselect_b32 s48, 1, 2')
            A(f's_cmp_gt_u32 s66, {ntick + o["rk"]}'); A('s_cselect_b32 s48, s48, 3'); A('v_mov_b32 v5, s48')
            A(f'ds_write_b32 v4, v5 offset:{WGL}')
        A(f'ds_write_b32 v9, v8 offset:{L_T}')
        A(f's_cmp_gt_u32 s66, {ntick}'); A('s_cbranch_scc1 L_ddone')
        A('s_add_u32 s52, s52, 4')
        kap = o.get('kap', -1)
        S = 1 << shl
        if kap >= 0:
            A('s_sub_u32 s56, s66, s50')
            A('s_lshr_b32 s57, s66, 2'); A(f's_add_u32 s57, s57, {S}')
            A('s_cmp_eq_u32 s50, 0')
            A('s_cselect_b32 s56, s57, s56')
            A('s_mov_b32 s50, s66')
            A(f's_mul_i32 s57, s56, {kap + 2}'); A('s_lshr_b32 s57, s57, 1'); A('s_add_u32 s57, s57, s66')
            A(f's_cmp_le_u32 s56, {S + o.get("dm", 0)}'); A('s_cselect_b32 s57, 0, s57')
            A(f's_cmp_le_u32 s66, {S + 1}'); A('s_cselect_b32 s57, 0, s57')
            A('s_mov_b32 s66, 0x10000')
            A(f's_cmp_gt_u32 s57, {ntick + (kap * S) // 2}'); A('s_cbranch_scc1 L_dok')
        A('s_mov_b32 s58, s52')
        if o.get('eg'):
            A('s_add_u32 s59, s52, 2'); A(f's_cmp_gt_u32 {"s50" if kap >= 0 else "s66"}, {ntick - o["eg"]}'); A('s_cselect_b32 s58, s59, s52')
        self.lds_wait(NEED, 's58', sleep=0)
        A('s_branch L_deal')
        self.lab('L_ddone')
        A('s_setprio 2')
        self.lab('L_nd')
        A('s_cmp_lg_u32 s3, 1'); A('s_cbranch_scc1 L_wo')
        self.o['inB'] = 1
        self.task_b()
        self.o['inB'] = 0
        A('s_setprio 2')
        A('v_lshrrev_b32 v57, 10, v11')
        self.stamp(9)
        self.lab('L_wo')
        A('s_mov_b32 s40, s10'); A('s_mov_b32 s41, s11')
        A('s_lshr_b32 s50, s4, 4'); A('s_lshl_b32 s50, s50, 10')
        A('s_and_b32 s51, s4, 3'); A('s_lshl_b32 s51, s51, 5'); A('s_add_u32 s50, s50, s51')
        A('s_bfe_u32 s51, s4, 0x20002'); A('s_add_u32 s50, s50, s51')
        A('s_lshl_b32 s50, s50, 11'); A('s_lshl_b32 s51, s7, 10'); A('s_add_u32 s50, s50, s51'); A('s_lshl_b32 s51, s3, 7'); A('s_add_u32 s50, s50, s51')
        A('v_lshrrev_b32 v8, 4, v0')
        A('v_lshlrev_b32 v58, 19, v8'); A('v_lshl_add_u32 v58, v10, 2, v58'); A('v_and_b32 v5, 8, v0'); A('v_lshl_add_u32 v58, v5, 10, v58')
        A('v_mov_b32 v56, 0xffffff00'); A('v_mov_b32 v61, v5')
        ge = self.newlab('GE')
        if o['woe']:
            A(f's_cmp_lt_u32 s3, {o["woe"]}'); A(f's_cbranch_scc1 {ge}')
        A(f's_cmp_lt_u32 s3, 4'); A(f's_cselect_b32 s52, {o.get("wga", 3)}, {o.get("wgb", 3)}')
        if o.get('rk'):
            self.lds_wait(F_EX, 1, sleep=1, areg=57)
            A(f'ds_read_b32 v5, v4 offset:{WGL}'); A('s_waitcnt lgkmcnt(0)'); A('v_readfirstlane_b32 s52, v5')
        if o.get('wA'):
            A('s_cmp_eq_u32 s20, 0'); A(f's_cselect_b32 s52, {o["wA"]}, ' + (str(o['wB']) if o.get('wB') else 's52'))
        self.lds_wait(F_EX, 's52', sleep=1, areg=57)
        A('s_setprio 0')
        self.lab(ge)
        for j in range(8):
            A(f'buffer_load_dwordx4 v[{64+4*j}:{67+4*j}], v58, s[40:43], s50 offen nt')
            if j < 7: A(f's_add_u32 s50, s50, {16384 if j != 3 else (128 - 24) * 2048}')
        self.stamp(11)
        A('s_setprio 2')
        self.lds_inc(C_W)
        A('v_and_b32 v60, 1, v0'); A('v_lshlrev_b32 v60, 6, v60'); A('v_lshl_add_u32 v60, v8, 4, v60')
        A('v_bfe_u32 v59, v0, 2, 1'); A(f'v_mul_u32_u24 v59, {IB}, v59')
        A('v_and_b32 v7, 3, v0'); A('v_lshl_add_u32 v59, v7, 5, v59'); A('v_lshl_add_u32 v59, v61, 1, v59')
        A('s_lshl_b32 s53, s20, 5'); A('s_lshl_b32 s48, s7, 4'); A('s_add_u32 s53, s53, s48'); A('s_lshl_b32 s48, s3, 1'); A('s_add_u32 s53, s53, s48')
        A(f's_mul_i32 s53, s53, {IB}'); A('s_lshl_b32 s48, s4, 7'); A('s_add_u32 s53, s53, s48'); A(f's_add_u32 s53, s53, {WS_I2}')
        A('s_waitcnt vmcnt(0)')
        A('s_mov_b64 exec, 1'); A(f'ds_add_u32 v4, v6 offset:{C_W}'); A(f'ds_add_u32 v4, v6 offset:{F_X3}'); A('s_mov_b64 exec, -1')
        for tt in range(8): self.perm_tile(64, tt, 96 + 4 * tt)
        self.stamp(12)
        if o.get('notail'): A('s_branch L_fin')
        if o.get('pt', 0) & 1:
            A('s_lshl_b32 s48, s4, 7'); A('s_sub_u32 s48, s53, s48'); A('s_add_u32 s48, s48, 8192')
            A('s_mov_b64 exec, 0x11')
            A('buffer_load_dword v62, v59, s[44:47], s48 offen')
            A('s_mov_b64 exec, -1')
        A('s_mov_b32 s49, 0x40000')
        self.lab('L_ow')
        A(f'ds_read_b32 v5, v4 offset:{F_O}')
        A(f'ds_read_b128 v[16:19], v60 offset:{L_O}')
        A('s_waitcnt lgkmcnt(0)')
        A('v_readfirstlane_b32 s48, v5')
        A('s_cmp_ge_u32 s48, 2'); A('s_cbranch_scc1 L_owd')
        A('s_sub_u32 s49, s49, 1')
        A('s_cbranch_scc0 L_ow')
        self.lab('L_owd')
        self.proj_result()
        self.embed(range(20, 24))
        A('buffer_store_dwordx4 v[20:23], v59, s[44:47], s53 offen sc1')
        A('s_mov_b64 exec, -1')
        if o.get('rs', 2) == 3:
            A('s_waitcnt vmcnt(0)')
            self.lds_inc(C_W)
        self.stamp(13)
        A('s_branch L_fin')
        self.lab('L_dyn')
        self.task_dynamic()
        self.lab('L_c')
        A('s_cmp_eq_u32 s3, 11')
        A('s_cbranch_scc1 L_red')
        A('s_cmp_lg_u32 s3, 8')
        A('s_cbranch_scc1 L_comb')
        if o.get('notail') or not o.get('hint', 1): A('s_branch L_fin')
        A('s_lshr_b32 s40, s4, 4'); A('s_lshl_b32 s41, s20, 2'); A('s_add_u32 s40, s40, s41'); A('s_lshl_b32 s40, s40, 8'); A(f's_add_u32 s40, s40, {WS_P}')
        A('v_mov_b32 v13, 16'); A('s_mov_b32 s50, 0x8000')
        A('s_cmp_lg_u32 s20, 0'); A('s_cbranch_scc1 L_fin')
        self.lds_wait(C_O, 4, sleep=1)
        self.lab('L_hp')
        A('s_load_dwordx2 s[56:57], s[28:29], s40 glc')
        A(f'ds_read_b32 v5, v4 offset:{C_W}')
        A('s_waitcnt lgkmcnt(0)')
        A('v_readfirstlane_b32 s48, v5')
        A('s_cmp_ge_u32 s48, 16'); A('s_cbranch_scc1 L_fin')
        A('s_cmp_lg_u32 s57, s55'); A('s_cbranch_scc1 L_fin')
        A(f's_cmp_ge_u32 s56, {o.get("hn", 60)}'); A('s_cbranch_scc1 L_hok')
        A(f's_sleep {o.get("hs", 16)}')
        A('s_sub_u32 s50, s50, 1')
        A('s_cbranch_scc0 L_hp')
        self.lab('L_hok')
        A('s_mov_b64 exec, 1')
        A(f'ds_add_u32 v4, v13 offset:{C_W}')
        A('s_mov_b64 exec, -1')
        self.stamp(9)
        A('s_branch L_fin')
        self.lab('L_comb')
        if o.get('notail'): A('s_branch L_fin')
        A('s_lshr_b32 s40, s4, 4'); A('s_lshl_b32 s41, s20, 2'); A('s_add_u32 s40, s40, s41')
        A('s_lshl_b32 s41, s40, 2'); A(f's_and_b32 s42, s2, {o.get("mlr", 4) - 1}'); A('s_add_u32 s41, s41, s42'); A(f's_mul_i32 s41, s41, {IB}'); A(f's_add_u32 s41, s41, {WS_ML}')
        A('s_lshl_b32 s40, s40, 5'); A('s_and_b32 s42, s4, 15'); A('s_lshl_b32 s42, s42, 1'); A('s_add_u32 s40, s40, s42')
        A('s_and_b32 s42, s3, 1'); A('s_add_u32 s40, s40, s42'); A(f's_mul_i32 s40, s40, {IB}'); A(f's_add_u32 s40, s40, {WS_I1}')
        A('s_lshl_b32 s42, s42, 6'); A('v_lshrrev_b32 v8, 4, v0'); A('v_add_u32 v12, v10, v8'); A('v_lshlrev_b32 v12, 1, v12'); A('v_add_u32 v12, s42, v12')
        A('s_add_u32 s42, s41, 4096'); A('s_add_u32 s43, s40, 4096')
        A('v_mov_b32 v15, 0xff'); A('v_mov_b32 v14, 0x3fb8aa3b')
        A('s_cmp_eq_u32 s20, 0'); A(f's_cselect_b32 s52, {o.get("cw", 16)}, {o.get("cwb", 8)}')
        if o.get('bex'):
            bx = self.newlab('BX')
            A(f's_cbranch_scc1 {bx}')
            self.lds_wait(F_EX, o['bex'], sleep=1)
            A('s_mov_b32 s52, 0')
            self.lab(bx)
        self.lds_wait(C_O, 4, sleep=1)
        self.lds_wait(C_W, 's52', sleep=1)
        pass
        self.stamp(11)
        M = [96 + 4 * k for k in range(8)]
        self.mgather([(96, 's41', 's42', True), (64, 's40', 's43', False)])
        self.stamp(12)
        A(f'v_max3_f32 v32, v{M[0]}, v{M[1]}, v{M[2]}'); A(f'v_max3_f32 v33, v{M[3]}, v{M[4]}, v{M[5]}'); A(f'v_max3_f32 v32, v32, v{M[6]}, v{M[7]}'); A('v_max_f32 v32, v32, v33')
        self.ror_reduce('v_max_f32', [32], 8)
        self.xg_reduce('v_max_f32', [32], [33])
        A('v_mul_f32 v32, 0x3fb8aa3b, v32')
        for k in range(8): A(f'v_fma_f32 v{16+k}, v{M[k]}, v14, -v32')
        for k in range(8): A(f'v_exp_f32 v{16+k}, v{16+k}')
        A(f'v_mul_f32 v36, v16, v{M[0]+2}')
        for k in range(1, 8): A(f'v_fmac_f32 v36, v{16+k}, v{M[k]+2}')
        fm = [f'v_mul_f32 v{32+e}, v16, v{64+e}' for e in range(4)] + [f'v_fmac_f32 v{32+e}, v{16+k}, v{64+4*k+e}' for k in range(1, 8) for e in range(4)]
        def F(n):
            for _ in range(n): A(fm.pop(0))
        F(2); A('v_add_f32_dpp v36, v36, v36 row_ror:8 row_mask:0xf bank_mask:0xf')
        for sw in ('v_permlane16_swap_b32', 'v_permlane32_swap_b32'):
            A('v_mov_b32 v37, v36'); F(2); A(f'{sw} v36, v37'); F(2); A('v_add_f32 v36, v36, v37')
        A('v_rcp_f32 v37, v36'); F(2)
        A('v_fma_f32 v38, -v36, v37, 1.0'); A('v_fma_f32 v37, v38, v37, v37')
        F(len(fm))
        self.quad_reduce(32)
        A('v_mul_f32 v32, v32, v37')
        A('v_cvt_pk_bf16_f32 v32, v32, v32')
        A('s_mov_b64 exec, s[14:15]')
        A(f'ds_write_b16 v12, v32 offset:{L_O}')
        A('s_mov_b64 exec, 1')
        A(f'ds_add_u32 v4, v6 offset:{F_O}')
        A('s_mov_b64 exec, -1')
        self.stamp(13)
        A('s_branch L_fin')
        self.lab('L_red')
        if o.get('notail'):
            A('s_cmp_lg_u32 s2, 0'); A('s_cbranch_scc1 L_fin')
            self.lds_wait(C_O, 4)
            A('v_mov_b32 v13, s55'); A('s_mov_b64 exec, 1'); A('global_store_dword v4, v13, s[28:29]'); A('s_mov_b64 exec, -1')
            A('s_branch L_fin')
        A('s_bfe_u32 s40, s2, 0x20003'); A('s_cmp_lg_u32 s40, 0')
        A('s_cbranch_scc1 L_fin')
        A('s_lshr_b32 s40, s2, 5'); A('s_lshl_b32 s40, s40, 3'); A('s_and_b32 s41, s2, 7'); A('s_add_u32 s40, s40, s41')
        A('s_lshl_b32 s42, s40, 6'); A('v_lshrrev_b32 v8, 4, v0'); A('v_add_u32 v12, v10, v8'); A('v_lshlrev_b32 v12, 1, v12'); A('v_add_u32 v12, s42, v12')
        A(f's_mul_i32 s40, s40, {IB}'); A(f's_add_u32 s40, s40, {WS_I2}')
        A('v_mov_b32 v13, s55'); A('v_mov_b32 v15, 0xff'); A('s_add_u32 s43, s40, 4096')
        rs = o.get('rs', 2)
        if rs == 0: self.lds_wait(F_O, 2, sleep=2)
        elif rs == 1: self.lds_wait(C_W, 16, sleep=2)
        elif rs == 2:
            self.lds_wait(C_O, 4, sleep=2)
            for k in range(8): A(f'buffer_load_dwordx4 v[{64+4*k}:{67+4*k}], v1, s[44:47], {"s40" if k < 4 else "s43"} offen offset:{1024*(k&3)} sc1')
            A('s_waitcnt vmcnt(0)')
            self.lds_wait(F_X3, 8, sleep=1)
            if o.get('pt', 0) & 2:
                A('s_mov_b64 exec, 1'); A('global_load_dword v62, v12, s[24:25]'); A('s_mov_b64 exec, -1')
            self.lds_wait(F_O, 2, sleep=1)
        elif rs == 3:
            self.lds_wait(C_W, 24, sleep=1)
        self.stamp(11)
        self.mgather([(64, 's40', 's43', False)])
        self.stamp(12)
        for k in range(4):
            for e in (0, 2): A(f'v_pk_add_f32 v[{40+4*k+e}:{41+4*k+e}], v[{64+4*k+e}:{65+4*k+e}], v[{80+4*k+e}:{81+4*k+e}]')
        for k in range(2):
            for e in (0, 2): A(f'v_pk_add_f32 v[{40+4*k+e}:{41+4*k+e}], v[{40+4*k+e}:{41+4*k+e}], v[{48+4*k+e}:{49+4*k+e}]')
        for e in (0, 2): A(f'v_pk_add_f32 v[{40+e}:{41+e}], v[{40+e}:{41+e}], v[{44+e}:{45+e}]')
        self.quad_reduce(40)
        A('v_cvt_pk_bf16_f32 v32, v40, v40')
        A('s_mov_b64 exec, s[14:15]')
        A('global_store_short v12, v32, s[24:25]')
        A('s_cmp_lg_u32 s2, 0')
        A('s_cbranch_scc1 L_nogen')
        A('s_mov_b64 exec, 1')
        A('global_store_dword v4, v13, s[28:29]')
        self.lab('L_nogen')
        A('s_mov_b64 exec, -1')
        self.stamp(13)
        if o.get('spin'):
            self.lab('L_spin')
            A('s_memrealtime s[60:61]'); A('s_waitcnt lgkmcnt(0)'); A('s_sub_u32 s60, s60, s68'); A(f's_cmp_lt_u32 s60, {o["spin"]}'); A('s_cbranch_scc1 L_spin')
            A('s_branch L_end')
        if o.get('dbgt'):
            A('s_load_dwordx2 s[60:61], s[0:1], 88')
            A('s_waitcnt lgkmcnt(0)')
            A('s_sub_u32 s48, s94, s68'); A('v_mov_b32 v20, s48')
            A('s_lshr_b32 s48, s2, 5'); A('s_lshl_b32 s48, s48, 1'); A('s_and_b32 s49, s2, 7'); A('s_cmp_ge_u32 s49, 2'); A('s_cbranch_scc1 L_end')
            A('s_add_u32 s48, s48, s49'); A('s_lshl_b32 s48, s48, 2'); A('v_mov_b32 v7, s48')
            A('s_mov_b64 exec, 1')
            A('global_store_dword v7, v20, s[60:61]')
            A('s_branch L_end')
        if o.get('amp'):
            A('s_waitcnt lgkmcnt(0)')
            A('s_sub_u32 s62, s94, s68'); A('s_lshl_b32 s62, s62, 2'); A('s_sub_u32 s62, s62, 6500'); A('s_min_u32 s62, s62, 30000')
            self.lab('L_amp')
            A('s_memrealtime s[60:61]'); A('s_waitcnt lgkmcnt(0)'); A('s_sub_u32 s60, s60, s68'); A('s_cmp_lt_u32 s60, s62'); A('s_cbranch_scc1 L_amp')
            A('s_branch L_end')
        if not o.get('lite'): self.lab('L_fin')
        if self.stamps:
            A('s_waitcnt vmcnt(0) lgkmcnt(0)')
            A('s_getreg_b32 s48, hwreg(HW_REG_XCC_ID)')
            A('s_getreg_b32 s49, hwreg(HW_REG_HW_ID)')
            for i in range(28): A(f'v_writelane_b32 v20, s{68+i}, {i}')
            A('v_writelane_b32 v20, s48, 28')
            A('v_writelane_b32 v20, s49, 29')
            A('s_lshl_b32 s48, s2, 4'); A('s_add_u32 s48, s48, s3'); A('s_lshl_b32 s48, s48, 7'); A(f's_add_u32 s48, s48, {STAMP_OFF}')
            A('v_lshlrev_b32 v7, 2, v0'); A('v_add_u32 v7, s48, v7')
            A('s_mov_b64 exec, 0xffffffff')
            A('global_store_dword v7, v20, s[28:29]')
        if o.get('lite'): self.lab('L_fin')
        self.lab('L_end')
        A('s_endpgm')
        L.append('.section .rodata,"a"')
        L.append('.p2align 6')
        L.append(f'.amdhsa_kernel {NAME}_kernel')
        L.append('  .amdhsa_next_free_vgpr 128')
        L.append('  .amdhsa_next_free_sgpr 102')
        L.append('  .amdhsa_accum_offset 128')
        L.append('  .amdhsa_group_segment_fixed_size 0')
        L.append('  .amdhsa_kernarg_size 104')
        L.append('  .amdhsa_user_sgpr_count 2')
        L.append('  .amdhsa_user_sgpr_kernarg_segment_ptr 1')
        L.append('  .amdhsa_system_sgpr_workgroup_id_x 1')
        L.append('.end_amdhsa_kernel')
        return '\n'.join(L) + '\n'

if __name__ == '__main__':
    out = sys.argv[1]
    stamps = 'stamps' in sys.argv[2:]
    opts = {}
    for a in sys.argv[2:]:
        if '=' in a:
            k, v = a.split('='); opts[k] = int(v)
    open(out, 'w').write(Gen(stamps, opts).build())
```

```python
import sys
NAME = 'concat_heads__gqa_block_cached__sliding_block_cached__decode'

HEADER = open('cdna_kernels/' + NAME + '.s.ref').read().split('; Override launch')[0]

IB = 8448
WS_T = 0x1000
WS_P = 0x3000
WS_Q = 0x4000
WS_ML = 0x50000
WS_I1 = 0xA0000
WS_I2 = 0x2C0000
WS_BYTES = 0x400000
STAMP_OFF = 0x10000000
L_CH, L_QS, L_QA, L_QB, L_MISC = 0, 16384, 20480, 22784, 25088
QSTR = 272
L_MA, L_LA = L_MISC, L_MISC + 64
L_C = L_MISC + 128
C_Q, C_M, C_O, C_L, F_QA, F_QB, F_O, C_B, C_D, C_W, F_X2, F_X3, F_CH = [L_C + 4 * i for i in range(13)]
F_GO = L_C + 80
F_EX = L_C + 64
L_O = L_MISC + 256
L_M4 = L_MISC + 384
L_T = L_MISC + 1024
NEED = F_X2
WGL = L_C + 96
L_B = L_T + 2048
L_KD = L_B + 32768
LDS_BYTES = L_KD + 4 * 3 * 4096

DOC = '''; ---------------------------------------------------------------------------------------------
; One persistent launch, 256 workgroups x 16 waves (one workgroup per CU), everything streamed once with nt loads.
;  hand-offs between workgroups go through d_ws with write-through stores; every 16-byte granule carries the
; ---------------------------------------------------------------------------------------------'''

class Gen:
    def __init__(self, stamps=False, opts=None):
        self.L = []
        self.stamps = stamps
        self.nlab = 0
        self.o = dict(qw=4, oldv=8, ns=12, woe=0, shl=5, rk=14, rk2=24, eg=64, mlr=2, qr=2)
        if opts: self.o.update(opts)
    def A(self, s):
        dr = self.o.get('drop', 0)
        if s.startswith('buffer_store'):
            if 'v58' in s and self.o.get('inB') and dr & 1: return
            if 'v58' in s and not self.o.get('inB') and dr & 2: return
            if 'v[12:15]' in s and dr & 4: return
            if 'v60' in s and dr & 8: return
        if s: self.L.append('    ' + s)
    def lab(self, s): self.L.append(s + ':')
    def newlab(self, p='L'):
        self.nlab += 1
        return f'{p}_{self.nlab}'
    def stamp(self, i):
        if self.o.get('lite') and i not in (0, 13): return
        if self.stamps: self.A(f's_memrealtime s[{68+2*i}:{69+2*i}]')

    def lds_wait(self, addr, val, sleep=1, areg=4):
        A = self.A
        l = self.newlab('W'); d = self.newlab('D')
        A('s_mov_b32 s49, 0x40000')
        self.lab(l)
        A(f'ds_read_b32 v5, v{areg} offset:{addr}')
        A('s_waitcnt lgkmcnt(0)')
        A('v_readfirstlane_b32 s48, v5')
        A(f's_cmp_ge_u32 s48, {val}')
        A(f's_cbranch_scc1 {d}')
        if sleep: A(f's_sleep {sleep}')
        A('s_sub_u32 s49, s49, 1')
        A(f's_cbranch_scc0 {l}')
        self.lab(d)
    def lds_inc(self, addr, areg=4):
        A = self.A
        A('s_mov_b64 exec, 1')
        A(f'ds_add_u32 v{areg}, v6 offset:{addr}')
        A('s_mov_b64 exec, -1')
    def lds_inc_rtn(self, addr):
        A = self.A
        A('s_mov_b64 exec, 1')
        A(f'ds_add_rtn_u32 v5, v4, v6 offset:{addr}')
        A('s_mov_b64 exec, -1')
        A('s_waitcnt lgkmcnt(0)')
        A('v_readfirstlane_b32 s48, v5')
    def tag(self):
        A = self.A
        A('s_and_b32 s55, s54, 0x7f7f7f7f'); A('s_add_u32 s55, s55, 0x35172b4d'); A('s_and_b32 s8, s54, 0x80808080'); A('s_xor_b32 s55, s55, s8')
        A('s_and_b32 s8, s55, 0xff'); A('s_bfe_u32 s9, s55, 0x80008'); A('s_bfe_u32 s12, s55, 0x80010'); A('s_lshr_b32 s13, s55, 24')
    TB = ['s8', 's9', 's12', 's13']
    def embed(self, regs):
        for r in regs: self.A(f'v_and_or_b32 v{r}, v{r}, v56, {self.TB[r & 3]}')

    def perm_tile(self, src, tt, dst):
        i, h = tt >> 1, tt & 1
        sel = 's31' if h else 's30'
        for jp in range(4):
            self.A(f'v_perm_b32 v{dst+jp}, v{src+4*(2*jp+1)+i}, v{src+4*(2*jp)+i}, {sel}')

    def xg_reduce(self, op, regs, tmps):
        A = self.A
        for sw in ('v_permlane16_swap_b32', 'v_permlane32_swap_b32'):
            for r, t in zip(regs, tmps): A(f'v_mov_b32 v{t}, v{r}')
            A('s_nop 1')
            for r, t in zip(regs, tmps): A(f'{sw} v{r}, v{t}')
            A('s_nop 1')
            for r, t in zip(regs, tmps): A(f'{op} v{r}, v{r}, v{t}')
    def ror_reduce(self, op, regs, n):
        A = self.A
        A('s_nop 1')
        for r in regs: A(f'{op}_dpp v{r}, v{r}, v{r} row_ror:{n} row_mask:0xf bank_mask:0xf')

    def quad_reduce(self, a):
        A = self.A
        A('s_nop 1')
        A(f'v_permlane16_swap_b32 v{a}, v{a+1}'); A(f'v_permlane16_swap_b32 v{a+2}, v{a+3}')
        A('s_nop 0')
        A(f'v_add_f32 v{a}, v{a}, v{a+1}'); A(f'v_add_f32 v{a+2}, v{a+2}, v{a+3}')
        A('s_nop 1')
        A(f'v_permlane32_swap_b32 v{a}, v{a+2}')
        A('s_nop 1')
        A(f'v_add_f32 v{a}, v{a}, v{a+2}')
        A('s_nop 1')
        A(f'v_add_f32_dpp v{a}, v{a}, v{a} row_ror:8 row_mask:0xf bank_mask:0xf')

    def gather(self, dst, sbase, N, tagged):
        A = self.A
        l = self.newlab('G'); d = self.newlab('GD')
        A('s_setprio 3')
        A(f's_add_u32 s51, {sbase}, 4096')
        A('s_mov_b32 s49, 0x8000')
        self.lab(l)
        for k in range(N):
            r = dst + 4 * k
            A(f'buffer_load_dwordx4 v[{r}:{r+3}], v1, s[44:47], {sbase if k < 4 else "s51"} offen offset:{1024*(k&3)} sc1')
        for k in range(N):
            r = dst + 4 * k
            A(f's_waitcnt vmcnt({N-1-k})')
            if tagged:
                if k == 0:
                    A(f'v_min_u32 v5, v{r+1}, v{r+3}'); A(f'v_max_u32 v7, v{r+1}, v{r+3}')
                else:
                    A(f'v_min3_u32 v5, v5, v{r+1}, v{r+3}'); A(f'v_max3_u32 v7, v7, v{r+1}, v{r+3}')
            else:
                for e in range(4): A(f'v_xor_b32 v{r+e}, {self.TB[e]}, v{r+e}')
                if k == 0:
                    A(f'v_or_b32 v5, v{r}, v{r+1}'); A(f'v_or_b32 v7, v{r+2}, v{r+3}')
                else:
                    A(f'v_or3_b32 v5, v5, v{r}, v{r+1}'); A(f'v_or3_b32 v7, v7, v{r+2}, v{r+3}')
        if tagged:
            A('v_cmp_ne_u32 vcc, s55, v5')
            A('v_cmp_ne_u32 s[66:67], s55, v7')
            A('s_or_b64 s[66:67], s[66:67], vcc')
            A(f's_cbranch_scc0 {d}')
        else:
            A('v_or_b32 v5, v5, v7')
            A('v_and_b32 v5, 0xff, v5')
            A('v_cmp_ne_u32 vcc, 0, v5')
            A(f's_cbranch_vccz {d}')
        A('s_sub_u32 s49, s49, 1')
        A(f's_cbranch_scc0 {l}')
        self.lab(d)

    MK = [50, 52, 56, 58, 60, 62, 64, 66]
    def mgather(self, sets):
        A = self.A
        l = self.newlab('MG'); d = self.newlab('MGD')
        A('s_setprio 3')
        for k in range(8):
            for dst, lo, hi, tg in sets:
                A(f'buffer_load_dwordx4 v[{dst+4*k}:{dst+4*k+3}], v1, s[44:47], {lo if k < 4 else hi} offen offset:{1024*(k&3)} sc1')
        def check(k):
            first = True
            for dst, lo, hi, tg in sets:
                r = dst + 4 * k
                if tg:
                    A(f'v_xor_b32 v7, s55, v{r+1}'); A(f'v_bitop3_b32 v7, s55, v7, v{r+3} bitop3:0xde')
                else:
                    for e in range(4): A(f'v_xor_b32 v{r+e}, {self.TB[e]}, v{r+e}')
                    A(f'v_or3_b32 v5, v{r}, v{r+1}, v{r+2}')
                    A(f'v_bitop3_b32 v5, v5, v15, v{r+3} bitop3:0xc8')
            if len(sets) == 2: A('v_or_b32 v5, v5, v7')
            m = self.MK[k]
            A(f'v_cmp_ne_u32 s[{m}:{m+1}], 0, v5')
        n = len(sets)
        for k in range(8):
            A(f's_waitcnt vmcnt({(7-k)*n})')
            check(k)
        A('s_mov_b32 s49, 0x40000')
        self.lab(l)
        A('s_or_b64 vcc, s[50:51], s[52:53]')
        for k in range(2, 8): A(f's_or_b64 vcc, vcc, s[{self.MK[k]}:{self.MK[k]+1}]')
        A(f's_cbranch_scc0 {d}')
        for k in range(8):
            sk = self.newlab('MS'); m = self.MK[k]
            A(f's_mov_b64 exec, s[{m}:{m+1}]')
            A(f's_cbranch_execz {sk}')
            for dst, lo, hi, tg in sets:
                A(f'buffer_load_dwordx4 v[{dst+4*k}:{dst+4*k+3}], v1, s[44:47], {lo if k < 4 else hi} offen offset:{1024*(k&3)} sc1')
            self.lab(sk)
        A('s_waitcnt vmcnt(0)')
        for k in range(8):
            sk = self.newlab('MC'); m = self.MK[k]
            A(f's_mov_b64 exec, s[{m}:{m+1}]')
            A(f's_cbranch_execz {sk}')
            check(k)
            self.lab(sk)
        A('s_mov_b64 exec, -1')
        A('s_sub_u32 s49, s49, 1')
        A(f's_cbranch_scc0 {l}')
        self.lab(d)

    def q_gather(self, br):
        A = self.A
        if self.o.get('drop', 0) & 8 or (br and self.o.get('drop', 0) & 16):
            A(f'ds_write_b32 v4, v6 offset:{F_QB if br else F_QA}')
            return
        A('v_lshrrev_b32 v8, 5, v0'); A('v_and_b32 v5, 31, v0')
        A(f'v_mul_u32_u24 v8, {QSTR}, v8'); A('v_lshl_add_u32 v8, v5, 3, v8')
        A('s_lshl_b32 s52, s22, 2'); A(f's_and_b32 s51, s2, {self.o.get("qr", 4) - 1}'); A('s_add_u32 s52, s52, s51')
        A(f's_mul_i32 s52, s52, {IB}'); A(f's_add_u32 s52, s52, {WS_Q + br * 16 * IB}')
        self.gather(32, 's52', 8, False)
        for k in range(4):
            r = 32 + 4 * k
            for e in range(4): A(f'v_add_f32 v{r+e}, v{r+e}, v{r+16+e}')
            A(f'v_cvt_pk_bf16_f32 v{r}, v{r}, v{r+1}'); A(f'v_cvt_pk_bf16_f32 v{r+1}, v{r+2}, v{r+3}')
            A(f'ds_write_b64 v8, v[{r}:{r+1}] offset:{(L_QB if br else L_QA) + 2*QSTR*k}')
        A(f'ds_write_b32 v4, v6 offset:{F_QB if br else F_QA}')
        A('s_setprio 2')

    def k_quarter(self, i, soff):
        for nn in range(2):
            for hf in range(2):
                r = 64 + 16 * i + 8 * nn + 4 * hf
                self.A(f'buffer_load_dwordx4 v[{r}:{r+3}], v2, s[32:35], {soff} offen offset:{1024*nn+128*hf} nt')
                self.A('s_nop 0')
    def v_issue(self, sig=False):
        self.A('s_setprio 1')
        for i in range(4):
            if sig and i == self.o.get('go', 2):
                sk = self.newlab('GO')
                self.A('s_cmp_lt_u32 s3, 8'); self.A(f's_cbranch_scc1 {sk}')
                self.A(f'ds_write_b32 v4, v6 offset:{F_GO}')
                self.lab(sk)
            for T in range(2):
                for nn in range(2):
                    r = 64 + 32 * T + 4 * (2 * i + nn)
                    self.A(f'buffer_load_dwordx4 v[{r}:{r+3}], v1, s[36:39], s{96+i} offen offset:{2048*T+1024*nn} nt')
                    self.A('s_nop 0')
        self.A('s_setprio 2')
    def v_from_lds(self, areg, base, quarters):
        for i in quarters:
            for T in range(2):
                for nn in range(2):
                    r = 64 + 32 * T + 4 * (2 * (i & 3) + nn)
                    self.A(f'ds_read_b128 v[{r}:{r+3}], v{areg} offset:{base + 4096*i + 2048*T + 1024*nn}')
    def vS(self, reg):
        A = self.A
        A(f'v_lshrrev_b32 v{reg}, 3, v0'); A(f'v_mul_u32_u24 v{reg}, {IB}, v{reg}'); A(f'v_lshl_add_u32 v{reg}, v10, 2, v{reg}')
    def ml_store(self, br):
        A = self.A
        A('s_setprio 3')
        A('v_mov_b32 v13, s55'); A('v_mov_b32 v15, s55')
        self.vS(7)
        if br: A(f's_add_u32 s5, s5, {16*IB}')
        A(f's_mov_b64 exec, {hex((1 << (8 * self.o.get("mlr", 4))) - 1)}')
        A(f'buffer_store_dwordx4 v[12:15], v7, s[44:47], s5 offen sc1')
        A('s_mov_b64 exec, -1')
        A('s_setprio 2')
    def op_offsets(self, br):
        for q in range(4): self.A(f's_add_u32 s{56+q}, s6, {br * 128 * IB + 8 * q * IB}')
    def read_q(self, LQ):
        for hf in range(2):
            self.A(f'ds_read_b128 v[{16+4*hf}:{19+4*hf}], v3 offset:{LQ + 128*hf}')
        self.A('s_waitcnt lgkmcnt(0)')
    def qk(self, blocks, D0, R):
        A = self.A
        N = len(blocks)
        for hf in range(2):
            for i, n in enumerate(blocks):
                r = 64 + 8 * n + 4 * hf; d = D0 + 4 * i
                c = '0' if hf == 0 else f'v[{d}:{d+3}]'
                A(f'v_mfma_f32_16x16x32_bf16 v[{d}:{d+3}], v[{r}:{r+3}], v[{16+4*hf}:{19+4*hf}], {c}')
        A(f's_nop {max(0, 8 - N)}')
        for i in range(N):
            d = D0 + 4 * i
            A(f'v_cndmask_b32 v{d}, v{d+3}, v{d}, s[14:15]')
            A(f'v_cndmask_b32 v{d+1}, v{d+1}, v{d+2}, s[14:15]')
        if N < 3: A('s_nop 1')
        for i in range(N):
            d = D0 + 4 * i
            A(f'v_add_f32_dpp v{R[i]}, v{d+1}, v{d} row_ror:8 row_mask:0xf bank_mask:0xf')
    def rowmax(self, S):
        A = self.A
        A(f'v_max3_f32 v8, v{S[0]}, v{S[1]}, v{S[2]}')
        for k in range(3, len(S) - 1, 2): A(f'v_max3_f32 v8, v8, v{S[k]}, v{S[k+1]}')
        A(f'v_max_f32 v8, v8, v{S[-1]}')
        self.ror_reduce('v_max_f32', [8], 8)
        self.xg_reduce('v_max_f32', [8], [9])
    def post_max(self):
        A = self.A
        A('s_mov_b64 exec, 0xff')
        A(f'ds_max_f32 v10, v8 offset:{L_MA}')
        A('s_mov_b64 exec, 1')
        A(f'ds_add_u32 v4, v6 offset:{C_M}')
        A('s_mov_b64 exec, -1')
    def round_chain(self, S, T):
        A = self.A
        n = len(S) // 2
        for rep in range(2):
            for k in range(n): A(f'v_cvt_pk_bf16_f32 v{T+k}, v{S[2*k]}, v{S[2*k+1]}')
            for k in range(n):
                A(f'v_lshlrev_b32 v{S[2*k]}, 16, v{T+k}')
                A(f'v_and_b32 v{S[2*k+1]}, s100, v{T+k}')
            if rep == 0:
                for x in S: A(f'v_mul_f32 v{x}, s101, v{x}')
    def softmax(self, S, PK, shared):
        A = self.A
        if shared:
            self.lds_wait(C_M, self.o['ns'])
            self.stamp(5)
            A(f'ds_read_b32 v8, v10 offset:{L_MA}')
            A('s_waitcnt lgkmcnt(0)')
        A('v_cvt_pk_bf16_f32 v8, v8, v8')
        A('v_and_b32 v8, s100, v8')
        A('v_mul_f32 v8, s101, v8')
        A('v_cvt_pk_bf16_f32 v8, v8, v8')
        A('v_and_b32 v12, s100, v8')
        for x in S: A(f'v_sub_f32 v{x}, v{x}, v12')
        for x in S: A(f'v_mul_f32 v{x}, 0x3fb8aa3b, v{x}')
        for x in S: A(f'v_exp_f32 v{x}, v{x}')
        A('s_nop 0')
        n = len(S) // 2
        for k in range(n): A(f'v_cvt_pk_bf16_f32 v{PK+k}, v{S[2*k]}, v{S[2*k+1]}')
        A(f'v_add_f32 v14, v{S[0]}, v{S[1]}'); A(f'v_add_f32 v9, v{S[2]}, v{S[3]}')
        for k in range(4, len(S), 2):
            A(f'v_add_f32 v14, v14, v{S[k]}'); A(f'v_add_f32 v9, v9, v{S[k+1]}')
        A('v_add_f32 v14, v14, v9')
        self.ror_reduce('v_add_f32', [14], 8)
        self.xg_reduce('v_add_f32', [14], [9])
        if shared:
            A('s_mov_b64 exec, 0xff')
            A(f'ds_add_f32 v10, v14 offset:{L_LA}')
            A('s_mov_b64 exec, 1')
            A(f'ds_add_u32 v4, v6 offset:{C_L}')
            A('s_mov_b64 exec, -1')
        else:
            self.ml_store(1)
    def expand_p(self, PK):
        A = self.A
        for k in range(4): A(f'v_cndmask_b32 v{16+k}, 0, v{PK+k}, s[14:15]')
        for k in range(4): A(f'v_cndmask_b32 v{28+k}, v{PK+k}, 0, s[14:15]')
        for k in range(4): A(f'v_mov_b32_dpp v{24+k}, v{16+k} row_ror:8 row_mask:0xf bank_mask:0xf')
        for k in range(4): A(f'v_mov_b32_dpp v{20+k}, v{28+k} row_ror:8 row_mask:0xf bank_mask:0xf')
    def pv(self, vm):
        A = self.A
        tq = [48, 52]
        for T in range(2):
            if vm: A(f's_waitcnt vmcnt({2 if T == 0 else 0})')
            src = 64 + 32 * T
            self.perm_tile(src, 0, tq[0])
            for tt in range(8):
                if tt < 7: self.perm_tile(src, tt + 1, tq[(tt + 1) & 1])
                else: A('s_nop 1')
                q = tq[tt & 1]
                d = 32 + 4 * (tt & 3)
                p = (16 if tt < 4 else 24) + 4 * T
                A(f'v_mfma_f32_16x16x32_bf16 v[{d}:{d+3}], v[{q}:{q+3}], v[{p}:{p+3}], v[{d}:{d+3}]')
    def task_static(self):
        A = self.A
        for i in range(4): self.k_quarter(i, f's{96+i}')
        nb = self.newlab('NB')
        A('s_cmp_lt_u32 s3, 8'); A(f's_cbranch_scc1 {nb}')
        A('s_mov_b32 s56, s16'); A('s_mov_b32 s57, s17'); A('s_mov_b32 s58, 0x4000000'); A('s_mov_b32 s59, 0x20000')
        A('s_mov_b32 s60, s18'); A('s_mov_b32 s61, s19'); A('s_mov_b32 s62, 0x4000000'); A('s_mov_b32 s63, 0x20000')
        A('s_lshl_b32 s50, s22, 24'); A('s_lshl_b32 s48, s23, 14'); A('s_add_u32 s50, s50, s48'); A(f's_add_u32 s50, s50, {61440*256 - 8*4096}')
        A('s_lshl_b32 s48, s3, 12'); A('s_add_u32 s50, s50, s48')
        A(f's_add_u32 s48, s48, {L_B - 8*4096}')
        self.kdma(56)
        A(f's_add_u32 s48, s48, {16384 - 1920}')
        A('s_mov_b32 m0, s48'); A('s_nop 0')
        for j in range(4):
            A(f'buffer_load_dwordx4 v1, s[60:63], s50 offen offset:{1024*j} nt lds')
            A('s_nop 0')
        self.lab(nb)
        self.stamp(2)
        nq = self.newlab('NQ')
        A(f's_cmp_lg_u32 s3, {self.o["qw"]}'); A(f's_cbranch_scc1 {nq}')
        self.q_gather(0)
        self.stamp(9)
        self.lab(nq)
        self.lds_wait(F_QA, 1)
        self.tag()
        self.read_q(L_QA)
        kw = self.newlab('KW')
        A('s_waitcnt vmcnt(8)')
        A('s_cmp_ge_u32 s3, 8'); A(f's_cbranch_scc1 {kw}')
        A('s_waitcnt vmcnt(0)')
        self.lab(kw)
        self.stamp(3)
        S = list(range(24, 32))
        self.qk(list(range(8)), 32, S)
        self.rowmax(S)
        self.post_max()
        self.stamp(4)
        nqb = self.newlab('NQB')
        A('s_cmp_lg_u32 s3, 9'); A(f's_cbranch_scc1 {nqb}')
        self.q_gather(1)
        self.lab(nqb)
        young = self.newlab('Y')
        self.round_chain(S, 32)
        A(f's_cmp_ge_u32 s3, {self.o["oldv"]}')
        A(f's_cbranch_scc1 {young}')
        self.v_issue()
        self.stamp(10)
        self.lab(young)
        self.softmax(S, 32, True)
        self.expand_p(32)
        A('v_lshrrev_b32 v57, 10, v11')
        for x in range(32, 48): A(f'v_mov_b32 v{x}, 0')
        A('s_lshr_b32 s52, s3, 2')
        old = self.newlab('O'); noch = self.newlab('NC')
        A(f's_cmp_lt_u32 s3, {self.o["oldv"]}')
        A(f's_cbranch_scc1 {old}')
        nsb = self.newlab('NSB')
        A('s_cmp_lt_u32 s3, 8'); A(f's_cbranch_scc1 {nsb}')
        A('s_waitcnt vmcnt(0)')
        self.lds_inc(C_B)
        self.lab(nsb)
        self.v_issue(True)
        self.stamp(10)
        self.lab(old)
        A('s_cmp_eq_u32 s52, 0'); A(f's_cbranch_scc1 {noch}')
        self.lds_wait(F_CH, 's52', areg=57)
        for q in range(4): A(f'ds_read_b128 v[{32+4*q}:{35+4*q}], v11 offset:{L_CH + 1024*q}')
        self.lab(noch)
        self.stamp(6)
        A('s_waitcnt lgkmcnt(0)')
        self.pv(True)
        self.stamp(7)
        A('s_nop 7')
        for q in range(4): A(f'ds_write_b128 v11, v[{32+4*q}:{35+4*q}] offset:{L_CH + 1024*q}')
        self.lds_inc(F_CH, areg=57)

    def ticket_req(self):
        self.A('s_mov_b32 s66, 1'); self.A('s_mov_b32 s67, 0')
        self.A('s_atomic_add_x2 s[66:67], s[28:29], s53 glc')
    def wait3(self, a, b, c):
        A = self.A
        d = self.newlab('WT')
        A(f's_waitcnt vmcnt({a})')
        A('s_cmp_eq_u32 s61, 0'); A(f's_cbranch_scc1 {d}')
        A(f's_waitcnt vmcnt({b})')
        A('s_cmp_eq_u32 s61, 1'); A(f's_cbranch_scc1 {d}')
        A(f's_waitcnt vmcnt({c})')
        self.lab(d)
    def kdma(self, srd, need=None):
        A = self.A
        for j, (imm, adj) in enumerate(((0, 896), (128, 128), (1024, 896), (1152, 0))):
            if need == j:
                A('s_mov_b64 exec, 1'); A(f'ds_max_u32 v4, v62 offset:{NEED}'); A('s_mov_b64 exec, -1')
            A('s_mov_b32 m0, s48'); A(f's_add_u32 s48, s48, {adj}')
            A(f'buffer_load_dwordx4 v2, s[{srd}:{srd+3}], s50 offen offset:{imm} nt lds')

    def task_dynamic(self):
        A = self.A
        ns = self.o['ns']; shl = self.o.get('shl', 4); ntick = (16 - ns) << shl
        A('s_setprio 1')
        A('s_sub_u32 s52, s3, 12')
        A(f's_mul_i32 s27, s52, {3*4096}'); A(f's_add_u32 s27, s27, {L_KD}')
        A('v_add_u32 v63, s27, v1')
        for x in range(32, 48): A(f'v_mov_b32 v{x}, 0')
        A('v_mov_b32 v12, 0xf149f2ca'); A('v_mov_b32 v14, 0')
        A('v_lshrrev_b32 v57, 10, v11')
        A('v_mov_b32 v56, 0xffffff00')
        self.vS(58)
        A('v_lshl_add_u32 v59, v57, 8, v1')
        A('v_lshlrev_b32 v61, 3, v10'); A('v_lshl_add_u32 v60, v57, 1, v61')
        A(f's_lshr_b32 s53, s2, {shl}'); A('s_lshl_b32 s53, s53, 8'); A(f's_add_u32 s53, s53, {WS_T}')
        A(f's_lshr_b32 s48, s23, {shl}'); A(f's_lshl_b32 s48, s48, {16 + shl}'); A('s_add_u32 s26, s26, s48')
        A('s_lshl_b32 s48, s52, 12'); A('s_add_u32 s26, s26, s48'); A('s_sub_u32 s26, s26, 16384')
        A('v_mov_b32 v62, 0')
        tl = self.o.get('tlb', 0)
        if tl:
            nt_ = self.newlab('NTL')
            A('s_cmp_lg_u32 s3, 14'); A(f's_cbranch_scc1 {nt_}')
            if tl & 1:
                A('s_lshr_b32 s48, s23, 3'); A('s_cmp_lg_u32 s48, 0'); A(f's_cbranch_scc1 {nt_}')
            sh = self.o.get('tsh', 21)
            nl = 1 << (24 - sh)
            A(f'v_lshlrev_b32 v8, {sh}, v0'); A('s_lshl_b32 s48, s23, 7'); A('v_add_u32 v8, s48, v8')
            A('s_lshl_b32 s48, s22, 24')
            A('s_setprio 3')
            A(f's_mov_b64 exec, {hex((1 << nl) - 1) if nl < 64 else -1}')
            A('buffer_load_dword v16, v8, s[36:39], s48 offen nt')
            A('buffer_load_dword v17, v8, s[32:35], s48 offen nt')
            A(f's_mov_b64 exec, {hex((1 << (nl // 2)) - 1)}')
            A('global_load_dword v18, v8, s[10:11] nt')
            A(f's_mov_b64 exec, {hex((1 << max(1, nl // 4)) - 1)}')
            A('buffer_load_dword v19, v8, s[44:47], 0 offen offset:2048 nt')
            A('s_mov_b64 exec, 1')
            A(f's_add_u32 s48, s48, {61440*256}'); A('v_add_u32 v9, s48, v8')
            A('global_load_dword v20, v9, s[16:17] nt')
            A('global_load_dword v21, v9, s[18:19] nt')
            A('global_load_dword v22, v4, s[24:25] nt')
            A('s_mov_b64 exec, -1')
            A('s_setprio 1')
            A('s_waitcnt vmcnt(0)')
            self.lab(nt_)
        A('s_waitcnt lgkmcnt(0)')
        self.tag()
        ni = self.newlab('NI')
        A(f's_and_b32 s48, s2, {(1 << shl) - 1}'); A('s_or_b32 s48, s48, s52'); A(f's_cbranch_scc1 {ni}')
        A('v_mov_b32 v5, s55')
        A('s_mov_b64 exec, 1')
        A('s_setprio 3')
        A('buffer_store_dwordx2 v[4:5], v4, s[44:47], s53 offen sc1')
        A('s_setprio 1')
        A('s_mov_b64 exec, -1')
        self.lab(ni)
        np_ = self.newlab('NPI')
        if not self.o.get('hint', 1): A(f's_branch {np_}')
        A('s_xor_b32 s48, s52, 1'); A('s_or_b32 s48, s48, s23'); A(f's_cbranch_scc1 {np_}')
        A('v_mov_b32 v5, s55'); A('v_lshlrev_b32 v8, 10, v0')
        A('s_lshl_b32 s48, s22, 8'); A(f's_add_u32 s48, s48, {WS_P}')
        A('s_mov_b64 exec, 3')
        A('s_setprio 3')
        A('buffer_store_dwordx2 v[4:5], v8, s[44:47], s48 offen sc1')
        A('s_setprio 1')
        A('s_mov_b64 exec, -1')
        self.lab(np_)
        self.stamp(2)
        A(f's_mul_i32 s56, s52, {8*IB}'); A('s_add_u32 s56, s56, s6')
        A('s_mov_b32 s21, 0')
        A('s_mov_b32 s64, 0')
        A('s_mov_b32 s65, 0')
        A('s_mov_b32 s60, 0')
        A('s_mov_b32 s59, 0')
        A('v_mov_b32 v7, 0x3fb8aa3b')
        self.lds_wait(F_QA, 1, sleep=8)
        self.read_q(L_QA)
        self.lab('L_dl')
        for b in range(3):
            pr = self.newlab('PR'); ex = self.newlab('EX'); dr = self.newlab('DR'); nx = self.newlab('NX'); tk = self.newlab('TK'); no = self.newlab('NO'); pe = self.newlab('PE')
            self._st = (pr, ex, dr, nx, tk, pe)
            A('s_cmp_lg_u32 s65, 0'); A(f's_cbranch_scc1 {dr}')
            A(f'ds_read_b32 v5, v62 offset:{L_T}')
            A('s_waitcnt lgkmcnt(0)')
            A('v_readfirstlane_b32 s48, v5')
            A('s_cmp_eq_u32 s48, 0'); A(f's_cbranch_scc1 {no}')
            self.lab(tk)
            A('v_add_u32 v62, 4, v62')
            A('s_sub_u32 s49, s48, 1')
            A(f's_cmp_ge_u32 s49, {ntick}'); A(f's_cbranch_scc1 {ex}')
            A('s_lshl_b32 s50, s48, 14'); A('s_add_u32 s50, s50, s26')
            A(f's_add_u32 s48, s27, {4096*b}')
            self.kdma(32, 0)
            A('v_add_u32 v5, 2, v62')
            for j in range(4):
                r = 80 + 16 * b + 4 * j
                if j == 3:
                    A('s_mov_b64 exec, 1'); A(f'ds_max_u32 v4, v5 offset:{NEED}'); A('s_mov_b64 exec, -1')
                A(f'buffer_load_dwordx4 v[{r}:{r+3}], v1, s[36:39], s50 offen offset:{1024*j} nt')
                A('s_nop 0')
            A('s_add_u32 s64, s64, 1')
            A('s_mov_b32 s61, 0')
            A('s_cmp_eq_u32 s60, 0'); A('s_mov_b32 s60, 0'); A(f's_cbranch_scc1 {pr}')
            A(f's_branch {nx}')
            self.lab(no)
            A('s_mov_b32 s61, 1'); A('s_mov_b32 s60, 1')
            A(f's_branch {pr}')
            self.lab(ex)
            A('s_getpc_b64 s[62:63]')
            A('s_branch L_exh')
            A('s_mov_b32 s65, s60')
            A('s_cmp_lg_u32 s60, 0'); A('s_mov_b32 s60, 0'); A(f's_cbranch_scc1 {nx}')
            self.lab(dr)
            A('s_add_u32 s65, s65, 1')
            A('v_mov_b32 v5, s65')
            A(f'ds_write_b32 v57, v5 offset:{F_EX}')
            A('s_cmp_gt_u32 s65, 2'); A('s_cbranch_scc1 L_dfin')
            A('s_mov_b32 s61, s65')
            self.lab(pr)
            A('s_cmp_lt_u32 s21, 2'); A(f's_cbranch_scc1 {pe}')
            pb = (b + 1) % 3
            self.wait3(20, 12, 4)
            for n in range(4): A(f'ds_read_b128 v[{64+4*n}:{67+4*n}], v63 offset:{4096*pb + 1024*n}')
            A('s_waitcnt lgkmcnt(0)')
            self.qk([0, 1], 48, [24, 25])
            self.round_chain([24, 25], 26)
            A('v_max3_f32 v8, v24, v25, v12')
            self.ror_reduce('v_max_f32', [8], 8)
            self.xg_reduce('v_max_f32', [8], [9])
            A('v_sub_f32 v9, v12, v8'); A('v_sub_f32 v24, v24, v8'); A('v_sub_f32 v25, v25, v8')
            A('v_mul_f32 v9, 0x3fb8aa3b, v9'); A('v_mul_f32 v24, 0x3fb8aa3b, v24'); A('v_mul_f32 v25, 0x3fb8aa3b, v25')
            A('v_exp_f32 v9, v9'); A('v_exp_f32 v24, v24'); A('v_exp_f32 v25, v25')
            A('v_mov_b32 v12, v8')
            A('v_cvt_pk_bf16_f32 v26, v24, v25')
            A('v_fma_f32 v14, v14, v9, v24')
            A('v_add_f32 v14, v14, v25')
            A('v_mov_b32_dpp v27, v26 row_ror:8 row_mask:0xf bank_mask:0xf')
            for x in range(32, 48): A(f'v_mul_f32 v{x}, v{x}, v9')
            A('v_cndmask_b32 v28, 0, v26, s[14:15]'); A('v_cndmask_b32 v29, 0, v27, s[14:15]')
            A('v_cndmask_b32 v30, v27, 0, s[14:15]'); A('v_cndmask_b32 v31, v26, 0, s[14:15]')
            self.wait3(16, 8, 0)
            vb = 80 + 16 * pb
            for tt in range(8):
                i, h = tt >> 1, tt & 1
                sel = 's31' if h else 's30'
                A(f'v_perm_b32 v{64+2*tt}, v{vb+4+i}, v{vb+i}, {sel}')
                A(f'v_perm_b32 v{65+2*tt}, v{vb+12+i}, v{vb+8+i}, {sel}')
            for tt in range(8):
                d = 32 + 4 * (tt & 3); p = 28 if tt < 4 else 30
                A(f'v_mfma_f32_16x16x16_bf16 v[{d}:{d+3}], v[{64+2*tt}:{65+2*tt}], v[{p}:{p+1}], v[{d}:{d+3}]')
            self.lab(pe)
            A('s_cmp_eq_u32 s60, 0'); A(f's_cbranch_scc1 {nx}')
            A('s_getpc_b64 s[62:63]')
            A('s_branch L_tryf')
            self.lds_wait(L_T, 1, sleep=1, areg=62)
            A(f's_branch {tk}')
            self.lab(nx)
            A('s_add_u32 s21, s21, 1')
        A('s_branch L_dl')
        self.lab('L_tryf')
        A('s_cmp_lg_u32 s59, 0'); A('s_cbranch_scc1 L_ret')
        A(f'ds_read_b32 v5, v57 offset:{F_CH}')
        A('s_waitcnt lgkmcnt(0)')
        A('v_readfirstlane_b32 s48, v5')
        A(f's_cmp_ge_u32 s48, {ns // 4}'); A('s_cbranch_scc1 L_fold')
        A('s_branch L_ret')
        self.lab('L_exh')
        self.stamp(10)
        A('s_setprio 2')
        A(f'ds_write_b32 v57, v6 offset:{F_EX}')
        A('s_cmp_lg_u32 s59, 0'); A('s_cbranch_scc1 L_ret')
        self.lds_wait(F_CH, ns // 4, areg=57)
        self.lab('L_fold')
        A('s_mov_b32 s59, 1')
        for q in range(4): A(f'ds_read_b128 v[{64+4*q}:{67+4*q}], v11 offset:{L_CH + 1024*q}')
        A(f'ds_read_b32 v8, v10 offset:{L_MA}')
        self.lds_wait(C_L, ns)
        A(f'ds_read_b32 v13, v10 offset:{L_LA}')
        A('v_cvt_pk_bf16_f32 v8, v8, v8'); A('v_and_b32 v8, s100, v8'); A('v_mul_f32 v8, s101, v8')
        A('v_cvt_pk_bf16_f32 v8, v8, v8'); A('v_and_b32 v8, s100, v8')
        A('v_max_f32 v7, v8, v12')
        A('v_sub_f32 v9, v12, v7'); A('v_sub_f32 v8, v8, v7')
        A('v_mul_f32 v9, 0x3fb8aa3b, v9'); A('v_mul_f32 v8, 0x3fb8aa3b, v8')
        A('v_exp_f32 v9, v9'); A('v_exp_f32 v8, v8')
        A('v_mov_b32 v12, v7')
        A('s_waitcnt lgkmcnt(0)')
        A('v_mul_f32 v13, 0x3d000000, v13')
        A('v_mul_f32 v14, v14, v9')
        A('v_fmac_f32 v14, v13, v8')
        for x in range(32, 48): A(f'v_mul_f32 v{x}, v{x}, v9')
        for x in range(32, 48): A(f'v_fmac_f32 v{x}, v{x+32}, v8')
        A('v_mov_b32 v7, 0x3fb8aa3b')
        self.lab('L_ret')
        A('s_add_u32 s62, s62, 4'); A('s_addc_u32 s63, s63, 0')
        A('s_setpc_b64 s[62:63]')
        self.lab('L_dfin')
        A('s_setprio 3')
        self.stamp(7)
        A('s_nop 0')
        for q in range(4): A(f'ds_write_b128 v11, v[{32+4*q}:{35+4*q}] offset:{L_CH + 1024*q}')
        A('v_add_f32_dpp v13, v14, v14 row_ror:8 row_mask:0xf bank_mask:0xf')
        self.xg_reduce('v_add_f32', [13], [9])
        A(f'ds_write_b64 v60, v[12:13] offset:{L_M4}')
        self.lds_inc(C_D)
        A('v_mov_b32 v13, s55'); A('v_mov_b32 v15, s55')
        A('s_mov_b32 s49, 0x40000')
        self.lab('L_mw')
        A(f'ds_read_b32 v5, v4 offset:{C_D}')
        A(f'ds_read_b128 v[16:19], v61 offset:{L_M4}')
        A(f'ds_read_b128 v[20:23], v61 offset:{L_M4+16}')
        for w in range(4): A(f'ds_read_b128 v[{64+4*w}:{67+4*w}], v59 offset:{L_CH + 4096*w}')
        A('s_waitcnt lgkmcnt(6)')
        A('v_readfirstlane_b32 s48, v5')
        A('s_cmp_ge_u32 s48, 4'); A('s_cbranch_scc1 L_mwd')
        A('s_sub_u32 s49, s49, 1')
        A('s_cbranch_scc0 L_mw')
        self.lab('L_mwd')
        A('s_waitcnt lgkmcnt(4)')
        A('v_max3_f32 v12, v16, v18, v20'); A('v_max_f32 v12, v12, v22')
        A('v_mul_f32 v8, 0x3fb8aa3b, v12')
        for w in range(4): A(f'v_fma_f32 v{16+2*w}, v{16+2*w}, v7, -v8')
        for w in range(4): A(f'v_exp_f32 v{16+2*w}, v{16+2*w}')
        A('s_waitcnt lgkmcnt(0)')
        for e in range(4): A(f'v_mul_f32 v{32+e}, v{64+e}, v16')
        for w in range(1, 4):
            for e in range(4): A(f'v_fmac_f32 v{32+e}, v{64+4*w+e}, v{16+2*w}')
        self.embed(range(32, 36))
        self.stamp(5)
        A('buffer_store_dwordx4 v[32:35], v58, s[44:47], s56 offen sc1')
        A('s_cmp_lg_u32 s3, 12'); A('s_cbranch_scc1 L_noml')
        A('v_mul_f32 v14, v17, v16')
        for w in range(1, 4): A(f'v_fmac_f32 v14, v{17+2*w}, v{16+2*w}')
        A(f's_mov_b64 exec, {hex((1 << (8 * self.o.get("mlr", 4))) - 1)}')
        A('buffer_store_dwordx4 v[12:15], v58, s[44:47], s5 offen sc1')
        A('s_mov_b64 exec, -1')
        self.hint(0)
        self.lab('L_noml')
        A('v_mov_b32 v5, 4')
        A(f'ds_write_b32 v57, v5 offset:{F_EX}')
        self.lds_inc(C_O)
        self.stamp(8)
        if self.stamps:
            A('s_mul_i32 s70, s64, 100'); A('s_add_u32 s70, s70, s68'); A('s_mov_b32 s71, s69')
        A('s_branch L_fin')

    def hint(self, br):
        A = self.A
        if not self.o.get('hint', 1): return
        A('s_lshl_b32 s48, s22, 8'); A(f's_add_u32 s48, s48, {WS_P + br * 1024}')
        A('s_mov_b32 s49, 1')
        A('s_atomic_add s49, s[28:29], s48')

    def task_b(self):
        A = self.A
        A(f'v_add_u32 v13, {L_B}, v1')
        self.lds_wait(C_B, 4)
        for n in range(16): A(f'ds_read_b128 v[{64+4*n}:{67+4*n}], v13 offset:{1024*n}')
        self.lds_wait(F_QB, 1)
        self.read_q(L_QB)
        S = list(range(24, 32))
        self.qk(list(range(8)), 32, S)
        self.rowmax(S)
        self.v_from_lds(13, 16384, range(4))
        self.round_chain(S, 32)
        self.softmax(S, 32, False)
        self.expand_p(32)
        A('v_mov_b32 v56, 0xffffff00')
        self.vS(58)
        self.op_offsets(1)
        for x in range(32, 48): A(f'v_mov_b32 v{x}, 0')
        A('s_waitcnt lgkmcnt(0)')
        self.pv(False)
        A('s_setprio 3')
        A('s_nop 6')
        self.embed(range(32, 48))
        for q in range(4):
            A(f'buffer_store_dwordx4 v[{32+4*q}:{35+4*q}], v58, s[44:47], s{56+q} offen sc1')

    def proj_result(self):
        A = self.A
        for tt in (0, 4, 1, 5, 2, 6, 3, 7):
            A(f'v_mfma_f32_16x16x32_bf16 v[{24+4*tt}:{27+4*tt}], v[16:19], v[{96+4*tt}:{99+4*tt}], 0')
        A('s_nop 1')
        for k in range(4):
            d0 = 24 + 4 * k; d4 = 24 + 4 * (k + 4)
            A(f'v_cndmask_b32 v{d0+2}, v{d4+1}, v{d0}, s[14:15]')
            A(f'v_cndmask_b32 v{d0+3}, v{d0+1}, v{d4}, s[14:15]')
        A('s_mov_b64 exec, 0xffff')
        for k in range(4):
            d0 = 24 + 4 * k
            A(f'v_add_f32_dpp v{20+k}, v{d0+3}, v{d0+2} row_ror:8 row_mask:0xf bank_mask:0xf')

    def build(self):
        A = self.A; o = self.o
        L = self.L
        L.append(HEADER.rstrip())
        L.append(f'; @launch grid=(256,1,1) block=(1024,1,1) lds={LDS_BYTES}')
        L.append(DOC)
        L.append('.amdgcn_target "amdgcn-amd-amdhsa--gfx950"')
        L.append('.text')
        L.append(f'.globl {NAME}_kernel')
        L.append('.p2align 8')
        L.append(f'.type {NAME}_kernel,@function')
        L.append(f'{NAME}_kernel:')
        A('s_cmp_ge_u32 s2, 256')
        A('s_cbranch_scc1 L_end')
        A('s_load_dwordx16 s[4:19], s[0:1], 0')
        A('s_load_dwordx8 s[20:27], s[0:1], 64')
        A('s_load_dwordx2 s[28:29], s[0:1], 96')
        if self.stamps:
            for i in range(70, 96): A(f's_mov_b32 s{i}, 0')
        self.stamp(0)
        A('v_lshrrev_b32 v5, 6, v0')
        A('v_mov_b32 v4, 0')
        A('v_readfirstlane_b32 s3, v5')
        A('v_and_b32 v0, 63, v0')
        A('v_lshrrev_b32 v8, 4, v0')
        A('v_and_b32 v7, 7, v0')
        A('v_lshlrev_b32 v10, 2, v7')
        A('v_and_b32 v12, 8, v0')
        A('v_lshlrev_b32 v14, 15, v12'); A('v_lshl_add_u32 v14, v8, 16, v14'); A('v_lshl_add_u32 v14, v10, 2, v14')
        A('v_and_b32 v2, 1, v0'); A('v_lshlrev_b32 v15, 6, v2'); A('v_lshl_add_u32 v15, v8, 4, v15')
        A('s_and_b32 s49, s2, 1'); A('s_lshl_b32 s49, s49, 9'); A('s_lshl_b32 s48, s3, 6'); A('s_add_u32 s49, s49, s48')
        A('s_bfe_u32 s52, s2, 0x60001')
        A('s_lshl_b32 s48, s49, 13'); A('s_lshl_b32 s50, s52, 7'); A('s_add_u32 s48, s48, s50')
        A('s_lshl_b32 s49, s49, 1'); A('v_add_u32 v15, s49, v15')
        A('s_mov_b32 s42, 0x800000'); A('s_mov_b32 s43, 0x20000')
        A('s_setprio 2')
        A('s_cmp_lt_u32 s2, 128')
        A('s_waitcnt lgkmcnt(0)')
        if o.get('early'): self.stamp(11)
        A('s_cselect_b32 s40, s10, s20'); A('s_cselect_b32 s41, s11, s21')
        A('s_cselect_b32 s66, s4, s14');  A('s_cselect_b32 s67, s5, s15')
        A('s_cselect_b32 s10, s12, s22'); A('s_cselect_b32 s11, s13, s23')
        A('s_cmp_ge_u32 s3, 8')
        A('s_cbranch_scc1 L_nowq')
        for j in range(8):
            A(f'buffer_load_dwordx4 v[{64+4*j}:{67+4*j}], v14, s[40:43], s48 offen nt')
            if j < 7: A('s_add_u32 s48, s48, 8192')
        A('global_load_dwordx4 v[16:19], v15, s[66:67]')
        self.lab('L_nowq')
        if o.get('early'): self.stamp(13)
        A('v_mov_b32 v6, 1')
        A('v_lshlrev_b32 v1, 4, v0')
        A('v_and_b32 v57, 3, v5')
        A('v_lshl_add_u32 v11, v57, 12, v1')
        A('v_and_b32 v9, 15, v0')
        A('v_lshrrev_b32 v13, 2, v9')
        A('v_lshlrev_b32 v2, 4, v2')
        A('v_lshl_add_u32 v2, v13, 8, v2')
        A('v_lshl_add_u32 v2, v8, 5, v2')
        A('v_and_b32 v13, 2, v0')
        A('v_lshl_add_u32 v2, v13, 10, v2')
        A(f'v_mul_u32_u24 v3, {QSTR}, v7')
        A('v_lshl_add_u32 v3, v8, 5, v3')
        A('v_lshl_add_u32 v3, v12, 1, v3')
        A('s_mov_b32 s30, 0x05040100')
        A('s_mov_b32 s31, 0x07060302')
        A('s_mov_b32 s100, 0xffff0000')
        A('s_mov_b32 s101, 0x3db504f3')
        A('s_mov_b32 s32, s6');  A('s_mov_b32 s33, s7');  A('s_mov_b32 s34, 0x4000000'); A('s_mov_b32 s35, 0x20000')
        A('s_mov_b32 s36, s8');  A('s_mov_b32 s37, s9');  A('s_mov_b32 s38, 0x4000000'); A('s_mov_b32 s39, 0x20000')
        A('s_mov_b32 s44, s28'); A('s_mov_b32 s45, s29'); A(f's_mov_b32 s46, {WS_BYTES}'); A('s_mov_b32 s47, 0x20000')
        A('s_lshr_b32 s20, s2, 7')
        A('s_and_b32 s4, s2, 7'); A('s_bfe_u32 s7, s2, 0x30004'); A('s_lshl_b32 s7, s7, 3'); A('s_add_u32 s4, s4, s7')
        A('s_bfe_u32 s7, s2, 0x10003')
        A('s_lshr_b32 s22, s2, 6')
        A('s_and_b32 s23, s2, 63')
        A('s_mov_b32 s14, 0x00ff00ff'); A('s_mov_b32 s15, 0x00ff00ff')
        A('s_lshl_b32 s48, s23, 7')
        A(f's_mul_i32 s6, s22, {32*IB}'); A('s_add_u32 s6, s6, s48'); A(f's_add_u32 s6, s6, {WS_I1}')
        A(f's_mul_i32 s5, s22, {4*IB}'); A('s_add_u32 s5, s5, s48'); A(f's_add_u32 s5, s5, {WS_ML}')
        A('s_lshl_b32 s96, s22, 24')
        A('s_lshr_b32 s48, s3, 2'); A('s_add_u32 s48, s48, s22'); A('s_and_b32 s48, s48, 3'); A('s_lshl_b32 s48, s48, 22'); A('s_add_u32 s96, s96, s48')
        A('s_mov_b32 s26, s96')
        mp = o.get('map', 12)
        if mp & 1:
            A('s_lshl_b32 s48, s22, 4'); A('s_add_u32 s48, s48, s23'); A('s_and_b32 s48, s48, 63'); A('s_lshl_b32 s48, s48, 16'); A('s_add_u32 s96, s96, s48')
        else:
            A('s_lshl_b32 s48, s23, 16'); A('s_add_u32 s96, s96, s48')
        if mp >= 18:
            A('s_and_b32 s48, s3, 3'); A('s_lshl_b32 s48, s48, 13'); A('s_add_u32 s96, s96, s48')
            A('s_add_u32 s97, s96, 4096'); A('s_add_u32 s98, s96, 32768'); A('s_add_u32 s99, s96, 36864')
        else:
            A('s_and_b32 s48, s3, 3'); A('s_lshl_b32 s48, s48, 12'); A('s_add_u32 s96, s96, s48')
            A('s_add_u32 s97, s96, 16384'); A('s_add_u32 s98, s96, 32768'); A('s_add_u32 s99, s96, 49152')
        A('s_cmp_ge_u32 s3, 8')
        A('s_cbranch_scc1 L_young0')
        A('s_load_dword s54, s[28:29], 0')
        A('s_lshr_b32 s56, s2, 5'); A(f's_mul_i32 s56, s56, {4*IB}'); A('s_and_b32 s48, s2, 1'); A('s_lshl_b32 s48, s48, 12'); A('s_add_u32 s56, s56, s48')
        A('s_and_b32 s48, s52, 15'); A('s_lshl_b32 s48, s48, 8'); A('s_add_u32 s56, s56, s48'); A(f's_add_u32 s56, s56, {WS_Q}')
        A(f'v_mul_u32_u24 v60, {IB}, v8'); A('v_lshl_add_u32 v60, v9, 4, v60')
        A('v_lshlrev_b32 v7, 3, v10'); A('v_lshl_add_u32 v7, v12, 1, v7')
        A('s_lshl_b32 s48, s3, 8'); A('v_add_u32 v7, s48, v7')
        A('v_mov_b32 v56, 0xffffff00')
        if o.get('early'):
            A('s_waitcnt vmcnt(8)'); self.stamp(9)
        A('s_barrier')
        if o.get('early'):
            self.stamp(8)
        A('s_waitcnt vmcnt(0)')
        if o.get('early'): self.stamp(12); A('s_branch L_fin')
        for tt in range(8): self.perm_tile(64, tt, 96 + 4 * tt)
        A('s_nop 1')
        self.proj_result()
        A(f'ds_write_b128 v7, v[20:23] offset:{L_QS}')
        A('s_mov_b64 exec, -1')
        self.lds_inc_rtn(C_Q)
        self.stamp(1)
        self.tag()
        A('s_cmp_lg_u32 s48, 7')
        A('s_cbranch_scc1 L_task')
        A('s_setprio 3')
        for k in range(2): A(f'ds_read_b128 v[{32+4*k}:{35+4*k}], v1 offset:{L_QS + 1024*k}')
        A('s_waitcnt lgkmcnt(0)')
        for e in range(4): A(f'v_add_f32 v{32+e}, v{32+e}, v{36+e}')
        self.xg_reduce('v_add_f32', [32, 33, 34, 35], [36, 37, 38, 39])
        self.embed(range(32, 36))
        if o.get('qr', 4) < 4: A(f's_mov_b64 exec, {hex((1 << (16 * o["qr"])) - 1)}')
        A('buffer_store_dwordx4 v[32:35], v60, s[44:47], s56 offen sc1')
        A('s_mov_b64 exec, -1')
        A('s_setprio 2')
        A('s_branch L_task')
        self.lab('L_young0')
        A('v_mov_b32 v5, 0xff800000')
        A('v_cmp_gt_u32 vcc, 16, v0')
        A('v_lshlrev_b32 v7, 2, v0')
        A('s_nop 0')
        A('v_cndmask_b32 v5, v4, v5, vcc')
        A(f'ds_write_b32 v7, v5 offset:{L_MISC}')
        A('s_lshl_b32 s48, s3, 8'); A('v_add_u32 v9, s48, v7')
        A(f'ds_write_b32 v9, v4 offset:{L_T - 2048}')
        A('s_waitcnt lgkmcnt(0)')
        A('s_barrier')
        A('s_load_dword s54, s[28:29], 0')
        if o.get('early'): self.stamp(8); A('s_branch L_fin')
        A('s_cmp_ge_u32 s3, 12')
        A('s_cbranch_scc1 L_dyn')
        if o['ns'] == 8:
            A('s_waitcnt lgkmcnt(0)'); self.tag(); A('s_branch L_c')
        self.lab('L_task')
        self.task_static()
        A('s_cmp_ge_u32 s3, 8')
        A('s_cbranch_scc1 L_c')
        A('s_cmp_lg_u32 s3, 0'); A('s_cbranch_scc1 L_nd')
        shl = o['shl']; ntick = (16 - o['ns']) << shl
        A(f's_lshr_b32 s53, s2, {shl}'); A('s_lshl_b32 s53, s53, 8'); A(f's_add_u32 s53, s53, {WS_T}')
        A('s_mov_b32 s52, 0'); A('s_mov_b32 s50, 0')
        A('s_setprio 3')
        self.lds_wait(F_GO, 1, sleep=2)
        self.lab('L_deal')
        A('s_mov_b32 s51, 0x8000')
        self.lab('L_drt')
        self.ticket_req()
        A('s_waitcnt lgkmcnt(0)')
        A('s_cmp_eq_u32 s67, s55'); A('s_cbranch_scc1 L_dok')
        A('s_sub_u32 s51, s51, 1'); A('s_cbranch_scc0 L_drt')
        A('s_mov_b32 s66, 0x10000')
        self.lab('L_dok')
        A('s_add_u32 s66, s66, 1')
        A('v_mov_b32 v8, s66'); A('v_mov_b32 v9, s52')
        if o.get('rk'):
            A(f's_cmp_gt_u32 s66, {ntick + o.get("rk2", 64)}'); A('s_cselect_b32 s48, 1, 2')
            A(f's_cmp_gt_u32 s66, {ntick + o["rk"]}'); A('s_cselect_b32 s48, s48, 3'); A('v_mov_b32 v5, s48')
            A(f'ds_write_b32 v4, v5 offset:{WGL}')
        A(f'ds_write_b32 v9, v8 offset:{L_T}')
        A(f's_cmp_gt_u32 s66, {ntick}'); A('s_cbranch_scc1 L_ddone')
        A('s_add_u32 s52, s52, 4')
        kap = o.get('kap', -1)
        S = 1 << shl
        if kap >= 0:
            A('s_sub_u32 s56, s66, s50')
            A('s_lshr_b32 s57, s66, 2'); A(f's_add_u32 s57, s57, {S}')
            A('s_cmp_eq_u32 s50, 0')
            A('s_cselect_b32 s56, s57, s56')
            A('s_mov_b32 s50, s66')
            A(f's_mul_i32 s57, s56, {kap + 2}'); A('s_lshr_b32 s57, s57, 1'); A('s_add_u32 s57, s57, s66')
            A(f's_cmp_le_u32 s56, {S + o.get("dm", 0)}'); A('s_cselect_b32 s57, 0, s57')
            A(f's_cmp_le_u32 s66, {S + 1}'); A('s_cselect_b32 s57, 0, s57')
            A('s_mov_b32 s66, 0x10000')
            A(f's_cmp_gt_u32 s57, {ntick + (kap * S) // 2}'); A('s_cbranch_scc1 L_dok')
        A('s_mov_b32 s58, s52')
        if o.get('eg'):
            A('s_add_u32 s59, s52, 2'); A(f's_cmp_gt_u32 {"s50" if kap >= 0 else "s66"}, {ntick - o["eg"]}'); A('s_cselect_b32 s58, s59, s52')
        self.lds_wait(NEED, 's58', sleep=0)
        A('s_branch L_deal')
        self.lab('L_ddone')
        A('s_setprio 2')
        self.lab('L_nd')
        A('s_cmp_lg_u32 s3, 1'); A('s_cbranch_scc1 L_wo')
        self.o['inB'] = 1
        self.task_b()
        self.o['inB'] = 0
        A('s_setprio 2')
        A('v_lshrrev_b32 v57, 10, v11')
        self.stamp(9)
        self.lab('L_wo')
        A('s_mov_b32 s40, s10'); A('s_mov_b32 s41, s11')
        A('s_lshr_b32 s50, s4, 4'); A('s_lshl_b32 s50, s50, 10')
        A('s_and_b32 s51, s4, 3'); A('s_lshl_b32 s51, s51, 5'); A('s_add_u32 s50, s50, s51')
        A('s_bfe_u32 s51, s4, 0x20002'); A('s_add_u32 s50, s50, s51')
        A('s_lshl_b32 s50, s50, 11'); A('s_lshl_b32 s51, s7, 10'); A('s_add_u32 s50, s50, s51'); A('s_lshl_b32 s51, s3, 7'); A('s_add_u32 s50, s50, s51')
        A('v_lshrrev_b32 v8, 4, v0')
        A('v_lshlrev_b32 v58, 19, v8'); A('v_lshl_add_u32 v58, v10, 2, v58'); A('v_and_b32 v5, 8, v0'); A('v_lshl_add_u32 v58, v5, 10, v58')
        A('v_mov_b32 v56, 0xffffff00'); A('v_mov_b32 v61, v5')
        ge = self.newlab('GE')
        if o['woe']:
            A(f's_cmp_lt_u32 s3, {o["woe"]}'); A(f's_cbranch_scc1 {ge}')
        A(f's_cmp_lt_u32 s3, 4'); A(f's_cselect_b32 s52, {o.get("wga", 3)}, {o.get("wgb", 3)}')
        we = o.get('we', 0)
        def wl(j):
            A(f'buffer_load_dwordx4 v[{64+4*j}:{67+4*j}], v58, s[40:43], s50 offen nt')
            if j < 7: A(f's_add_u32 s50, s50, {16384 if j != 3 else (128 - 24) * 2048}')
        if we and not o.get('wel', 1):
            for j in range(we): wl(j)
        self.lds_wait(F_EX, 1, sleep=1, areg=57)
        A('s_setprio 0')
        if we and o.get('wel', 1):
            for j in range(we): wl(j)
        A(f'ds_read_b32 v5, v4 offset:{WGL}'); A('s_waitcnt lgkmcnt(0)'); A('v_readfirstlane_b32 s52, v5')
        self.lds_wait(F_EX, 's52', sleep=1, areg=57)
        self.lab(ge)
        for j in range(we, 8): wl(j)
        self.stamp(11)
        A('s_setprio 2')
        self.lds_inc(C_W)
        A('v_and_b32 v60, 1, v0'); A('v_lshlrev_b32 v60, 6, v60'); A('v_lshl_add_u32 v60, v8, 4, v60')
        A('v_bfe_u32 v59, v0, 2, 1'); A(f'v_mul_u32_u24 v59, {IB}, v59')
        A('v_and_b32 v7, 3, v0'); A('v_lshl_add_u32 v59, v7, 5, v59'); A('v_lshl_add_u32 v59, v61, 1, v59')
        A('s_lshl_b32 s53, s20, 5'); A('s_lshl_b32 s48, s7, 4'); A('s_add_u32 s53, s53, s48'); A('s_lshl_b32 s48, s3, 1'); A('s_add_u32 s53, s53, s48')
        A(f's_mul_i32 s53, s53, {IB}'); A('s_lshl_b32 s48, s4, 7'); A('s_add_u32 s53, s53, s48'); A(f's_add_u32 s53, s53, {WS_I2}')
        A('s_waitcnt vmcnt(0)')
        A('s_mov_b64 exec, 1'); A(f'ds_add_u32 v4, v6 offset:{C_W}'); A(f'ds_add_u32 v4, v6 offset:{F_X3}'); A('s_mov_b64 exec, -1')
        for tt in range(8): self.perm_tile(64, tt, 96 + 4 * tt)
        self.stamp(12)
        if o.get('notail'): A('s_branch L_fin')
        if o.get('pt', 0) & 1:
            A('s_lshl_b32 s48, s4, 7'); A('s_sub_u32 s48, s53, s48'); A('s_add_u32 s48, s48, 8192')
            A('s_mov_b64 exec, 0x11')
            A('buffer_load_dword v62, v59, s[44:47], s48 offen')
            A('s_mov_b64 exec, -1')
        A('s_mov_b32 s49, 0x40000')
        self.lab('L_ow')
        A(f'ds_read_b32 v5, v4 offset:{F_O}')
        A(f'ds_read_b128 v[16:19], v60 offset:{L_O}')
        A('s_waitcnt lgkmcnt(0)')
        A('v_readfirstlane_b32 s48, v5')
        A('s_cmp_ge_u32 s48, 2'); A('s_cbranch_scc1 L_owd')
        A('s_sub_u32 s49, s49, 1')
        A('s_cbranch_scc0 L_ow')
        self.lab('L_owd')
        self.proj_result()
        self.embed(range(20, 24))
        A('buffer_store_dwordx4 v[20:23], v59, s[44:47], s53 offen sc1')
        A('s_mov_b64 exec, -1')
        if o.get('rs', 2) == 3:
            A('s_waitcnt vmcnt(0)')
            self.lds_inc(C_W)
        self.stamp(13)
        A('s_branch L_fin')
        self.lab('L_dyn')
        self.task_dynamic()
        self.lab('L_c')
        A('s_cmp_eq_u32 s3, 11')
        A('s_cbranch_scc1 L_red')
        A('s_cmp_lg_u32 s3, 8')
        A('s_cbranch_scc1 L_comb')
        if o.get('notail') or not o.get('hint', 1): A('s_branch L_fin')
        A('s_lshr_b32 s40, s4, 4'); A('s_lshl_b32 s41, s20, 2'); A('s_add_u32 s40, s40, s41'); A('s_lshl_b32 s40, s40, 8'); A(f's_add_u32 s40, s40, {WS_P}')
        A('v_mov_b32 v13, 16'); A('s_mov_b32 s50, 0x8000')
        A('s_cmp_lg_u32 s20, 0'); A('s_cbranch_scc1 L_fin')
        self.lds_wait(C_O, 4, sleep=1)
        self.lab('L_hp')
        A('s_load_dwordx2 s[56:57], s[28:29], s40 glc')
        A(f'ds_read_b32 v5, v4 offset:{C_W}')
        A('s_waitcnt lgkmcnt(0)')
        A('v_readfirstlane_b32 s48, v5')
        A('s_cmp_ge_u32 s48, 16'); A('s_cbranch_scc1 L_fin')
        A('s_cmp_lg_u32 s57, s55'); A('s_cbranch_scc1 L_fin')
        A(f's_cmp_ge_u32 s56, {o.get("hn", 60)}'); A('s_cbranch_scc1 L_hok')
        A(f's_sleep {o.get("hs", 16)}')
        A('s_sub_u32 s50, s50, 1')
        A('s_cbranch_scc0 L_hp')
        self.lab('L_hok')
        A('s_mov_b64 exec, 1')
        A(f'ds_add_u32 v4, v13 offset:{C_W}')
        A('s_mov_b64 exec, -1')
        self.stamp(9)
        A('s_branch L_fin')
        self.lab('L_comb')
        if o.get('notail'): A('s_branch L_fin')
        A('s_lshr_b32 s40, s4, 4'); A('s_lshl_b32 s41, s20, 2'); A('s_add_u32 s40, s40, s41')
        A('s_lshl_b32 s41, s40, 2'); A(f's_and_b32 s42, s2, {o.get("mlr", 4) - 1}'); A('s_add_u32 s41, s41, s42'); A(f's_mul_i32 s41, s41, {IB}'); A(f's_add_u32 s41, s41, {WS_ML}')
        A('s_lshl_b32 s40, s40, 5'); A('s_and_b32 s42, s4, 15'); A('s_lshl_b32 s42, s42, 1'); A('s_add_u32 s40, s40, s42')
        A('s_and_b32 s42, s3, 1'); A('s_add_u32 s40, s40, s42'); A(f's_mul_i32 s40, s40, {IB}'); A(f's_add_u32 s40, s40, {WS_I1}')
        A('s_lshl_b32 s42, s42, 6'); A('v_lshrrev_b32 v8, 4, v0'); A('v_add_u32 v12, v10, v8'); A('v_lshlrev_b32 v12, 1, v12'); A('v_add_u32 v12, s42, v12')
        A('s_add_u32 s42, s41, 4096'); A('s_add_u32 s43, s40, 4096')
        A('v_mov_b32 v15, 0xff'); A('v_mov_b32 v14, 0x3fb8aa3b')
        A('s_cmp_eq_u32 s20, 0'); A(f's_cselect_b32 s52, {o.get("cw", 16)}, {o.get("cwb", 8)}')
        if o.get('bex'):
            bx = self.newlab('BX')
            A(f's_cbranch_scc1 {bx}')
            self.lds_wait(F_EX, o['bex'], sleep=1)
            A('s_mov_b32 s52, 0')
            self.lab(bx)
        self.lds_wait(C_O, 4, sleep=1)
        self.lds_wait(C_W, 's52', sleep=1)
        pass
        self.stamp(11)
        M = [96 + 4 * k for k in range(8)]
        self.mgather([(96, 's41', 's42', True), (64, 's40', 's43', False)])
        self.stamp(12)
        A(f'v_max3_f32 v32, v{M[0]}, v{M[1]}, v{M[2]}'); A(f'v_max3_f32 v33, v{M[3]}, v{M[4]}, v{M[5]}'); A(f'v_max3_f32 v32, v32, v{M[6]}, v{M[7]}'); A('v_max_f32 v32, v32, v33')
        self.ror_reduce('v_max_f32', [32], 8)
        self.xg_reduce('v_max_f32', [32], [33])
        A('v_mul_f32 v32, 0x3fb8aa3b, v32')
        for k in range(8): A(f'v_fma_f32 v{16+k}, v{M[k]}, v14, -v32')
        for k in range(8): A(f'v_exp_f32 v{16+k}, v{16+k}')
        A(f'v_mul_f32 v36, v16, v{M[0]+2}')
        for k in range(1, 8): A(f'v_fmac_f32 v36, v{16+k}, v{M[k]+2}')
        fm = [f'v_mul_f32 v{32+e}, v16, v{64+e}' for e in range(4)] + [f'v_fmac_f32 v{32+e}, v{16+k}, v{64+4*k+e}' for k in range(1, 8) for e in range(4)]
        def F(n):
            for _ in range(n): A(fm.pop(0))
        F(2); A('v_add_f32_dpp v36, v36, v36 row_ror:8 row_mask:0xf bank_mask:0xf')
        for sw in ('v_permlane16_swap_b32', 'v_permlane32_swap_b32'):
            A('v_mov_b32 v37, v36'); F(2); A(f'{sw} v36, v37'); F(2); A('v_add_f32 v36, v36, v37')
        A('v_rcp_f32 v37, v36'); F(2)
        A('v_fma_f32 v38, -v36, v37, 1.0'); A('v_fma_f32 v37, v38, v37, v37')
        F(len(fm))
        self.quad_reduce(32)
        A('v_mul_f32 v32, v32, v37')
        A('v_cvt_pk_bf16_f32 v32, v32, v32')
        A('s_mov_b64 exec, s[14:15]')
        A(f'ds_write_b16 v12, v32 offset:{L_O}')
        A('s_mov_b64 exec, 1')
        A(f'ds_add_u32 v4, v6 offset:{F_O}')
        A('s_mov_b64 exec, -1')
        self.stamp(13)
        A('s_branch L_fin')
        self.lab('L_red')
        if o.get('notail'):
            A('s_cmp_lg_u32 s2, 0'); A('s_cbranch_scc1 L_fin')
            self.lds_wait(C_O, 4)
            A('v_mov_b32 v13, s55'); A('s_mov_b64 exec, 1'); A('global_store_dword v4, v13, s[28:29]'); A('s_mov_b64 exec, -1')
            A('s_branch L_fin')
        A('s_bfe_u32 s40, s2, 0x20003'); A('s_cmp_lg_u32 s40, 0')
        A('s_cbranch_scc1 L_fin')
        A('s_lshr_b32 s40, s2, 5'); A('s_lshl_b32 s40, s40, 3'); A('s_and_b32 s41, s2, 7'); A('s_add_u32 s40, s40, s41')
        A('s_lshl_b32 s42, s40, 6'); A('v_lshrrev_b32 v8, 4, v0'); A('v_add_u32 v12, v10, v8'); A('v_lshlrev_b32 v12, 1, v12'); A('v_add_u32 v12, s42, v12')
        A(f's_mul_i32 s40, s40, {IB}'); A(f's_add_u32 s40, s40, {WS_I2}')
        A('v_mov_b32 v13, s55'); A('v_mov_b32 v15, 0xff'); A('s_add_u32 s43, s40, 4096')
        rs = o.get('rs', 2)
        if rs == 0: self.lds_wait(F_O, 2, sleep=2)
        elif rs == 1: self.lds_wait(C_W, 16, sleep=2)
        elif rs == 2:
            self.lds_wait(C_O, 4, sleep=2)
            for k in range(8): A(f'buffer_load_dwordx4 v[{64+4*k}:{67+4*k}], v1, s[44:47], {"s40" if k < 4 else "s43"} offen offset:{1024*(k&3)} sc1')
            A('s_waitcnt vmcnt(0)')
            self.lds_wait(F_X3, 8, sleep=1)
            if o.get('pt', 0) & 2:
                A('s_mov_b64 exec, 1'); A('global_load_dword v62, v12, s[24:25]'); A('s_mov_b64 exec, -1')
            self.lds_wait(F_O, 2, sleep=1)
        elif rs == 3:
            self.lds_wait(C_W, 24, sleep=1)
        self.stamp(11)
        self.mgather([(64, 's40', 's43', False)])
        self.stamp(12)
        for k in range(4):
            for e in (0, 2): A(f'v_pk_add_f32 v[{40+4*k+e}:{41+4*k+e}], v[{64+4*k+e}:{65+4*k+e}], v[{80+4*k+e}:{81+4*k+e}]')
        for k in range(2):
            for e in (0, 2): A(f'v_pk_add_f32 v[{40+4*k+e}:{41+4*k+e}], v[{40+4*k+e}:{41+4*k+e}], v[{48+4*k+e}:{49+4*k+e}]')
        for e in (0, 2): A(f'v_pk_add_f32 v[{40+e}:{41+e}], v[{40+e}:{41+e}], v[{44+e}:{45+e}]')
        self.quad_reduce(40)
        A('v_cvt_pk_bf16_f32 v32, v40, v40')
        A('s_mov_b64 exec, s[14:15]')
        A('global_store_short v12, v32, s[24:25]')
        A('s_cmp_lg_u32 s2, 0')
        A('s_cbranch_scc1 L_nogen')
        A('s_mov_b64 exec, 1')
        A('global_store_dword v4, v13, s[28:29]')
        self.lab('L_nogen')
        A('s_mov_b64 exec, -1')
        self.stamp(13)
        if o.get('spin'):
            self.lab('L_spin')
            A('s_memrealtime s[60:61]'); A('s_waitcnt lgkmcnt(0)'); A('s_sub_u32 s60, s60, s68'); A(f's_cmp_lt_u32 s60, {o["spin"]}'); A('s_cbranch_scc1 L_spin')
            A('s_branch L_end')
        if o.get('dbgt'):
            A('s_load_dwordx2 s[60:61], s[0:1], 88')
            A('s_waitcnt lgkmcnt(0)')
            A('s_sub_u32 s48, s94, s68'); A('v_mov_b32 v20, s48')
            A('s_lshr_b32 s48, s2, 5'); A('s_lshl_b32 s48, s48, 1'); A('s_and_b32 s49, s2, 7'); A('s_cmp_ge_u32 s49, 2'); A('s_cbranch_scc1 L_end')
            A('s_add_u32 s48, s48, s49'); A('s_lshl_b32 s48, s48, 2'); A('v_mov_b32 v7, s48')
            A('s_mov_b64 exec, 1')
            A('global_store_dword v7, v20, s[60:61]')
            A('s_branch L_end')
        if o.get('amp'):
            A('s_waitcnt lgkmcnt(0)')
            A('s_sub_u32 s62, s94, s68'); A('s_lshl_b32 s62, s62, 2'); A('s_sub_u32 s62, s62, 6500'); A('s_min_u32 s62, s62, 30000')
            self.lab('L_amp')
            A('s_memrealtime s[60:61]'); A('s_waitcnt lgkmcnt(0)'); A('s_sub_u32 s60, s60, s68'); A('s_cmp_lt_u32 s60, s62'); A('s_cbranch_scc1 L_amp')
            A('s_branch L_end')
        if not o.get('lite'): self.lab('L_fin')
        if self.stamps:
            A('s_waitcnt vmcnt(0) lgkmcnt(0)')
            A('s_getreg_b32 s48, hwreg(HW_REG_XCC_ID)')
            A('s_getreg_b32 s49, hwreg(HW_REG_HW_ID)')
            for i in range(28): A(f'v_writelane_b32 v20, s{68+i}, {i}')
            A('v_writelane_b32 v20, s48, 28')
            A('v_writelane_b32 v20, s49, 29')
            A('s_lshl_b32 s48, s2, 4'); A('s_add_u32 s48, s48, s3'); A('s_lshl_b32 s48, s48, 7'); A(f's_add_u32 s48, s48, {STAMP_OFF}')
            A('v_lshlrev_b32 v7, 2, v0'); A('v_add_u32 v7, s48, v7')
            A('s_mov_b64 exec, 0xffffffff')
            A('global_store_dword v7, v20, s[28:29]')
        if o.get('lite'): self.lab('L_fin')
        self.lab('L_end')
        A('s_endpgm')
        L.append('.section .rodata,"a"')
        L.append('.p2align 6')
        L.append(f'.amdhsa_kernel {NAME}_kernel')
        L.append('  .amdhsa_next_free_vgpr 128')
        L.append('  .amdhsa_next_free_sgpr 102')
        L.append('  .amdhsa_accum_offset 128')
        L.append('  .amdhsa_group_segment_fixed_size 0')
        L.append('  .amdhsa_kernarg_size 104')
        L.append('  .amdhsa_user_sgpr_count 2')
        L.append('  .amdhsa_user_sgpr_kernarg_segment_ptr 1')
        L.append('  .amdhsa_system_sgpr_workgroup_id_x 1')
        L.append('.end_amdhsa_kernel')
        return '\n'.join(L) + '\n'

if __name__ == '__main__':
    out = sys.argv[1]
    stamps = 'stamps' in sys.argv[2:]
    opts = {}
    for a in sys.argv[2:]:
        if '=' in a:
            k, v = a.split('='); opts[k] = int(v)
    open(out, 'w').write(Gen(stamps, opts).build())
```

```python
import sys
NAME = 'concat_heads__gqa_block_cached__sliding_block_cached__decode'
HEADER = open('cdna_kernels/' + NAME + '.s.ref').read().split('; Override launch')[0]

IB = 8448
WS_T = 0x1000
WS_Q = 0x4000
WS_ML = 0x50000
WS_I1 = 0xA0000
WS_I2 = 0x2C0000
WS_BYTES = 0x400000
STAMP_OFF = 0x10000000
L_CH, L_CHB, L_QS, L_Q, L_QB, L_MISC = 0, 16384, 32768, 34816, 37120, 39424
QSTR = 272
L_MA, L_LA = L_MISC, L_MISC + 64
L_C = L_MISC + 128
C_Q, C_M, C_O, C_L, F_Q, F_GO, F_O, WGL, C_D, C_W, NEED, C_WL, F_CH = [L_C + 4 * i for i in range(13)]
F_EX = L_C + 64
L_O = L_MISC + 256
L_M4 = L_MISC + 384
L_T = L_MISC + 768
L_KD = L_T + 2048
LDS_BYTES = L_KD + 4 * 3 * 4096
NTICK = 160
DB = 96
C_DB = L_C + 120
LOG2E = '0x3fb8aa3b'
NEGBIG = '0xf149f2ca'

DOC = '''; ---------------------------------------------------------------------------------------------
;  Hand-offs between workgroups go through d_ws with write-through stores; every 16-byte granule carries the
; ---------------------------------------------------------------------------------------------'''

class Gen:
    def __init__(self, stamps=False, opts=None):
        self.L = []
        self.stamps = stamps
        self.nlab = 0
        self.o = dict(rk=14, rk2=24, eg=64, hn=60, go=3, cw=8)
        if opts: self.o.update(opts)
    def A(self, s): self.L.append('    ' + s)
    def C(self, s): self.L.append('    ; ' + s)
    def lab(self, s): self.L.append(s + ':')
    def newlab(self, p='L'):
        self.nlab += 1
        return f'{p}_{self.nlab}'
    def stamp(self, i):
        if self.o.get('lite') and i not in (0, 13): return
        if self.stamps: self.A(f's_memrealtime s[{68+2*i}:{69+2*i}]')

    def lds_wait(self, addr, val, sleep=1, areg=4):
        A = self.A
        l = self.newlab('W'); d = self.newlab('D')
        A('s_mov_b32 s49, 0x40000')
        self.lab(l)
        A(f'ds_read_b32 v5, v{areg} offset:{addr}')
        A('s_waitcnt lgkmcnt(0)')
        A('v_readfirstlane_b32 s48, v5')
        A(f's_cmp_ge_u32 s48, {val}')
        A(f's_cbranch_scc1 {d}')
        if sleep: A(f's_sleep {sleep}')
        A('s_sub_u32 s49, s49, 1')
        A(f's_cbranch_scc0 {l}')
        self.lab(d)
    def lds_inc(self, *addrs, areg=4):
        A = self.A
        A('s_mov_b64 exec, 1')
        for a in addrs: A(f'ds_add_u32 v{areg}, v6 offset:{a}')
        A('s_mov_b64 exec, -1')
    def tag(self):
        A = self.A
        A('s_and_b32 s55, s54, 0x7f7f7f7f'); A('s_add_u32 s55, s55, 0x35172b4d'); A('s_and_b32 s8, s54, 0x80808080'); A('s_xor_b32 s55, s55, s8')
        A('s_and_b32 s8, s55, 0xff'); A('s_bfe_u32 s9, s55, 0x80008'); A('s_bfe_u32 s12, s55, 0x80010'); A('s_lshr_b32 s13, s55, 24')
    TB = ['s8', 's9', 's12', 's13']
    def embed(self, regs):
        for r in regs: self.A(f'v_and_or_b32 v{r}, v{r}, v56, {self.TB[r & 3]}')
    def perm_tile(self, src, tt, dst):
        i, h = tt >> 1, tt & 1
        sel = 's31' if h else 's30'
        for jp in range(4):
            self.A(f'v_perm_b32 v{dst+jp}, v{src+4*(2*jp+1)+i}, v{src+4*(2*jp)+i}, {sel}')
    def xg_reduce(self, op, regs, tmps):
        A = self.A
        for sw in ('v_permlane16_swap_b32', 'v_permlane32_swap_b32'):
            for r, t in zip(regs, tmps): A(f'v_mov_b32 v{t}, v{r}')
            A('s_nop 1')
            for r, t in zip(regs, tmps): A(f'{sw} v{r}, v{t}')
            A('s_nop 1')
            for r, t in zip(regs, tmps): A(f'{op} v{r}, v{r}, v{t}')
    def ror_reduce(self, op, regs, n):
        A = self.A
        A('s_nop 1')
        for r in regs: A(f'{op}_dpp v{r}, v{r}, v{r} row_ror:{n} row_mask:0xf bank_mask:0xf')
    def quad_reduce(self, a):
        A = self.A
        A('s_nop 1')
        A(f'v_permlane16_swap_b32 v{a}, v{a+1}'); A(f'v_permlane16_swap_b32 v{a+2}, v{a+3}')
        A('s_nop 0')
        A(f'v_add_f32 v{a}, v{a}, v{a+1}'); A(f'v_add_f32 v{a+2}, v{a+2}, v{a+3}')
        A('s_nop 1')
        A(f'v_permlane32_swap_b32 v{a}, v{a+2}')
        A('s_nop 1')
        A(f'v_add_f32 v{a}, v{a}, v{a+2}')
        A('s_nop 1')
        A(f'v_add_f32_dpp v{a}, v{a}, v{a} row_ror:8 row_mask:0xf bank_mask:0xf')

    MK = [50, 52, 56, 58, 60, 62, 64, 66]
    def mgather(self, sets, few=False):
        A = self.A
        l = self.newlab('MG'); d = self.newlab('MGD'); li = self.newlab('MI')
        A('s_setprio 3')
        A('s_mov_b32 s49, 0x20000')
        if few:
            A('s_mov_b64 s[50:51], -1'); A('s_mov_b64 s[52:53], -1')
            for k in range(2, 8): A(f's_mov_b64 s[{self.MK[k]}:{self.MK[k]+1}], 0')
            A('s_cmp_lg_u32 s20, 0'); A(f's_cbranch_scc1 {li}')
        def loads(k):
            for dst, lo, hi, tg in sets:
                A(f'buffer_load_dwordx4 v[{dst+4*k}:{dst+4*k+3}], v1, s[44:47], {lo if k < 4 else hi} offen offset:{1024*(k&3)} sc1')
        def check(k):
            for dst, lo, hi, tg in sets:
                r = dst + 4 * k
                if tg:
                    A(f'v_xor_b32 v7, s55, v{r+1}'); A(f'v_bitop3_b32 v7, s55, v7, v{r+3} bitop3:0xde')
                else:
                    for e in range(4): A(f'v_xor_b32 v{r+e}, {self.TB[e]}, v{r+e}')
                    A(f'v_or3_b32 v5, v{r}, v{r+1}, v{r+2}')
                    A(f'v_bitop3_b32 v5, v5, v15, v{r+3} bitop3:0xc8')
            if len(sets) == 2: A('v_or_b32 v5, v5, v7')
            m = self.MK[k]
            A(f'v_cmp_ne_u32 s[{m}:{m+1}], 0, v5')
        for k in range(8): loads(k)
        n = len(sets)
        for k in range(8):
            A(f's_waitcnt vmcnt({(7-k)*n})')
            check(k)
        self.lab(l)
        A('s_or_b64 vcc, s[50:51], s[52:53]')
        for k in range(2, 8): A(f's_or_b64 vcc, vcc, s[{self.MK[k]}:{self.MK[k]+1}]')
        A(f's_cbranch_scc0 {d}')
        self.lab(li)
        for k in range(8):
            sk = self.newlab('MS'); m = self.MK[k]
            A(f's_mov_b64 exec, s[{m}:{m+1}]')
            A(f's_cbranch_execz {sk}')
            loads(k)
            self.lab(sk)
        A('s_waitcnt vmcnt(0)')
        for k in range(8):
            sk = self.newlab('MC'); m = self.MK[k]
            A(f's_mov_b64 exec, s[{m}:{m+1}]')
            A(f's_cbranch_execz {sk}')
            check(k)
            self.lab(sk)
        A('s_mov_b64 exec, -1')
        A('s_sub_u32 s49, s49, 1')
        A(f's_cbranch_scc0 {l}')
        self.lab(d)

    def q_gather(self):
        A = self.A
        A('s_and_b32 s48, s3, 1')
        A('v_lshrrev_b32 v8, 5, v0'); A('v_and_b32 v5, 31, v0')
        A(f'v_mul_u32_u24 v8, {QSTR}, v8'); A('v_lshl_add_u32 v8, v5, 3, v8')
        A(f's_mul_i32 s40, s48, {L_QB - L_Q}'); A('v_add_u32 v8, s40, v8')
        A(f's_mul_i32 s40, s48, {DB}'); A('v_mov_b32 v9, s40')
        A('v_mov_b32 v15, 0xff')
        A('s_lshl_b32 s40, s48, 2'); A('s_add_u32 s40, s40, s22'); A('s_lshl_b32 s40, s40, 2'); A('s_and_b32 s41, s2, 1'); A('s_add_u32 s40, s40, s41')
        A(f's_mul_i32 s40, s40, {IB}'); A(f's_add_u32 s40, s40, {WS_Q}'); A('s_add_u32 s41, s40, 4096')
        self.mgather([(32, 's40', 's41', False)])
        for k in range(4):
            r = 32 + 4 * k
            for e in range(4): A(f'v_add_f32 v{r+e}, v{r+e}, v{r+16+e}')
            A(f'v_cvt_pk_bf16_f32 v{r}, v{r}, v{r+1}'); A(f'v_cvt_pk_bf16_f32 v{r+1}, v{r+2}, v{r+3}')
            A(f'ds_write_b64 v8, v[{r}:{r+1}] offset:{L_Q + 2*QSTR*k}')
        A(f'ds_write_b32 v9, v6 offset:{F_Q}')
        A('s_setprio 2')

    def v_issue(self, sig):
        self.A('s_setprio 1')
        for i in range(4):
            if sig and i == self.o['go']: self.A(f'ds_write_b32 v4, v6 offset:{F_GO}')
            for T in range(2):
                for nn in range(2):
                    r = 64 + 32 * T + 4 * (2 * i + nn)
                    self.A(f'buffer_load_dwordx4 v[{r}:{r+3}], v1, s[36:39], s{96+i} offen offset:{2048*T+1024*nn} nt')
                    self.A('s_nop 0')
        self.A('s_setprio 2')
    def read_q(self):
        for hf in range(2):
            self.A(f'ds_read_b128 v[{16+4*hf}:{19+4*hf}], v3 offset:{L_Q + 128*hf}')
        self.A('s_waitcnt lgkmcnt(0)')
    def qk(self, N, D0, R):
        A = self.A
        for hf in range(2):
            for i in range(N):
                r = 64 + 8 * i + 4 * hf; d = D0 + 4 * i
                c = '0' if hf == 0 else f'v[{d}:{d+3}]'
                A(f'v_mfma_f32_16x16x32_bf16 v[{d}:{d+3}], v[{r}:{r+3}], v[{16+4*hf}:{19+4*hf}], {c}')
        A(f's_nop {max(0, 8 - N)}')
        for i in range(N):
            d = D0 + 4 * i
            A(f'v_cndmask_b32 v{d}, v{d+3}, v{d}, s[14:15]')
            A(f'v_cndmask_b32 v{d+1}, v{d+1}, v{d+2}, s[14:15]')
        if N < 3: A('s_nop 1')
        for i in range(N):
            d = D0 + 4 * i
            A(f'v_add_f32_dpp v{R[i]}, v{d+1}, v{d} row_ror:8 row_mask:0xf bank_mask:0xf')
    def round_chain(self, S, T):
        A = self.A
        n = len(S) // 2
        for rep in range(2):
            for k in range(n): A(f'v_cvt_pk_bf16_f32 v{T+k}, v{S[2*k]}, v{S[2*k+1]}')
            for k in range(n):
                A(f'v_lshlrev_b32 v{S[2*k]}, 16, v{T+k}')
                A(f'v_and_b32 v{S[2*k+1]}, s100, v{T+k}')
            if rep == 0:
                for x in S: A(f'v_mul_f32 v{x}, s101, v{x}')

    def task_static(self):
        A = self.A
        S = list(range(24, 32))
        for i in range(4):
            for nn in range(2):
                for hf in range(2):
                    r = 64 + 16 * i + 8 * nn + 4 * hf
                    A(f'buffer_load_dwordx4 v[{r}:{r+3}], v2, s[32:35], s{96+i} offen offset:{1024*nn+128*hf} nt')
                    A('s_nop 0')
        self.stamp(2)
        A(f's_sub_u32 s48, s3, {self.o.get("qw", 4)}'); A('s_cmp_gt_u32 s48, s16'); A('s_cbranch_scc1 L_nq')
        if 'qd' in self.o: A(f's_waitcnt vmcnt({self.o["qd"]})')
        self.q_gather()
        self.stamp(9)
        self.lab('L_nq')
        A(f's_mul_i32 s48, s17, {DB}'); A('v_mov_b32 v15, s48')
        A('s_lshl_b32 s48, s17, 5'); A('v_add_u32 v13, s48, v10')
        self.lds_wait(F_Q, 1, areg=15)
        self.read_q()
        A('s_waitcnt vmcnt(0)')
        self.stamp(3)
        self.qk(8, 32, S)
        self.round_chain(S, 32)
        A('v_max3_f32 v8, v24, v25, v26'); A('v_max3_f32 v9, v27, v28, v29'); A('v_max3_f32 v8, v8, v30, v31'); A('v_max_f32 v8, v8, v9')
        self.ror_reduce('v_max_f32', [8], 8)
        self.xg_reduce('v_max_f32', [8], [9])
        A('s_mov_b64 exec, 0xff')
        A(f'ds_max_f32 v13, v8 offset:{L_MA}')
        A('s_mov_b64 exec, 1')
        A(f'ds_add_u32 v15, v6 offset:{C_M}')
        A('s_mov_b64 exec, -1')
        self.stamp(4)
        A('s_cmp_ge_u32 s3, 8'); A('s_cbranch_scc1 L_young')
        self.v_issue(False)
        self.stamp(10)
        self.lab('L_young')
        self.lds_wait(C_M, 's18', areg=15)
        self.stamp(5)
        A(f'ds_read_b32 v12, v13 offset:{L_MA}')
        A('s_waitcnt lgkmcnt(0)')
        for x in S: A(f'v_sub_f32 v{x}, v{x}, v12')
        for x in S: A(f'v_mul_f32 v{x}, {LOG2E}, v{x}')
        for x in S: A(f'v_exp_f32 v{x}, v{x}')
        A('s_nop 0')
        for k in range(4): A(f'v_cvt_pk_bf16_f32 v{32+k}, v{S[2*k]}, v{S[2*k+1]}')
        A('v_add_f32 v14, v24, v25'); A('v_add_f32 v9, v26, v27')
        A('v_add_f32 v14, v14, v28'); A('v_add_f32 v9, v9, v29'); A('v_add_f32 v14, v14, v30'); A('v_add_f32 v9, v9, v31')
        A('v_add_f32 v14, v14, v9')
        self.ror_reduce('v_add_f32', [14], 8)
        self.xg_reduce('v_add_f32', [14], [9])
        A('s_mov_b64 exec, 0xff')
        A(f'ds_add_f32 v13, v14 offset:{L_LA}')
        A('s_mov_b64 exec, 1')
        A(f'ds_add_u32 v15, v6 offset:{C_L}')
        A('s_mov_b64 exec, -1')
        for k in range(4): A(f'v_cndmask_b32 v{16+k}, 0, v{32+k}, s[14:15]')
        for k in range(4): A(f'v_cndmask_b32 v{28+k}, v{32+k}, 0, s[14:15]')
        for k in range(4): A(f'v_mov_b32_dpp v{24+k}, v{16+k} row_ror:8 row_mask:0xf bank_mask:0xf')
        for k in range(4): A(f'v_mov_b32_dpp v{20+k}, v{28+k} row_ror:8 row_mask:0xf bank_mask:0xf')
        A('v_lshrrev_b32 v57, 10, v11')
        for x in range(32, 48): A(f'v_mov_b32 v{x}, 0')
        A('s_lshr_b32 s52, s3, 2'); A('s_sub_u32 s52, s52, s16'); A('s_max_i32 s52, s52, 0')
        A('s_cmp_lt_u32 s3, 8'); A('s_cbranch_scc1 L_old')
        self.v_issue(True)
        self.stamp(10)
        self.lab('L_old')
        A('s_cmp_eq_u32 s52, 0'); A('s_cbranch_scc1 L_noch')
        self.lds_wait(F_CH, 's52', areg=57)
        for q in range(4): A(f'ds_read_b128 v[{32+4*q}:{35+4*q}], v11 offset:{L_CH + 1024*q}')
        self.lab('L_noch')
        self.stamp(6)
        A('s_waitcnt lgkmcnt(0)')
        tq = [48, 52]
        for T in range(2):
            A(f's_waitcnt vmcnt({2 if T == 0 else 0})')
            src = 64 + 32 * T
            self.perm_tile(src, 0, tq[0])
            for tt in range(8):
                if tt < 7: self.perm_tile(src, tt + 1, tq[(tt + 1) & 1])
                else: A('s_nop 1')
                q = tq[tt & 1]; d = 32 + 4 * (tt & 3); p = (16 if tt < 4 else 24) + 4 * T
                A(f'v_mfma_f32_16x16x32_bf16 v[{d}:{d+3}], v[{q}:{q+3}], v[{p}:{p+3}], v[{d}:{d+3}]')
        self.stamp(7)
        A('s_nop 5')
        A('s_cmp_lg_u32 s17, 0'); A('s_cbranch_scc1 L_wfin')
        for q in range(4): A(f'ds_write_b128 v11, v[{32+4*q}:{35+4*q}] offset:{L_CH + 1024*q}')
        self.lds_inc(F_CH, areg=57)
        A('s_branch L_tdone')
        self.lab('L_wfin')
        for q in range(4): A(f'ds_write_b128 v11, v[{32+4*q}:{35+4*q}] offset:{L_CHB + 1024*q}')
        self.lds_inc(C_DB)
        A('v_lshl_add_u32 v59, v57, 8, v1')
        A('v_lshrrev_b32 v58, 3, v0'); A(f'v_mul_u32_u24 v58, {IB}, v58'); A('v_lshl_add_u32 v58, v10, 2, v58')
        A('v_mov_b32 v56, 0xffffff00')
        A('s_sub_u32 s50, s19, s23'); A('s_lshl_b32 s50, s50, 7')
        A('s_add_u32 s51, s50, s5'); A(f's_add_u32 s51, s51, {16*IB}')
        A('s_add_u32 s50, s50, s6'); A(f's_mul_i32 s52, s3, {8*IB}'); A('s_add_u32 s50, s50, s52'); A(f's_add_u32 s50, s50, {128*IB}')
        self.lds_wait(C_DB, 4)
        for w in range(4): A(f'ds_read_b128 v[{64+4*w}:{67+4*w}], v59 offset:{L_CHB + 4096*w}')
        A(f'ds_read_b32 v14, v13 offset:{L_LA}')
        A('s_waitcnt lgkmcnt(0)')
        A('v_mov_b32 v13, s55'); A('v_mov_b32 v15, s55')
        for e in range(4): A(f'v_add_f32 v{32+e}, v{64+e}, v{68+e}')
        for e in range(4): A(f'v_add_f32 v{36+e}, v{72+e}, v{76+e}')
        for e in range(4): A(f'v_add_f32 v{32+e}, v{32+e}, v{36+e}')
        self.embed(range(32, 36))
        A('s_setprio 3')
        A('buffer_store_dwordx4 v[32:35], v58, s[44:47], s50 offen sc1')
        A('s_cmp_lg_u32 s3, 1'); A('s_cbranch_scc1 L_wnm')
        A('s_mov_b64 exec, 0xffff')
        A('buffer_store_dwordx4 v[12:15], v58, s[44:47], s51 offen sc1')
        A('s_mov_b64 exec, -1')
        self.lab('L_wnm')
        A('s_setprio 2')
        self.lab('L_tdone')

    def wait3(self, a, b, c):
        A = self.A
        d = self.newlab('WT')
        A(f's_waitcnt vmcnt({a})')
        A('s_cmp_eq_u32 s61, 0'); A(f's_cbranch_scc1 {d}')
        A(f's_waitcnt vmcnt({b})')
        A('s_cmp_eq_u32 s61, 1'); A(f's_cbranch_scc1 {d}')
        A(f's_waitcnt vmcnt({c})')
        self.lab(d)

    def task_dynamic(self):
        A = self.A
        A('s_sub_u32 s52, s3, 12')
        A('s_cmp_lg_u32 s52, 0'); A('s_cbranch_scc1 L_nopre')
        A('s_and_b32 s48, s23, 31'); A('s_add_u32 s48, s48, s1'); A('s_add_u32 s48, s48, 1')
        A('v_mov_b32 v8, s48')
        A(f'ds_write_b32 v4, v8 offset:{L_T}')
        self.lab('L_nopre')
        A(f's_mul_i32 s27, s52, {3*4096}'); A(f's_add_u32 s27, s27, {L_KD}')
        A('v_add_u32 v63, s27, v1')
        for x in range(32, 48): A(f'v_mov_b32 v{x}, 0')
        A(f'v_mov_b32 v12, {NEGBIG}'); A('v_mov_b32 v14, 0')
        A('v_lshrrev_b32 v57, 10, v11')
        A('v_mov_b32 v56, 0xffffff00')
        A('v_lshrrev_b32 v58, 3, v0'); A(f'v_mul_u32_u24 v58, {IB}, v58'); A('v_lshl_add_u32 v58, v10, 2, v58')
        A('v_lshl_add_u32 v59, v57, 8, v1')
        A('v_lshlrev_b32 v61, 3, v10'); A('v_lshl_add_u32 v60, v57, 1, v61')
        A('v_mov_b32 v62, 0')
        A(f'v_mov_b32 v7, {LOG2E}')
        A('s_lshl_b32 s26, s22, 24'); A('s_lshl_b32 s48, s52, 12'); A('s_add_u32 s26, s26, s48'); A('s_sub_u32 s26, s26, 16384')
        A(f's_mul_i32 s56, s52, {8*IB}')
        A('v_mov_b32 v13, s55'); A('v_mov_b32 v15, s55')
        A('s_and_b32 s48, s23, 31'); A('s_or_b32 s48, s48, s52'); A('s_cbranch_scc1 L_ni')
        A('v_mov_b32 v8, 32'); A('v_mov_b32 v9, s55')
        A('s_lshr_b32 s48, s2, 5'); A('s_lshl_b32 s48, s48, 8'); A(f's_add_u32 s48, s48, {WS_T}')
        A('s_mov_b64 exec, 1'); A('s_setprio 3')
        A('buffer_store_dwordx2 v[8:9], v4, s[44:47], s48 offen sc1')
        A('s_setprio 2'); A('s_mov_b64 exec, -1')
        self.lab('L_ni')
        A('s_sub_u32 s57, 3, s16')
        A('s_add_u32 s56, s56, s6')
        self.stamp(2)
        A('s_mov_b32 s21, 0'); A('s_mov_b32 s64, 0'); A('s_mov_b32 s65, 0'); A('s_mov_b32 s60, 0'); A('s_mov_b32 s59, 0')
        self.lab('L_dl')
        for b in range(3):
            pr, ex, dr, nx, tk, no, pe, nf = [self.newlab(x) for x in ('PR', 'EX', 'DR', 'NX', 'TK', 'NO', 'PE', 'NF')]
            A('s_cmp_lg_u32 s65, 0'); A(f's_cbranch_scc1 {dr}')
            A(f'ds_read_b32 v5, v62 offset:{L_T}')
            A('s_waitcnt lgkmcnt(0)')
            A('v_readfirstlane_b32 s48, v5')
            A('s_cmp_eq_u32 s48, 0'); A(f's_cbranch_scc1 {no}')
            self.lab(tk)
            A('v_add_u32 v62, 4, v62')
            A('s_sub_u32 s49, s48, 1')
            A('s_cmp_ge_u32 s49, 1024'); A(f's_cbranch_scc1 {ex}')
            A('s_lshl_b32 s50, s48, 14'); A('s_add_u32 s50, s50, s26')
            A(f's_add_u32 s48, s27, {4096*b}')
            A('s_mov_b64 exec, 1'); A(f'ds_max_u32 v4, v62 offset:{NEED}'); A('s_mov_b64 exec, -1')
            for j, (imm, adj) in enumerate(((0, 896), (128, 128), (1024, 896), (1152, 0))):
                A('s_mov_b32 m0, s48'); A(f's_add_u32 s48, s48, {adj}')
                A(f'buffer_load_dwordx4 v2, s[32:35], s50 offen offset:{imm} nt lds')
            A('v_add_u32 v5, 2, v62')
            for j in range(4):
                r = 80 + 16 * b + 4 * j
                if j == 3:
                    A('s_mov_b64 exec, 1'); A(f'ds_max_u32 v4, v5 offset:{NEED}'); A('s_mov_b64 exec, -1')
                A(f'buffer_load_dwordx4 v[{r}:{r+3}], v1, s[36:39], s50 offen offset:{1024*j} nt')
                A('s_nop 0')
            A('s_setprio 1')
            A('s_add_u32 s64, s64, 1')
            A('s_mov_b32 s61, 0')
            A('s_cmp_eq_u32 s60, 0'); A('s_mov_b32 s60, 0'); A(f's_cbranch_scc1 {pr}')
            A(f's_branch {nx}')
            self.lab(no)
            A('s_mov_b32 s61, 1'); A('s_mov_b32 s60, 1')
            A(f's_branch {pr}')
            self.lab(ex)
            A('s_getpc_b64 s[62:63]')
            A('s_branch L_exh')
            A('s_mov_b32 s65, s60')
            A('s_cmp_lg_u32 s60, 0'); A('s_mov_b32 s60, 0'); A(f's_cbranch_scc1 {nx}')
            self.lab(dr)
            A('s_add_u32 s65, s65, 1')
            A('v_mov_b32 v5, s65')
            A(f'ds_write_b32 v57, v5 offset:{F_EX}')
            A('s_cmp_gt_u32 s65, 2'); A('s_cbranch_scc1 L_dfin')
            A('s_mov_b32 s61, s65')
            self.lab(pr)
            A('s_cmp_lt_u32 s21, 2'); A(f's_cbranch_scc1 {pe}')
            if b == 2:
                A('s_cmp_lg_u32 s21, 2'); A(f's_cbranch_scc1 {nf}')
                self.lds_wait(F_Q, 1)
                self.read_q()
                self.lab(nf)
            pb = (b + 1) % 3
            self.wait3(20, 12, 4)
            for n in range(4): A(f'ds_read_b128 v[{64+4*n}:{67+4*n}], v63 offset:{4096*pb + 1024*n}')
            A('s_waitcnt lgkmcnt(0)')
            self.qk(2, 48, [24, 25])
            self.round_chain([24, 25], 26)
            A('v_max3_f32 v8, v24, v25, v12')
            self.ror_reduce('v_max_f32', [8], 8)
            self.xg_reduce('v_max_f32', [8], [9])
            A('v_sub_f32 v9, v12, v8'); A('v_sub_f32 v24, v24, v8'); A('v_sub_f32 v25, v25, v8')
            A('v_mul_f32 v9, v7, v9'); A('v_mul_f32 v24, v7, v24'); A('v_mul_f32 v25, v7, v25')
            A('v_exp_f32 v9, v9'); A('v_exp_f32 v24, v24'); A('v_exp_f32 v25, v25')
            A('v_mov_b32 v12, v8')
            A('v_cvt_pk_bf16_f32 v26, v24, v25')
            A('v_fma_f32 v14, v14, v9, v24')
            A('v_add_f32 v14, v14, v25')
            A('v_mov_b32_dpp v27, v26 row_ror:8 row_mask:0xf bank_mask:0xf')
            for x in range(32, 48): A(f'v_mul_f32 v{x}, v{x}, v9')
            A('v_cndmask_b32 v28, 0, v26, s[14:15]'); A('v_cndmask_b32 v29, 0, v27, s[14:15]')
            A('v_cndmask_b32 v30, v27, 0, s[14:15]'); A('v_cndmask_b32 v31, v26, 0, s[14:15]')
            self.wait3(16, 8, 0)
            vb = 80 + 16 * pb
            for tt in range(8):
                i, h = tt >> 1, tt & 1
                sel = 's31' if h else 's30'
                A(f'v_perm_b32 v{64+2*tt}, v{vb+4+i}, v{vb+i}, {sel}')
                A(f'v_perm_b32 v{65+2*tt}, v{vb+12+i}, v{vb+8+i}, {sel}')
            for tt in range(8):
                d = 32 + 4 * (tt & 3); p = 28 if tt < 4 else 30
                A(f'v_mfma_f32_16x16x16_bf16 v[{d}:{d+3}], v[{64+2*tt}:{65+2*tt}], v[{p}:{p+1}], v[{d}:{d+3}]')
            self.lab(pe)
            A('s_cmp_eq_u32 s60, 0'); A(f's_cbranch_scc1 {nx}')
            A('s_getpc_b64 s[62:63]')
            A('s_branch L_tryf')
            self.lds_wait(L_T, 1, sleep=1, areg=62)
            A(f's_branch {tk}')
            self.lab(nx)
            A('s_add_u32 s21, s21, 1')
        A('s_branch L_dl')
        self.lab('L_tryf')
        A('s_cmp_lg_u32 s59, 0'); A('s_cbranch_scc1 L_ret')
        A(f'ds_read_b32 v5, v57 offset:{F_CH}')
        A('s_waitcnt lgkmcnt(0)')
        A('v_readfirstlane_b32 s48, v5')
        A('s_cmp_ge_u32 s48, s57'); A('s_cbranch_scc1 L_fold')
        A('s_branch L_ret')
        self.lab('L_exh')
        self.stamp(10)
        A('s_setprio 2')
        A(f'ds_write_b32 v57, v6 offset:{F_EX}')
        A('s_cmp_lg_u32 s59, 0'); A('s_cbranch_scc1 L_ret')
        self.lds_wait(F_CH, 's57', areg=57)
        self.lab('L_fold')
        A('s_mov_b32 s59, 1')
        for q in range(4): A(f'ds_read_b128 v[{64+4*q}:{67+4*q}], v11 offset:{L_CH + 1024*q}')
        A(f'ds_read_b32 v8, v10 offset:{L_MA}')
        self.lds_wait(C_L, 's18')
        A(f'ds_read_b32 v24, v10 offset:{L_LA}')
        A('v_max_f32 v25, v8, v12')
        A('v_sub_f32 v9, v12, v25'); A('v_sub_f32 v8, v8, v25')
        A('v_mul_f32 v9, v7, v9'); A('v_mul_f32 v8, v7, v8')
        A('v_exp_f32 v9, v9'); A('v_exp_f32 v8, v8')
        A('v_mov_b32 v12, v25')
        A('s_waitcnt lgkmcnt(0)')
        A('v_mul_f32 v24, 0x3d000000, v24')
        A('v_mul_f32 v14, v14, v9')
        A('v_fmac_f32 v14, v24, v8')
        for x in range(32, 48): A(f'v_mul_f32 v{x}, v{x}, v9')
        for x in range(32, 48): A(f'v_fmac_f32 v{x}, v{x+32}, v8')
        self.lab('L_ret')
        A('s_add_u32 s62, s62, 4'); A('s_addc_u32 s63, s63, 0')
        A('s_setpc_b64 s[62:63]')
        self.lab('L_dfin')
        A('s_setprio 3')
        self.stamp(7)
        for q in range(4): A(f'ds_write_b128 v11, v[{32+4*q}:{35+4*q}] offset:{L_CH + 1024*q}')
        A('v_mov_b32 v24, v12')
        A('v_add_f32_dpp v25, v14, v14 row_ror:8 row_mask:0xf bank_mask:0xf')
        self.xg_reduce('v_add_f32', [25], [9])
        A(f'ds_write_b64 v60, v[24:25] offset:{L_M4}')
        self.lds_inc(C_D)
        A('s_mov_b32 s49, 0x40000')
        self.lab('L_mw')
        A(f'ds_read_b32 v5, v4 offset:{C_D}')
        A(f'ds_read_b128 v[16:19], v61 offset:{L_M4}')
        A(f'ds_read_b128 v[20:23], v61 offset:{L_M4+16}')
        for w in range(4): A(f'ds_read_b128 v[{64+4*w}:{67+4*w}], v59 offset:{L_CH + 4096*w}')
        A('s_waitcnt lgkmcnt(6)')
        A('v_readfirstlane_b32 s48, v5')
        A('s_cmp_ge_u32 s48, 4'); A('s_cbranch_scc1 L_mwd')
        A('s_sub_u32 s49, s49, 1')
        A('s_cbranch_scc0 L_mw')
        self.lab('L_mwd')
        A('s_waitcnt lgkmcnt(4)')
        A('v_max3_f32 v12, v16, v18, v20'); A('v_max_f32 v12, v12, v22')
        for w in range(4): A(f'v_sub_f32 v{16+2*w}, v{16+2*w}, v12')
        for w in range(4): A(f'v_mul_f32 v{16+2*w}, v7, v{16+2*w}')
        for w in range(4): A(f'v_exp_f32 v{16+2*w}, v{16+2*w}')
        A('s_waitcnt lgkmcnt(0)')
        for e in range(4): A(f'v_mul_f32 v{32+e}, v{64+e}, v16')
        for w in range(1, 4):
            for e in range(4): A(f'v_fmac_f32 v{32+e}, v{64+4*w+e}, v{16+2*w}')
        self.embed(range(32, 36))
        A('buffer_store_dwordx4 v[32:35], v58, s[44:47], s56 offen sc1')
        A('s_cmp_lg_u32 s3, 12'); A('s_cbranch_scc1 L_noml')
        A('v_mul_f32 v14, v17, v16')
        for w in range(1, 4): A(f'v_fmac_f32 v14, v{17+2*w}, v{16+2*w}')
        A('s_mov_b64 exec, 0xffff')
        A('buffer_store_dwordx4 v[12:15], v58, s[44:47], s5 offen sc1')
        A('s_mov_b64 exec, -1')
        self.lab('L_noml')
        self.lds_inc(C_O)
        self.stamp(8)
        if self.stamps and not self.o.get('lite'):
            A('s_mul_i32 s70, s64, 100'); A('s_add_u32 s70, s70, s68'); A('s_mov_b32 s71, s69')
        A('s_branch L_fin')

    def proj_result(self):
        A = self.A
        for tt in (0, 4, 1, 5, 2, 6, 3, 7):
            A(f'v_mfma_f32_16x16x32_bf16 v[{24+4*tt}:{27+4*tt}], v[16:19], v[{96+4*tt}:{99+4*tt}], 0')
        A('s_nop 1')
        for k in range(4):
            d0 = 24 + 4 * k; d4 = 24 + 4 * (k + 4)
            A(f'v_cndmask_b32 v{d0+2}, v{d4+1}, v{d0}, s[14:15]')
            A(f'v_cndmask_b32 v{d0+3}, v{d0+1}, v{d4}, s[14:15]')
        A('s_mov_b64 exec, 0xffff')
        for k in range(4):
            d0 = 24 + 4 * k
            A(f'v_add_f32_dpp v{20+k}, v{d0+3}, v{d0+2} row_ror:8 row_mask:0xf bank_mask:0xf')

    def build(self):
        A = self.A; o = self.o; L = self.L
        L.append(HEADER.rstrip())
        L.append(f'; @launch grid=(256,1,1) block=(1024,1,1) lds={LDS_BYTES}')
        L.append(DOC)
        L.append('.amdgcn_target "amdgcn-amd-amdhsa--gfx950"')
        L.append('.text')
        L.append(f'.globl {NAME}_kernel')
        L.append('.p2align 8')
        L.append(f'.type {NAME}_kernel,@function')
        L.append(f'{NAME}_kernel:')
        A('s_cmp_ge_u32 s2, 256')
        A('s_cbranch_scc1 L_end')
        A('s_load_dwordx16 s[4:19], s[0:1], 0')
        A('s_load_dwordx8 s[20:27], s[0:1], 64')
        A('s_load_dwordx2 s[28:29], s[0:1], 96')
        if self.stamps:
            for i in range(70, 96): A(f's_mov_b32 s{i}, 0')
        self.stamp(0)
        A('v_lshrrev_b32 v5, 6, v0')
        A('v_mov_b32 v4, 0')
        A('v_readfirstlane_b32 s3, v5')
        A('v_and_b32 v0, 63, v0')
        A('v_lshrrev_b32 v8, 4, v0')
        A('v_and_b32 v7, 7, v0')
        A('v_lshlrev_b32 v10, 2, v7')
        A('v_and_b32 v12, 8, v0')
        A('v_lshlrev_b32 v14, 15, v12'); A('v_lshl_add_u32 v14, v8, 16, v14'); A('v_lshl_add_u32 v14, v10, 2, v14')
        A('v_and_b32 v2, 1, v0'); A('v_lshlrev_b32 v15, 6, v2'); A('v_lshl_add_u32 v15, v8, 4, v15')
        A('s_and_b32 s49, s2, 1'); A('s_lshl_b32 s49, s49, 9'); A('s_lshl_b32 s48, s3, 6'); A('s_add_u32 s49, s49, s48')
        A('s_bfe_u32 s52, s2, 0x60001')
        A('s_lshl_b32 s48, s49, 13'); A('s_lshl_b32 s50, s52, 7'); A('s_add_u32 s48, s48, s50')
        A('s_lshl_b32 s49, s49, 1'); A('v_add_u32 v15, s49, v15')
        A('s_mov_b32 s42, 0x800000'); A('s_mov_b32 s43, 0x20000')
        A('s_setprio 2')
        A('s_cmp_lt_u32 s2, 128')
        A('s_waitcnt lgkmcnt(0)')
        A('s_load_dword s54, s[28:29], 0')
        A('s_cselect_b32 s40, s10, s20'); A('s_cselect_b32 s41, s11, s21')
        A('s_cselect_b32 s66, s4, s14');  A('s_cselect_b32 s67, s5, s15')
        A('s_cselect_b32 s10, s12, s22'); A('s_cselect_b32 s11, s13, s23')
        A('s_cmp_ge_u32 s3, 8')
        A('s_cbranch_scc1 L_nowq')
        for j in range(8):
            A(f'buffer_load_dwordx4 v[{64+4*j}:{67+4*j}], v14, s[40:43], s48 offen nt')
            if j < 7: A('s_add_u32 s48, s48, 8192')
        A('global_load_dwordx4 v[16:19], v15, s[66:67]')
        self.lab('L_nowq')
        A('v_mov_b32 v6, 1')
        A('v_lshlrev_b32 v1, 4, v0')
        A('v_and_b32 v57, 3, v5')
        A('v_lshl_add_u32 v11, v57, 12, v1')
        A('v_and_b32 v9, 15, v0')
        A('v_lshrrev_b32 v13, 2, v9')
        A('v_lshlrev_b32 v2, 4, v2')
        A('v_lshl_add_u32 v2, v13, 8, v2')
        A('v_lshl_add_u32 v2, v8, 5, v2')
        A('v_and_b32 v13, 2, v0')
        A('v_lshl_add_u32 v2, v13, 10, v2')
        A(f'v_mul_u32_u24 v3, {QSTR}, v7')
        A('v_lshl_add_u32 v3, v8, 5, v3')
        A('v_lshl_add_u32 v3, v12, 1, v3')
        A('s_mov_b32 s30, 0x05040100')
        A('s_mov_b32 s31, 0x07060302')
        A('s_mov_b32 s100, 0xffff0000')
        A('s_mov_b32 s101, 0x3db504f3')
        A('s_lshr_b32 s20, s2, 7')
        A('s_lshr_b32 s22, s2, 6')
        A('s_and_b32 s23, s2, 63')
        A('s_bfe_u32 s48, s2, 0x20003'); A('s_xor_b32 s48, s48, 1'); A('s_lshr_b32 s49, s3, 2'); A('s_or_b32 s49, s49, s48')
        A('s_cselect_b32 s32, s6, s16'); A('s_cselect_b32 s33, s7, s17'); A('s_mov_b32 s34, 0x4000000'); A('s_mov_b32 s35, 0x20000')
        A('s_cselect_b32 s36, s8, s18'); A('s_cselect_b32 s37, s9, s19'); A('s_mov_b32 s38, 0x4000000'); A('s_mov_b32 s39, 0x20000')
        A('s_cselect_b32 s17, 0, 1')
        A('s_cmp_eq_u32 s48, 0'); A('s_cselect_b32 s16, 1, 0'); A('s_cselect_b32 s18, 8, 12')
        A('s_cmp_eq_u32 s17, 0'); A('s_cselect_b32 s18, s18, 4')
        A(f's_mul_i32 s48, s17, {L_QB - L_Q}'); A('v_add_u32 v3, s48, v3')
        A('s_mov_b32 s44, s28'); A('s_mov_b32 s45, s29'); A(f's_mov_b32 s46, {WS_BYTES}'); A('s_mov_b32 s47, 0x20000')
        A('s_and_b32 s4, s2, 7'); A('s_bfe_u32 s7, s2, 0x30004'); A('s_lshl_b32 s7, s7, 3'); A('s_add_u32 s4, s4, s7')
        A('s_bfe_u32 s7, s2, 0x10003')
        A('s_mov_b32 s14, 0x00ff00ff'); A('s_mov_b32 s15, 0x00ff00ff')
        A('s_lshl_b32 s48, s23, 7')
        A(f's_mul_i32 s6, s22, {32*IB}'); A('s_add_u32 s6, s6, s48'); A(f's_add_u32 s6, s6, {WS_I1}')
        A(f's_mul_i32 s5, s22, {4*IB}'); A('s_add_u32 s5, s5, s48'); A(f's_add_u32 s5, s5, {WS_ML}')
        A('s_lshr_b32 s0, s23, 5')
        A('s_lshl_b32 s19, s0, 3'); A('s_and_b32 s48, s23, 7'); A('s_add_u32 s19, s19, s48')
        A('s_add_u32 s1, s22, 3'); A('s_and_b32 s1, s1, 3'); A('s_lshl_b32 s1, s1, 8'); A('s_lshl_b32 s48, s0, 7'); A('s_add_u32 s1, s1, s48')
        A('s_lshr_b32 s48, s3, 2')
        A('s_add_u32 s49, s48, s22'); A('s_and_b32 s49, s49, 3'); A('s_lshl_b32 s49, s49, 22'); A('s_lshl_b32 s50, s23, 16'); A('s_add_u32 s49, s49, s50')
        A('s_lshl_b32 s50, s19, 16'); A(f's_add_u32 s50, s50, {15 << 20}')
        A('s_cmp_eq_u32 s17, 0'); A('s_cselect_b32 s96, s49, s50')
        A('s_lshl_b32 s48, s22, 24'); A('s_add_u32 s96, s96, s48')
        A('s_and_b32 s48, s3, 3'); A('s_lshl_b32 s48, s48, 12'); A('s_add_u32 s96, s96, s48')
        A('s_add_u32 s97, s96, 16384'); A('s_add_u32 s98, s96, 32768'); A('s_add_u32 s99, s96, 49152')
        A('s_cmp_ge_u32 s3, 8')
        A('s_cbranch_scc1 L_young0')
        A('s_lshr_b32 s56, s2, 5'); A(f's_mul_i32 s56, s56, {4*IB}'); A('s_and_b32 s48, s2, 1'); A('s_lshl_b32 s48, s48, 12'); A('s_add_u32 s56, s56, s48')
        A('s_and_b32 s48, s52, 15'); A('s_lshl_b32 s48, s48, 8'); A('s_add_u32 s56, s56, s48'); A(f's_add_u32 s56, s56, {WS_Q}')
        A(f'v_mul_u32_u24 v60, {IB}, v8'); A('v_lshl_add_u32 v60, v9, 4, v60')
        A('v_lshlrev_b32 v7, 3, v10'); A('v_lshl_add_u32 v7, v12, 1, v7')
        A('s_lshl_b32 s48, s3, 8'); A('v_add_u32 v7, s48, v7')
        A('v_mov_b32 v56, 0xffffff00')
        A('s_waitcnt lgkmcnt(0)')
        A('s_barrier')
        self.tag()
        A('s_waitcnt vmcnt(0)')
        for tt in range(8): self.perm_tile(64, tt, 96 + 4 * tt)
        A('s_nop 1')
        self.proj_result()
        A(f'ds_write_b128 v7, v[20:23] offset:{L_QS}')
        A('s_mov_b64 exec, 1')
        A(f'ds_add_rtn_u32 v5, v4, v6 offset:{C_Q}')
        A('s_mov_b64 exec, -1')
        A('s_waitcnt lgkmcnt(0)')
        A('v_readfirstlane_b32 s48, v5')
        self.stamp(1)
        A('s_cmp_lg_u32 s48, 7')
        A('s_cbranch_scc1 L_task')
        A('s_setprio 3')
        for k in range(2): A(f'ds_read_b128 v[{32+4*k}:{35+4*k}], v1 offset:{L_QS + 1024*k}')
        A('s_waitcnt lgkmcnt(0)')
        for e in range(4): A(f'v_add_f32 v{32+e}, v{32+e}, v{36+e}')
        self.xg_reduce('v_add_f32', [32, 33, 34, 35], [36, 37, 38, 39])
        self.embed(range(32, 36))
        A('s_mov_b64 exec, 0xffffffff')
        A('buffer_store_dwordx4 v[32:35], v60, s[44:47], s56 offen sc1')
        A('s_mov_b64 exec, -1')
        A('s_setprio 2')
        A('s_branch L_task')
        self.lab('L_young0')
        A('v_mov_b32 v5, 0xff800000')
        A('v_cmp_gt_u32 vcc, 16, v0')
        A('v_lshlrev_b32 v7, 2, v0')
        A('s_lshl_b32 s48, s3, 8')
        A('v_cndmask_b32 v5, v4, v5, vcc')
        A(f'ds_write_b32 v7, v5 offset:{L_MISC}')
        A('v_add_u32 v9, s48, v7')
        A(f'ds_write_b32 v9, v4 offset:{L_T - 2048}')
        A('s_waitcnt lgkmcnt(0)')
        A('s_barrier')
        self.tag()
        A('s_cmp_ge_u32 s3, 12')
        A('s_cbranch_scc1 L_dyn')
        self.lab('L_task')
        self.task_static()
        A('s_cmp_ge_u32 s3, 8')
        A('s_cbranch_scc1 L_c')
        A('s_cmp_lg_u32 s3, 0'); A('s_cbranch_scc1 L_wo')
        A('s_lshr_b32 s53, s2, 5'); A('s_lshl_b32 s53, s53, 8'); A(f's_add_u32 s53, s53, {WS_T}')
        A('s_lshl_b32 s57, s22, 8'); A('s_lshl_b32 s48, s0, 7'); A('s_add_u32 s57, s57, s48')
        A('s_sub_u32 s62, s1, 32')
        A('s_mov_b32 s52, 4')
        A('s_setprio 3')
        self.lds_wait(F_GO, 1, sleep=2)
        self.lab('L_deal')
        A('s_mov_b32 s51, 0x8000')
        self.lab('L_drt')
        A('s_mov_b32 s66, 1'); A('s_mov_b32 s67, 0')
        A('s_atomic_add_x2 s[66:67], s[28:29], s53 glc')
        A('s_waitcnt lgkmcnt(0)')
        A('s_cmp_eq_u32 s67, s55'); A('s_cbranch_scc1 L_dok')
        A('s_sub_u32 s51, s51, 1'); A('s_cbranch_scc0 L_drt')
        A('s_mov_b32 s66, 0x10000')
        self.lab('L_dok')
        A('s_cmp_lt_u32 s66, 64'); A('s_cselect_b32 s58, s57, s62'); A('s_add_u32 s58, s58, s66')
        A('s_add_u32 s58, s58, 1')
        A(f's_cmp_lt_u32 s66, {NTICK}'); A('s_cselect_b32 s58, s58, 0x10000')
        A(f's_cmp_ge_u32 s66, {NTICK + o["rk2"]}'); A('s_cselect_b32 s48, 1, 2')
        A(f's_cmp_ge_u32 s66, {NTICK + o["rk"]}'); A('s_cselect_b32 s48, s48, 3')
        A('v_mov_b32 v8, s58'); A('v_mov_b32 v9, s52'); A('v_mov_b32 v5, s48')
        A(f'ds_write_b32 v4, v5 offset:{WGL}')
        A(f'ds_write_b32 v9, v8 offset:{L_T}')
        A(f's_cmp_ge_u32 s66, {NTICK}'); A('s_cbranch_scc1 L_ddone')
        A('s_add_u32 s52, s52, 4')
        A('s_add_u32 s59, s52, 2'); A(f's_cmp_ge_u32 s66, {NTICK - o["eg"]}'); A('s_cselect_b32 s58, s59, s52')
        self.lds_wait(NEED, 's58', sleep=0)
        A('s_branch L_deal')
        self.lab('L_ddone')
        A('s_setprio 2')
        self.lab('L_wo')
        A('s_mov_b32 s40, s10'); A('s_mov_b32 s41, s11')
        A('s_lshr_b32 s50, s4, 4'); A('s_lshl_b32 s50, s50, 10')
        A('s_and_b32 s51, s4, 3'); A('s_lshl_b32 s51, s51, 5'); A('s_add_u32 s50, s50, s51')
        A('s_bfe_u32 s51, s4, 0x20002'); A('s_add_u32 s50, s50, s51')
        A('s_lshl_b32 s50, s50, 11'); A('s_lshl_b32 s51, s7, 10'); A('s_add_u32 s50, s50, s51'); A('s_lshl_b32 s51, s3, 7'); A('s_add_u32 s50, s50, s51')
        A('v_lshrrev_b32 v8, 4, v0'); A('v_and_b32 v61, 8, v0')
        A('v_lshlrev_b32 v58, 19, v8'); A('v_lshl_add_u32 v58, v10, 2, v58'); A('v_lshl_add_u32 v58, v61, 10, v58')
        A('v_mov_b32 v56, 0xffffff00')
        A('v_and_b32 v60, 1, v0'); A('v_lshlrev_b32 v60, 6, v60'); A('v_lshl_add_u32 v60, v8, 4, v60')
        A('v_bfe_u32 v59, v0, 2, 1'); A(f'v_mul_u32_u24 v59, {IB}, v59')
        A('v_and_b32 v7, 3, v0'); A('v_lshl_add_u32 v59, v7, 5, v59'); A('v_lshl_add_u32 v59, v61, 1, v59')
        A('s_lshl_b32 s53, s20, 5'); A('s_lshl_b32 s48, s7, 4'); A('s_add_u32 s53, s53, s48'); A('s_lshl_b32 s48, s3, 1'); A('s_add_u32 s53, s53, s48')
        A(f's_mul_i32 s53, s53, {IB}'); A('s_lshl_b32 s48, s4, 7'); A('s_add_u32 s53, s53, s48'); A(f's_add_u32 s53, s53, {WS_I2}')
        self.lds_wait(F_EX, 1, sleep=1, areg=57)
        A(f'ds_read_b32 v5, v4 offset:{WGL}'); A('s_waitcnt lgkmcnt(0)'); A('v_readfirstlane_b32 s52, v5')
        self.lds_wait(F_EX, 's52', sleep=1, areg=57)
        A('s_setprio 0')
        for j in range(8):
            A(f'buffer_load_dwordx4 v[{64+4*j}:{67+4*j}], v58, s[40:43], s50 offen nt')
            if j < 7: A(f's_add_u32 s50, s50, {16384 if j != 3 else (128 - 24) * 2048}')
        self.stamp(11)
        A('s_setprio 2')
        A('s_waitcnt vmcnt(0)')
        self.lds_inc(C_W)
        for tt in range(8): self.perm_tile(64, tt, 96 + 4 * tt)
        self.stamp(12)
        if o.get('notail'): A('s_branch L_fin')
        A('s_mov_b32 s49, 0x40000')
        self.lab('L_ow')
        A(f'ds_read_b32 v5, v4 offset:{F_O}')
        A(f'ds_read_b128 v[16:19], v60 offset:{L_O}')
        A('s_waitcnt lgkmcnt(0)')
        A('v_readfirstlane_b32 s48, v5')
        A('s_cmp_ge_u32 s48, 2'); A('s_cbranch_scc1 L_owd')
        A('s_sub_u32 s49, s49, 1')
        A('s_cbranch_scc0 L_ow')
        self.lab('L_owd')
        self.proj_result()
        self.embed(range(20, 24))
        A('buffer_store_dwordx4 v[20:23], v59, s[44:47], s53 offen sc1')
        A('s_mov_b64 exec, -1')
        self.stamp(13)
        A('s_branch L_fin')
        self.lab('L_dyn')
        self.task_dynamic()
        self.lab('L_c')
        A('s_cmp_eq_u32 s3, 11')
        A('s_cbranch_scc1 L_red')
        if o.get('notail'): A('s_branch L_fin')
        A('s_cmp_eq_u32 s3, 8')
        A('s_cbranch_scc1 L_fin')
        self.lab('L_comb')
        A('s_lshr_b32 s40, s4, 4'); A('s_lshl_b32 s41, s20, 2'); A('s_add_u32 s40, s40, s41')
        A('s_lshl_b32 s41, s40, 2'); A('s_and_b32 s42, s2, 1'); A('s_add_u32 s41, s41, s42'); A(f's_mul_i32 s41, s41, {IB}'); A(f's_add_u32 s41, s41, {WS_ML}')
        A('s_lshl_b32 s40, s40, 5'); A('s_and_b32 s42, s4, 15'); A('s_lshl_b32 s42, s42, 1'); A('s_add_u32 s40, s40, s42')
        A('s_and_b32 s42, s3, 1'); A('s_add_u32 s40, s40, s42'); A(f's_mul_i32 s40, s40, {IB}'); A(f's_add_u32 s40, s40, {WS_I1}')
        A('s_lshl_b32 s42, s42, 6'); A('v_lshrrev_b32 v8, 4, v0'); A('v_add_u32 v12, v10, v8'); A('v_lshlrev_b32 v12, 1, v12'); A('v_add_u32 v12, s42, v12')
        A('s_add_u32 s42, s41, 4096'); A('s_add_u32 s43, s40, 4096')
        A('v_mov_b32 v15, 0xff'); A(f'v_mov_b32 v14, {LOG2E}')
        M = [96 + 4 * k for k in range(8)]
        for k in range(8):
            A(f'v_mov_b32 v{M[k]}, {NEGBIG}'); A(f'v_mov_b32 v{M[k]+2}, 0')
        for x in range(64, 96): A(f'v_mov_b32 v{x}, 0')
        A('s_cmp_eq_u32 s20, 0'); A(f's_cselect_b32 s52, {o.get("cw", 8)}, 0')
        self.lds_wait(C_O, 4, sleep=1)
        if o.get('tl'):
            A(f'ds_read_b32 v5, v4 offset:{WGL}'); A('s_waitcnt lgkmcnt(0)'); A('v_readfirstlane_b32 s48, v5')
            A('s_lshl_b32 s48, s48, 2'); A(f's_lshr_b32 s48, {hex(o["tl"])}, s48'); A('s_and_b32 s48, s48, 15'); A('s_min_u32 s52, s52, s48')
        self.lds_wait(C_W, 's52', sleep=1)
        self.stamp(11)
        self.mgather([(96, 's41', 's42', True), (64, 's40', 's43', False)], few=True)
        self.stamp(12)
        A(f'v_max3_f32 v32, v{M[0]}, v{M[1]}, v{M[2]}'); A(f'v_max3_f32 v33, v{M[3]}, v{M[4]}, v{M[5]}'); A(f'v_max3_f32 v32, v32, v{M[6]}, v{M[7]}'); A('v_max_f32 v32, v32, v33')
        self.ror_reduce('v_max_f32', [32], 8)
        self.xg_reduce('v_max_f32', [32], [33])
        A('v_mul_f32 v32, v14, v32')
        for k in range(8): A(f'v_fma_f32 v{16+k}, v{M[k]}, v14, -v32')
        for k in range(8): A(f'v_exp_f32 v{16+k}, v{16+k}')
        A(f'v_mul_f32 v36, v16, v{M[0]+2}')
        for k in range(1, 8): A(f'v_fmac_f32 v36, v{16+k}, v{M[k]+2}')
        fm = [f'v_mul_f32 v{32+e}, v16, v{64+e}' for e in range(4)] + [f'v_fmac_f32 v{32+e}, v{16+k}, v{64+4*k+e}' for k in range(1, 8) for e in range(4)]
        def F(n):
            for _ in range(n): A(fm.pop(0))
        F(2); A('v_add_f32_dpp v36, v36, v36 row_ror:8 row_mask:0xf bank_mask:0xf')
        for sw in ('v_permlane16_swap_b32', 'v_permlane32_swap_b32'):
            A('v_mov_b32 v37, v36'); F(2); A(f'{sw} v36, v37'); F(2); A('v_add_f32 v36, v36, v37')
        A('v_rcp_f32 v37, v36'); F(2)
        A('v_fma_f32 v38, -v36, v37, 1.0'); A('v_fma_f32 v37, v38, v37, v37')
        F(len(fm))
        self.quad_reduce(32)
        A('v_mul_f32 v32, v32, v37')
        A('v_cvt_pk_bf16_f32 v32, v32, v32')
        A('s_mov_b64 exec, s[14:15]')
        A(f'ds_write_b16 v12, v32 offset:{L_O}')
        A('s_mov_b64 exec, 1')
        A(f'ds_add_u32 v4, v6 offset:{F_O}')
        A('s_mov_b64 exec, -1')
        self.stamp(13)
        A('s_branch L_fin')
        self.lab('L_red')
        if o.get('notail'):
            A('s_cmp_lg_u32 s2, 0'); A('s_cbranch_scc1 L_fin')
            self.lds_wait(C_O, 4)
            A('v_mov_b32 v13, s55'); A('s_mov_b64 exec, 1'); A('global_store_dword v4, v13, s[28:29]'); A('s_mov_b64 exec, -1')
            A('s_branch L_fin')
        A('s_bfe_u32 s40, s2, 0x20003'); A('s_cmp_lg_u32 s40, 0')
        A('s_cbranch_scc1 L_fin')
        A('s_lshr_b32 s40, s2, 5'); A('s_lshl_b32 s40, s40, 3'); A('s_and_b32 s41, s2, 7'); A('s_add_u32 s40, s40, s41')
        A('s_lshl_b32 s42, s40, 6'); A('v_lshrrev_b32 v8, 4, v0'); A('v_add_u32 v12, v10, v8'); A('v_lshlrev_b32 v12, 1, v12'); A('v_add_u32 v12, s42, v12')
        A(f's_mul_i32 s40, s40, {IB}'); A(f's_add_u32 s40, s40, {WS_I2}')
        A('v_mov_b32 v13, s55'); A('v_mov_b32 v15, 0xff'); A('s_add_u32 s43, s40, 4096')
        self.lds_wait(C_O, 4, sleep=2)
        for k in range(8): A(f'buffer_load_dwordx4 v[{64+4*k}:{67+4*k}], v1, s[44:47], {"s40" if k < 4 else "s43"} offen offset:{1024*(k&3)} sc1')
        A('s_waitcnt vmcnt(0)')
        self.lds_wait(C_W, 8, sleep=1)
        self.lds_wait(F_O, 2, sleep=1)
        self.stamp(11)
        self.mgather([(64, 's40', 's43', False)])
        self.stamp(12)
        for k in range(4):
            for e in (0, 2): A(f'v_pk_add_f32 v[{40+4*k+e}:{41+4*k+e}], v[{64+4*k+e}:{65+4*k+e}], v[{80+4*k+e}:{81+4*k+e}]')
        for k in range(2):
            for e in (0, 2): A(f'v_pk_add_f32 v[{40+4*k+e}:{41+4*k+e}], v[{40+4*k+e}:{41+4*k+e}], v[{48+4*k+e}:{49+4*k+e}]')
        for e in (0, 2): A(f'v_pk_add_f32 v[{40+e}:{41+e}], v[{40+e}:{41+e}], v[{44+e}:{45+e}]')
        self.quad_reduce(40)
        A('v_cvt_pk_bf16_f32 v32, v40, v40')
        A('s_mov_b64 exec, s[14:15]')
        A('global_store_short v12, v32, s[24:25]')
        A('s_cmp_lg_u32 s2, 0')
        A('s_cbranch_scc1 L_nogen')
        A('s_mov_b64 exec, 1')
        A('global_store_dword v4, v13, s[28:29]')
        self.lab('L_nogen')
        A('s_mov_b64 exec, -1')
        self.stamp(13)
        if not o.get('lite'): self.lab('L_fin')
        if self.stamps:
            A('s_waitcnt vmcnt(0) lgkmcnt(0)')
            A('s_getreg_b32 s48, hwreg(HW_REG_XCC_ID)')
            A('s_getreg_b32 s49, hwreg(HW_REG_HW_ID)')
            for i in range(28): A(f'v_writelane_b32 v20, s{68+i}, {i}')
            A('v_writelane_b32 v20, s48, 28')
            A('v_writelane_b32 v20, s49, 29')
            A('s_lshl_b32 s48, s2, 4'); A('s_add_u32 s48, s48, s3'); A('s_lshl_b32 s48, s48, 7'); A(f's_add_u32 s48, s48, {STAMP_OFF}')
            A('v_lshlrev_b32 v7, 2, v0'); A('v_add_u32 v7, s48, v7')
            A('s_mov_b64 exec, 0xffffffff')
            A('global_store_dword v7, v20, s[28:29]')
        if o.get('lite'): self.lab('L_fin')
        self.lab('L_end')
        A('s_endpgm')
        L.append('.section .rodata,"a"')
        L.append('.p2align 6')
        L.append(f'.amdhsa_kernel {NAME}_kernel')
        L.append('  .amdhsa_next_free_vgpr 128')
        L.append('  .amdhsa_next_free_sgpr 102')
        L.append('  .amdhsa_accum_offset 128')
        L.append('  .amdhsa_group_segment_fixed_size 0')
        L.append('  .amdhsa_kernarg_size 104')
        L.append('  .amdhsa_user_sgpr_count 2')
        L.append('  .amdhsa_user_sgpr_kernarg_segment_ptr 1')
        L.append('  .amdhsa_system_sgpr_workgroup_id_x 1')
        L.append('.end_amdhsa_kernel')
        return '\n'.join(L) + '\n'

if __name__ == '__main__':
    out = sys.argv[1]
    stamps = 'stamps' in sys.argv[2:]
    opts = {}
    for a in sys.argv[2:]:
        if '=' in a:
            k, v = a.split('='); opts[k] = int(v, 0)
    open(out, 'w').write(Gen(stamps, opts).build())
```

```python
import sys
NAME = 'concat_heads__gqa_block_cached__sliding_block_cached__decode'
HEADER = open('cdna_kernels/' + NAME + '.s.ref').read().split('; Override launch')[0]

IB = 8448
WS_T = 0x1000
WS_Q = 0x4000
WS_ML = 0x50000
WS_I1 = 0xA0000
WS_I2 = 0x2C0000
WS_BYTES = 0x400000
STAMP_OFF = 0x10000000
L_CH, L_CHB, L_QS, L_Q, L_QB, L_MISC = 0, 16384, 32768, 34816, 37120, 39424
QSTR = 272
L_MA, L_LA = L_MISC, L_MISC + 64
L_C = L_MISC + 128
C_Q, C_M, C_O, C_L, F_Q, F_GO, F_O, WGL, C_D, C_W, NEED, C_WL, F_CH = [L_C + 4 * i for i in range(13)]
F_EX = L_C + 64
L_O = L_MISC + 256
L_M4 = L_MISC + 384
L_T = L_MISC + 768
L_KD = L_T + 2048
LDS_BYTES = L_KD + 4 * 3 * 4096
NTICK = 160
DB = 96
C_DB = L_C + 120
LOG2E = '0x3fb8aa3b'
NEGBIG = '0xf149f2ca'

DOC = '''; ---------------------------------------------------------------------------------------------
;  waves 8-11 : a static 64-key task; afterwards combine (9,10) and final reduce (11) roles
;  Hand-offs between workgroups go through d_ws with write-through stores; every 16-byte granule carries the
; ---------------------------------------------------------------------------------------------'''

class Gen:
    def __init__(self, stamps=False, opts=None):
        self.L = []
        self.stamps = stamps
        self.nlab = 0
        self.o = dict(rk=14, rk2=24, eg=64, hn=60, go=3, cw=8)
        if opts: self.o.update(opts)
    def A(self, s): self.L.append('    ' + s)
    def C(self, s): self.L.append('    ; ' + s)
    def lab(self, s): self.L.append(s + ':')
    def newlab(self, p='L'):
        self.nlab += 1
        return f'{p}_{self.nlab}'
    def stamp(self, i):
        if self.o.get('lite') and i not in (0, 13): return
        if self.stamps: self.A(f's_memrealtime s[{68+2*i}:{69+2*i}]')

    def lds_wait(self, addr, val, sleep=1, areg=4):
        A = self.A
        l = self.newlab('W'); d = self.newlab('D')
        A('s_mov_b32 s49, 0x40000')
        self.lab(l)
        A(f'ds_read_b32 v5, v{areg} offset:{addr}')
        A('s_waitcnt lgkmcnt(0)')
        A('v_readfirstlane_b32 s48, v5')
        A(f's_cmp_ge_u32 s48, {val}')
        A(f's_cbranch_scc1 {d}')
        if sleep: A(f's_sleep {sleep}')
        A('s_sub_u32 s49, s49, 1')
        A(f's_cbranch_scc0 {l}')
        self.lab(d)
    def lds_inc(self, *addrs, areg=4):
        A = self.A
        A('s_mov_b64 exec, 1')
        for a in addrs: A(f'ds_add_u32 v{areg}, v6 offset:{a}')
        A('s_mov_b64 exec, -1')
    def tag(self):
        A = self.A
        A('s_and_b32 s55, s54, 0x7f7f7f7f'); A('s_add_u32 s55, s55, 0x35172b4d'); A('s_and_b32 s8, s54, 0x80808080'); A('s_xor_b32 s55, s55, s8')
        A('s_and_b32 s8, s55, 0xff'); A('s_bfe_u32 s9, s55, 0x80008'); A('s_bfe_u32 s12, s55, 0x80010'); A('s_lshr_b32 s13, s55, 24')
    TB = ['s8', 's9', 's12', 's13']
    def embed(self, regs):
        for r in regs: self.A(f'v_and_or_b32 v{r}, v{r}, v56, {self.TB[r & 3]}')
    def perm_tile(self, src, tt, dst):
        i, h = tt >> 1, tt & 1
        sel = 's31' if h else 's30'
        for jp in range(4):
            self.A(f'v_perm_b32 v{dst+jp}, v{src+4*(2*jp+1)+i}, v{src+4*(2*jp)+i}, {sel}')
    def xg_reduce(self, op, regs, tmps):
        A = self.A
        for sw in ('v_permlane16_swap_b32', 'v_permlane32_swap_b32'):
            for r, t in zip(regs, tmps): A(f'v_mov_b32 v{t}, v{r}')
            A('s_nop 1')
            for r, t in zip(regs, tmps): A(f'{sw} v{r}, v{t}')
            A('s_nop 1')
            for r, t in zip(regs, tmps): A(f'{op} v{r}, v{r}, v{t}')
    def ror_reduce(self, op, regs, n):
        A = self.A
        A('s_nop 1')
        for r in regs: A(f'{op}_dpp v{r}, v{r}, v{r} row_ror:{n} row_mask:0xf bank_mask:0xf')
    def quad_reduce(self, a):
        A = self.A
        A('s_nop 1')
        A(f'v_permlane16_swap_b32 v{a}, v{a+1}'); A(f'v_permlane16_swap_b32 v{a+2}, v{a+3}')
        A('s_nop 0')
        A(f'v_add_f32 v{a}, v{a}, v{a+1}'); A(f'v_add_f32 v{a+2}, v{a+2}, v{a+3}')
        A('s_nop 1')
        A(f'v_permlane32_swap_b32 v{a}, v{a+2}')
        A('s_nop 1')
        A(f'v_add_f32 v{a}, v{a}, v{a+2}')
        A('s_nop 1')
        A(f'v_add_f32_dpp v{a}, v{a}, v{a} row_ror:8 row_mask:0xf bank_mask:0xf')

    MK = [50, 52, 56, 58, 60, 62, 64, 66]
    def mgather(self, sets, few=False):
        A = self.A
        l = self.newlab('MG'); d = self.newlab('MGD'); li = self.newlab('MI')
        A('s_setprio 3')
        A('s_mov_b32 s49, 0x20000')
        if few:
            A('s_mov_b64 s[50:51], -1'); A('s_mov_b64 s[52:53], -1')
            for k in range(2, 8): A(f's_mov_b64 s[{self.MK[k]}:{self.MK[k]+1}], 0')
            A('s_cmp_lg_u32 s20, 0'); A(f's_cbranch_scc1 {li}')
        def loads(k):
            for dst, lo, hi, tg in sets:
                A(f'buffer_load_dwordx4 v[{dst+4*k}:{dst+4*k+3}], v1, s[44:47], {lo if k < 4 else hi} offen offset:{1024*(k&3)} sc1')
        def check(k):
            for dst, lo, hi, tg in sets:
                r = dst + 4 * k
                if tg:
                    A(f'v_xor_b32 v7, s55, v{r+1}'); A(f'v_bitop3_b32 v7, s55, v7, v{r+3} bitop3:0xde')
                else:
                    for e in range(4): A(f'v_xor_b32 v{r+e}, {self.TB[e]}, v{r+e}')
                    A(f'v_or3_b32 v5, v{r}, v{r+1}, v{r+2}')
                    A(f'v_bitop3_b32 v5, v5, v15, v{r+3} bitop3:0xc8')
            if len(sets) == 2: A('v_or_b32 v5, v5, v7')
            m = self.MK[k]
            A(f'v_cmp_ne_u32 s[{m}:{m+1}], 0, v5')
        for k in range(8): loads(k)
        n = len(sets)
        for k in range(8):
            A(f's_waitcnt vmcnt({(7-k)*n})')
            check(k)
        self.lab(l)
        A('s_or_b64 vcc, s[50:51], s[52:53]')
        for k in range(2, 8): A(f's_or_b64 vcc, vcc, s[{self.MK[k]}:{self.MK[k]+1}]')
        A(f's_cbranch_scc0 {d}')
        self.lab(li)
        for k in range(8):
            sk = self.newlab('MS'); m = self.MK[k]
            A(f's_wqm_b64 exec, s[{m}:{m+1}]')
            A(f's_cbranch_execz {sk}')
            loads(k)
            self.lab(sk)
        A('s_waitcnt vmcnt(0)')
        for k in range(8):
            sk = self.newlab('MC'); m = self.MK[k]
            A(f's_wqm_b64 exec, s[{m}:{m+1}]')
            A(f's_cbranch_execz {sk}')
            check(k)
            self.lab(sk)
        A('s_mov_b64 exec, -1')
        A('s_sub_u32 s49, s49, 1')
        A(f's_cbranch_scc0 {l}')
        self.lab(d)

    def q_gather(self):
        A = self.A
        A('s_and_b32 s48, s3, 1')
        A('v_lshrrev_b32 v8, 5, v0'); A('v_and_b32 v5, 31, v0')
        A(f'v_mul_u32_u24 v8, {QSTR}, v8'); A('v_lshl_add_u32 v8, v5, 3, v8')
        A(f's_mul_i32 s40, s48, {L_QB - L_Q}'); A('v_add_u32 v8, s40, v8')
        A(f's_mul_i32 s40, s48, {DB}'); A('v_mov_b32 v9, s40')
        A('v_mov_b32 v15, 0xff')
        A('s_lshl_b32 s40, s48, 2'); A('s_add_u32 s40, s40, s22'); A('s_lshl_b32 s40, s40, 2'); A('s_and_b32 s41, s2, 1'); A('s_add_u32 s40, s40, s41')
        A(f's_mul_i32 s40, s40, {IB}'); A(f's_add_u32 s40, s40, {WS_Q}'); A('s_add_u32 s41, s40, 4096')
        self.mgather([(32, 's40', 's41', False)])
        for k in range(4):
            r = 32 + 4 * k
            for e in range(4): A(f'v_add_f32 v{r+e}, v{r+e}, v{r+16+e}')
            A(f'v_cvt_pk_bf16_f32 v{r}, v{r}, v{r+1}'); A(f'v_cvt_pk_bf16_f32 v{r+1}, v{r+2}, v{r+3}')
            A(f'ds_write_b64 v8, v[{r}:{r+1}] offset:{L_Q + 2*QSTR*k}')
        A(f'ds_write_b32 v9, v6 offset:{F_Q}')
        A('s_setprio 2')

    def v_issue(self, sig):
        self.A('s_setprio 1')
        for i in range(4):
            if sig and i == self.o['go']: self.A(f'ds_write_b32 v4, v6 offset:{F_GO}')
            for T in range(2):
                for nn in range(2):
                    r = 64 + 32 * T + 4 * (2 * i + nn)
                    self.A(f'buffer_load_dwordx4 v[{r}:{r+3}], v1, s[36:39], s{96+i} offen offset:{2048*T+1024*nn} nt')
                    self.A('s_nop 0')
        self.A('s_setprio 2')
    def read_q(self):
        for hf in range(2):
            self.A(f'ds_read_b128 v[{16+4*hf}:{19+4*hf}], v3 offset:{L_Q + 128*hf}')
        self.A('s_waitcnt lgkmcnt(0)')
    def qk(self, N, D0, R):
        A = self.A
        for hf in range(2):
            for i in range(N):
                r = 64 + 8 * i + 4 * hf; d = D0 + 4 * i
                c = '0' if hf == 0 else f'v[{d}:{d+3}]'
                A(f'v_mfma_f32_16x16x32_bf16 v[{d}:{d+3}], v[{r}:{r+3}], v[{16+4*hf}:{19+4*hf}], {c}')
        A(f's_nop {max(0, 8 - N)}')
        for i in range(N):
            d = D0 + 4 * i
            A(f'v_cndmask_b32 v{d}, v{d+3}, v{d}, s[14:15]')
            A(f'v_cndmask_b32 v{d+1}, v{d+1}, v{d+2}, s[14:15]')
        if N < 3: A('s_nop 1')
        for i in range(N):
            d = D0 + 4 * i
            A(f'v_add_f32_dpp v{R[i]}, v{d+1}, v{d} row_ror:8 row_mask:0xf bank_mask:0xf')
    def round_chain(self, S, T):
        A = self.A
        n = len(S) // 2
        for rep in range(2):
            for k in range(n): A(f'v_cvt_pk_bf16_f32 v{T+k}, v{S[2*k]}, v{S[2*k+1]}')
            for k in range(n):
                A(f'v_lshlrev_b32 v{S[2*k]}, 16, v{T+k}')
                A(f'v_and_b32 v{S[2*k+1]}, s100, v{T+k}')
            if rep == 0:
                for x in S: A(f'v_mul_f32 v{x}, s101, v{x}')

    def task_static(self):
        A = self.A
        S = list(range(24, 32))
        for i in range(4):
            for nn in range(2):
                for hf in range(2):
                    r = 64 + 16 * i + 8 * nn + 4 * hf
                    A(f'buffer_load_dwordx4 v[{r}:{r+3}], v2, s[32:35], s{96+i} offen offset:{1024*nn+128*hf} nt')
                    A('s_nop 0')
        self.stamp(2)
        A(f's_sub_u32 s48, s3, {self.o.get("qw", 4)}'); A('s_cmp_gt_u32 s48, s16'); A('s_cbranch_scc1 L_nq')
        if 'qd' in self.o: A(f's_waitcnt vmcnt({self.o["qd"]})')
        self.q_gather()
        self.stamp(9)
        self.lab('L_nq')
        A(f's_mul_i32 s48, s17, {DB}'); A('v_mov_b32 v15, s48')
        A('s_lshl_b32 s48, s17, 5'); A('v_add_u32 v13, s48, v10')
        self.lds_wait(F_Q, 1, areg=15)
        self.read_q()
        A('s_waitcnt vmcnt(0)')
        self.stamp(3)
        self.qk(8, 32, S)
        self.round_chain(S, 32)
        A('v_max3_f32 v8, v24, v25, v26'); A('v_max3_f32 v9, v27, v28, v29'); A('v_max3_f32 v8, v8, v30, v31'); A('v_max_f32 v8, v8, v9')
        self.ror_reduce('v_max_f32', [8], 8)
        self.xg_reduce('v_max_f32', [8], [9])
        A('s_mov_b64 exec, 0xff')
        A(f'ds_max_f32 v13, v8 offset:{L_MA}')
        A('s_mov_b64 exec, 1')
        A(f'ds_add_u32 v15, v6 offset:{C_M}')
        A('s_mov_b64 exec, -1')
        self.stamp(4)
        A('s_cmp_ge_u32 s3, 8'); A('s_cbranch_scc1 L_young')
        self.v_issue(False)
        self.stamp(10)
        self.lab('L_young')
        self.lds_wait(C_M, 's18', areg=15)
        self.stamp(5)
        A(f'ds_read_b32 v12, v13 offset:{L_MA}')
        A('s_waitcnt lgkmcnt(0)')
        for x in S: A(f'v_sub_f32 v{x}, v{x}, v12')
        for x in S: A(f'v_mul_f32 v{x}, {LOG2E}, v{x}')
        for x in S: A(f'v_exp_f32 v{x}, v{x}')
        A('s_nop 0')
        for k in range(4): A(f'v_cvt_pk_bf16_f32 v{32+k}, v{S[2*k]}, v{S[2*k+1]}')
        A('v_add_f32 v14, v24, v25'); A('v_add_f32 v9, v26, v27')
        A('v_add_f32 v14, v14, v28'); A('v_add_f32 v9, v9, v29'); A('v_add_f32 v14, v14, v30'); A('v_add_f32 v9, v9, v31')
        A('v_add_f32 v14, v14, v9')
        self.ror_reduce('v_add_f32', [14], 8)
        self.xg_reduce('v_add_f32', [14], [9])
        A('s_mov_b64 exec, 0xff')
        A(f'ds_add_f32 v13, v14 offset:{L_LA}')
        A('s_mov_b64 exec, 1')
        A(f'ds_add_u32 v15, v6 offset:{C_L}')
        A('s_mov_b64 exec, -1')
        for k in range(4): A(f'v_cndmask_b32 v{16+k}, 0, v{32+k}, s[14:15]')
        for k in range(4): A(f'v_cndmask_b32 v{28+k}, v{32+k}, 0, s[14:15]')
        for k in range(4): A(f'v_mov_b32_dpp v{24+k}, v{16+k} row_ror:8 row_mask:0xf bank_mask:0xf')
        for k in range(4): A(f'v_mov_b32_dpp v{20+k}, v{28+k} row_ror:8 row_mask:0xf bank_mask:0xf')
        A('v_lshrrev_b32 v57, 10, v11')
        for x in range(32, 48): A(f'v_mov_b32 v{x}, 0')
        A('s_lshr_b32 s52, s3, 2'); A('s_sub_u32 s52, s52, s16'); A('s_max_i32 s52, s52, 0')
        A('s_cmp_lt_u32 s3, 8'); A('s_cbranch_scc1 L_old')
        self.v_issue(True)
        self.stamp(10)
        self.lab('L_old')
        A('s_cmp_eq_u32 s52, 0'); A('s_cbranch_scc1 L_noch')
        self.lds_wait(F_CH, 's52', areg=57)
        for q in range(4): A(f'ds_read_b128 v[{32+4*q}:{35+4*q}], v11 offset:{L_CH + 1024*q}')
        self.lab('L_noch')
        self.stamp(6)
        A('s_waitcnt lgkmcnt(0)')
        tq = [48, 52]
        for T in range(2):
            A(f's_waitcnt vmcnt({2 if T == 0 else 0})')
            src = 64 + 32 * T
            self.perm_tile(src, 0, tq[0])
            for tt in range(8):
                if tt < 7: self.perm_tile(src, tt + 1, tq[(tt + 1) & 1])
                else: A('s_nop 1')
                q = tq[tt & 1]; d = 32 + 4 * (tt & 3); p = (16 if tt < 4 else 24) + 4 * T
                A(f'v_mfma_f32_16x16x32_bf16 v[{d}:{d+3}], v[{q}:{q+3}], v[{p}:{p+3}], v[{d}:{d+3}]')
        self.stamp(7)
        A('s_nop 5')
        A('s_cmp_lg_u32 s17, 0'); A('s_cbranch_scc1 L_wfin')
        for q in range(4): A(f'ds_write_b128 v11, v[{32+4*q}:{35+4*q}] offset:{L_CH + 1024*q}')
        self.lds_inc(F_CH, areg=57)
        A('s_branch L_tdone')
        self.lab('L_wfin')
        for q in range(4): A(f'ds_write_b128 v11, v[{32+4*q}:{35+4*q}] offset:{L_CHB + 1024*q}')
        self.lds_inc(C_DB)
        A('v_lshl_add_u32 v59, v57, 8, v1')
        A('v_lshrrev_b32 v58, 3, v0'); A(f'v_mul_u32_u24 v58, {IB}, v58'); A('v_lshl_add_u32 v58, v10, 2, v58')
        A('v_mov_b32 v56, 0xffffff00')
        A('s_sub_u32 s50, s19, s23'); A('s_lshl_b32 s50, s50, 7')
        A('s_add_u32 s51, s50, s5'); A(f's_add_u32 s51, s51, {16*IB}')
        A('s_add_u32 s50, s50, s6'); A(f's_mul_i32 s52, s3, {8*IB}'); A('s_add_u32 s50, s50, s52'); A(f's_add_u32 s50, s50, {128*IB}')
        self.lds_wait(C_DB, 4)
        for w in range(4): A(f'ds_read_b128 v[{64+4*w}:{67+4*w}], v59 offset:{L_CHB + 4096*w}')
        A(f'ds_read_b32 v14, v13 offset:{L_LA}')
        A('s_waitcnt lgkmcnt(0)')
        A('v_mov_b32 v13, s55'); A('v_mov_b32 v15, s55')
        for e in range(4): A(f'v_add_f32 v{32+e}, v{64+e}, v{68+e}')
        for e in range(4): A(f'v_add_f32 v{36+e}, v{72+e}, v{76+e}')
        for e in range(4): A(f'v_add_f32 v{32+e}, v{32+e}, v{36+e}')
        self.embed(range(32, 36))
        A('s_setprio 3')
        A('buffer_store_dwordx4 v[32:35], v58, s[44:47], s50 offen sc1')
        A('s_cmp_lg_u32 s3, 1'); A('s_cbranch_scc1 L_wnm')
        A('s_mov_b64 exec, 0xffff')
        A('buffer_store_dwordx4 v[12:15], v58, s[44:47], s51 offen sc1')
        A('s_mov_b64 exec, -1')
        self.lab('L_wnm')
        A('s_setprio 2')
        self.lab('L_tdone')

    def wait3(self, a, b, c):
        A = self.A
        d = self.newlab('WT')
        A(f's_waitcnt vmcnt({a})')
        A('s_cmp_eq_u32 s61, 0'); A(f's_cbranch_scc1 {d}')
        A(f's_waitcnt vmcnt({b})')
        A('s_cmp_eq_u32 s61, 1'); A(f's_cbranch_scc1 {d}')
        A(f's_waitcnt vmcnt({c})')
        self.lab(d)

    def task_dynamic(self):
        A = self.A
        A('s_sub_u32 s52, s3, 12')
        A('s_cmp_lg_u32 s52, 0'); A('s_cbranch_scc1 L_nopre')
        A('s_and_b32 s48, s23, 31'); A('s_add_u32 s48, s48, s1'); A('s_add_u32 s48, s48, 1')
        A('v_mov_b32 v8, s48')
        A(f'ds_write_b32 v4, v8 offset:{L_T}')
        self.lab('L_nopre')
        A(f's_mul_i32 s27, s52, {3*4096}'); A(f's_add_u32 s27, s27, {L_KD}')
        A('v_add_u32 v63, s27, v1')
        for x in range(32, 48): A(f'v_mov_b32 v{x}, 0')
        A(f'v_mov_b32 v12, {NEGBIG}'); A('v_mov_b32 v14, 0')
        A('v_lshrrev_b32 v57, 10, v11')
        A('v_mov_b32 v56, 0xffffff00')
        A('v_lshrrev_b32 v58, 3, v0'); A(f'v_mul_u32_u24 v58, {IB}, v58'); A('v_lshl_add_u32 v58, v10, 2, v58')
        A('v_lshl_add_u32 v59, v57, 8, v1')
        A('v_lshlrev_b32 v61, 3, v10'); A('v_lshl_add_u32 v60, v57, 1, v61')
        A('v_mov_b32 v62, 0')
        A(f'v_mov_b32 v7, {LOG2E}')
        A('s_lshl_b32 s26, s22, 24'); A('s_lshl_b32 s48, s52, 12'); A('s_add_u32 s26, s26, s48'); A('s_sub_u32 s26, s26, 16384')
        A(f's_mul_i32 s56, s52, {8*IB}')
        A('v_mov_b32 v13, s55'); A('v_mov_b32 v15, s55')
        A('s_and_b32 s48, s23, 31'); A('s_or_b32 s48, s48, s52'); A('s_cbranch_scc1 L_ni')
        A('v_mov_b32 v8, 32'); A('v_mov_b32 v9, s55')
        A('s_lshr_b32 s48, s2, 5'); A('s_lshl_b32 s48, s48, 8'); A(f's_add_u32 s48, s48, {WS_T}')
        A('s_mov_b64 exec, 1'); A('s_setprio 3')
        A('buffer_store_dwordx2 v[8:9], v4, s[44:47], s48 offen sc1')
        A('s_setprio 2'); A('s_mov_b64 exec, -1')
        self.lab('L_ni')
        A('s_sub_u32 s57, 3, s16')
        A('s_add_u32 s56, s56, s6')
        self.stamp(2)
        A('s_mov_b32 s21, 0'); A('s_mov_b32 s64, 0'); A('s_mov_b32 s65, 0'); A('s_mov_b32 s60, 0'); A('s_mov_b32 s59, 0')
        self.lab('L_dl')
        for b in range(3):
            pr, ex, dr, nx, tk, no, pe, nf = [self.newlab(x) for x in ('PR', 'EX', 'DR', 'NX', 'TK', 'NO', 'PE', 'NF')]
            A('s_cmp_lg_u32 s65, 0'); A(f's_cbranch_scc1 {dr}')
            A(f'ds_read_b32 v5, v62 offset:{L_T}')
            A('s_waitcnt lgkmcnt(0)')
            A('v_readfirstlane_b32 s48, v5')
            A('s_cmp_eq_u32 s48, 0'); A(f's_cbranch_scc1 {no}')
            self.lab(tk)
            A('v_add_u32 v62, 4, v62')
            A('s_sub_u32 s49, s48, 1')
            A('s_cmp_ge_u32 s49, 1024'); A(f's_cbranch_scc1 {ex}')
            A('s_lshl_b32 s50, s48, 14'); A('s_add_u32 s50, s50, s26')
            A(f's_add_u32 s48, s27, {4096*b}')
            A('s_mov_b64 exec, 1'); A(f'ds_max_u32 v4, v62 offset:{NEED}'); A('s_mov_b64 exec, -1')
            for j, (imm, adj) in enumerate(((0, 896), (128, 128), (1024, 896), (1152, 0))):
                A('s_mov_b32 m0, s48'); A(f's_add_u32 s48, s48, {adj}')
                A(f'buffer_load_dwordx4 v2, s[32:35], s50 offen offset:{imm} nt lds')
            A('v_add_u32 v5, 2, v62')
            for j in range(4):
                r = 80 + 16 * b + 4 * j
                if j == 3:
                    A('s_mov_b64 exec, 1'); A(f'ds_max_u32 v4, v5 offset:{NEED}'); A('s_mov_b64 exec, -1')
                A(f'buffer_load_dwordx4 v[{r}:{r+3}], v1, s[36:39], s50 offen offset:{1024*j} nt')
                A('s_nop 0')
            A('s_setprio 1')
            A('s_add_u32 s64, s64, 1')
            A('s_mov_b32 s61, 0')
            A('s_cmp_eq_u32 s60, 0'); A('s_mov_b32 s60, 0'); A(f's_cbranch_scc1 {pr}')
            A(f's_branch {nx}')
            self.lab(no)
            A('s_mov_b32 s61, 1'); A('s_mov_b32 s60, 1')
            A(f's_branch {pr}')
            self.lab(ex)
            A('s_getpc_b64 s[62:63]')
            A('s_branch L_exh')
            A('s_mov_b32 s65, s60')
            A('s_cmp_lg_u32 s60, 0'); A('s_mov_b32 s60, 0'); A(f's_cbranch_scc1 {nx}')
            self.lab(dr)
            A('s_add_u32 s65, s65, 1')
            A('v_mov_b32 v5, s65')
            A(f'ds_write_b32 v57, v5 offset:{F_EX}')
            A('s_cmp_gt_u32 s65, 2'); A('s_cbranch_scc1 L_dfin')
            A('s_mov_b32 s61, s65')
            self.lab(pr)
            A('s_cmp_lt_u32 s21, 2'); A(f's_cbranch_scc1 {pe}')
            if b == 2:
                A('s_cmp_lg_u32 s21, 2'); A(f's_cbranch_scc1 {nf}')
                self.lds_wait(F_Q, 1)
                self.read_q()
                self.lab(nf)
            pb = (b + 1) % 3
            self.wait3(20, 12, 4)
            for n in range(4): A(f'ds_read_b128 v[{64+4*n}:{67+4*n}], v63 offset:{4096*pb + 1024*n}')
            A('s_waitcnt lgkmcnt(0)')
            self.qk(2, 48, [24, 25])
            self.round_chain([24, 25], 26)
            A('v_max3_f32 v8, v24, v25, v12')
            self.ror_reduce('v_max_f32', [8], 8)
            self.xg_reduce('v_max_f32', [8], [9])
            A('v_sub_f32 v9, v12, v8'); A('v_sub_f32 v24, v24, v8'); A('v_sub_f32 v25, v25, v8')
            A('v_mul_f32 v9, v7, v9'); A('v_mul_f32 v24, v7, v24'); A('v_mul_f32 v25, v7, v25')
            A('v_exp_f32 v9, v9'); A('v_exp_f32 v24, v24'); A('v_exp_f32 v25, v25')
            A('v_mov_b32 v12, v8')
            A('v_cvt_pk_bf16_f32 v26, v24, v25')
            A('v_fma_f32 v14, v14, v9, v24')
            A('v_add_f32 v14, v14, v25')
            A('v_mov_b32_dpp v27, v26 row_ror:8 row_mask:0xf bank_mask:0xf')
            for x in range(32, 48): A(f'v_mul_f32 v{x}, v{x}, v9')
            A('v_cndmask_b32 v28, 0, v26, s[14:15]'); A('v_cndmask_b32 v29, 0, v27, s[14:15]')
            A('v_cndmask_b32 v30, v27, 0, s[14:15]'); A('v_cndmask_b32 v31, v26, 0, s[14:15]')
            self.wait3(16, 8, 0)
            vb = 80 + 16 * pb
            for tt in range(8):
                i, h = tt >> 1, tt & 1
                sel = 's31' if h else 's30'
                A(f'v_perm_b32 v{64+2*tt}, v{vb+4+i}, v{vb+i}, {sel}')
                A(f'v_perm_b32 v{65+2*tt}, v{vb+12+i}, v{vb+8+i}, {sel}')
            for tt in range(8):
                d = 32 + 4 * (tt & 3); p = 28 if tt < 4 else 30
                A(f'v_mfma_f32_16x16x16_bf16 v[{d}:{d+3}], v[{64+2*tt}:{65+2*tt}], v[{p}:{p+1}], v[{d}:{d+3}]')
            self.lab(pe)
            A('s_cmp_eq_u32 s60, 0'); A(f's_cbranch_scc1 {nx}')
            A('s_getpc_b64 s[62:63]')
            A('s_branch L_tryf')
            self.lds_wait(L_T, 1, sleep=1, areg=62)
            A(f's_branch {tk}')
            self.lab(nx)
            A('s_add_u32 s21, s21, 1')
        A('s_branch L_dl')
        self.lab('L_tryf')
        A('s_cmp_lg_u32 s59, 0'); A('s_cbranch_scc1 L_ret')
        A(f'ds_read_b32 v5, v57 offset:{F_CH}')
        A('s_waitcnt lgkmcnt(0)')
        A('v_readfirstlane_b32 s48, v5')
        A('s_cmp_ge_u32 s48, s57'); A('s_cbranch_scc1 L_fold')
        A('s_branch L_ret')
        self.lab('L_exh')
        self.stamp(10)
        A('s_setprio 2')
        A(f'ds_write_b32 v57, v6 offset:{F_EX}')
        A('s_cmp_lg_u32 s59, 0'); A('s_cbranch_scc1 L_ret')
        self.lds_wait(F_CH, 's57', areg=57)
        self.lab('L_fold')
        A('s_mov_b32 s59, 1')
        for q in range(4): A(f'ds_read_b128 v[{64+4*q}:{67+4*q}], v11 offset:{L_CH + 1024*q}')
        A(f'ds_read_b32 v8, v10 offset:{L_MA}')
        self.lds_wait(C_L, 's18')
        A(f'ds_read_b32 v24, v10 offset:{L_LA}')
        A('v_max_f32 v25, v8, v12')
        A('v_sub_f32 v9, v12, v25'); A('v_sub_f32 v8, v8, v25')
        A('v_mul_f32 v9, v7, v9'); A('v_mul_f32 v8, v7, v8')
        A('v_exp_f32 v9, v9'); A('v_exp_f32 v8, v8')
        A('v_mov_b32 v12, v25')
        A('s_waitcnt lgkmcnt(0)')
        A('v_mul_f32 v24, 0x3d000000, v24')
        A('v_mul_f32 v14, v14, v9')
        A('v_fmac_f32 v14, v24, v8')
        for x in range(32, 48): A(f'v_mul_f32 v{x}, v{x}, v9')
        for x in range(32, 48): A(f'v_fmac_f32 v{x}, v{x+32}, v8')
        self.lab('L_ret')
        A('s_add_u32 s62, s62, 4'); A('s_addc_u32 s63, s63, 0')
        A('s_setpc_b64 s[62:63]')
        self.lab('L_dfin')
        A('s_setprio 3')
        self.stamp(7)
        for q in range(4): A(f'ds_write_b128 v11, v[{32+4*q}:{35+4*q}] offset:{L_CH + 1024*q}')
        A('v_mov_b32 v24, v12')
        A('v_add_f32_dpp v25, v14, v14 row_ror:8 row_mask:0xf bank_mask:0xf')
        self.xg_reduce('v_add_f32', [25], [9])
        A(f'ds_write_b64 v60, v[24:25] offset:{L_M4}')
        self.lds_inc(C_D)
        A('s_mov_b32 s49, 0x40000')
        self.lab('L_mw')
        A(f'ds_read_b32 v5, v4 offset:{C_D}')
        A(f'ds_read_b128 v[16:19], v61 offset:{L_M4}')
        A(f'ds_read_b128 v[20:23], v61 offset:{L_M4+16}')
        for w in range(4): A(f'ds_read_b128 v[{64+4*w}:{67+4*w}], v59 offset:{L_CH + 4096*w}')
        A('s_waitcnt lgkmcnt(6)')
        A('v_readfirstlane_b32 s48, v5')
        A('s_cmp_ge_u32 s48, 4'); A('s_cbranch_scc1 L_mwd')
        A('s_sub_u32 s49, s49, 1')
        A('s_cbranch_scc0 L_mw')
        self.lab('L_mwd')
        A('s_waitcnt lgkmcnt(4)')
        A('v_max3_f32 v12, v16, v18, v20'); A('v_max_f32 v12, v12, v22')
        for w in range(4): A(f'v_sub_f32 v{16+2*w}, v{16+2*w}, v12')
        for w in range(4): A(f'v_mul_f32 v{16+2*w}, v7, v{16+2*w}')
        for w in range(4): A(f'v_exp_f32 v{16+2*w}, v{16+2*w}')
        A('s_waitcnt lgkmcnt(0)')
        for e in range(4): A(f'v_mul_f32 v{32+e}, v{64+e}, v16')
        for w in range(1, 4):
            for e in range(4): A(f'v_fmac_f32 v{32+e}, v{64+4*w+e}, v{16+2*w}')
        self.embed(range(32, 36))
        A('buffer_store_dwordx4 v[32:35], v58, s[44:47], s56 offen sc1')
        A('s_cmp_lg_u32 s3, 12'); A('s_cbranch_scc1 L_noml')
        A('v_mul_f32 v14, v17, v16')
        for w in range(1, 4): A(f'v_fmac_f32 v14, v{17+2*w}, v{16+2*w}')
        A('s_mov_b64 exec, 0xffff')
        A('buffer_store_dwordx4 v[12:15], v58, s[44:47], s5 offen sc1')
        A('s_mov_b64 exec, -1')
        self.lab('L_noml')
        self.lds_inc(C_O)
        self.stamp(8)
        if self.stamps and not self.o.get('lite'):
            A('s_mul_i32 s70, s64, 100'); A('s_add_u32 s70, s70, s68'); A('s_mov_b32 s71, s69')
        A('s_branch L_fin')

    def proj_result(self):
        A = self.A
        for tt in (0, 4, 1, 5, 2, 6, 3, 7):
            A(f'v_mfma_f32_16x16x32_bf16 v[{24+4*tt}:{27+4*tt}], v[16:19], v[{96+4*tt}:{99+4*tt}], 0')
        A('s_nop 1')
        for k in range(4):
            d0 = 24 + 4 * k; d4 = 24 + 4 * (k + 4)
            A(f'v_cndmask_b32 v{d0+2}, v{d4+1}, v{d0}, s[14:15]')
            A(f'v_cndmask_b32 v{d0+3}, v{d0+1}, v{d4}, s[14:15]')
        A('s_mov_b64 exec, 0xffff')
        for k in range(4):
            d0 = 24 + 4 * k
            A(f'v_add_f32_dpp v{20+k}, v{d0+3}, v{d0+2} row_ror:8 row_mask:0xf bank_mask:0xf')

    def build(self):
        A = self.A; o = self.o; L = self.L
        L.append(HEADER.rstrip())
        L.append(f'; @launch grid=(256,1,1) block=(1024,1,1) lds={LDS_BYTES}')
        L.append(DOC)
        L.append('.amdgcn_target "amdgcn-amd-amdhsa--gfx950"')
        L.append('.text')
        L.append(f'.globl {NAME}_kernel')
        L.append('.p2align 8')
        L.append(f'.type {NAME}_kernel,@function')
        L.append(f'{NAME}_kernel:')
        A('s_cmp_ge_u32 s2, 256')
        A('s_cbranch_scc1 L_end')
        A('s_load_dwordx16 s[4:19], s[0:1], 0')
        A('s_load_dwordx8 s[20:27], s[0:1], 64')
        A('s_load_dwordx2 s[28:29], s[0:1], 96')
        if self.stamps:
            for i in range(70, 96): A(f's_mov_b32 s{i}, 0')
        self.stamp(0)
        A('v_lshrrev_b32 v5, 6, v0')
        A('v_mov_b32 v4, 0')
        A('v_readfirstlane_b32 s3, v5')
        A('v_and_b32 v0, 63, v0')
        A('v_lshrrev_b32 v8, 4, v0')
        A('v_and_b32 v7, 7, v0')
        A('v_lshlrev_b32 v10, 2, v7')
        A('v_and_b32 v12, 8, v0')
        A('v_lshlrev_b32 v14, 15, v12'); A('v_lshl_add_u32 v14, v8, 16, v14'); A('v_lshl_add_u32 v14, v10, 2, v14')
        A('v_and_b32 v2, 1, v0'); A('v_lshlrev_b32 v15, 6, v2'); A('v_lshl_add_u32 v15, v8, 4, v15')
        A('s_and_b32 s49, s2, 1'); A('s_lshl_b32 s49, s49, 9'); A('s_lshl_b32 s48, s3, 6'); A('s_add_u32 s49, s49, s48')
        A('s_bfe_u32 s52, s2, 0x60001')
        A('s_lshl_b32 s48, s49, 13'); A('s_lshl_b32 s50, s52, 7'); A('s_add_u32 s48, s48, s50')
        A('s_lshl_b32 s49, s49, 1'); A('v_add_u32 v15, s49, v15')
        A('s_mov_b32 s42, 0x800000'); A('s_mov_b32 s43, 0x20000')
        A('s_setprio 2')
        A('s_cmp_lt_u32 s2, 128')
        A('s_waitcnt lgkmcnt(0)')
        A('s_load_dword s54, s[28:29], 0')
        A('s_cselect_b32 s40, s10, s20'); A('s_cselect_b32 s41, s11, s21')
        A('s_cselect_b32 s66, s4, s14');  A('s_cselect_b32 s67, s5, s15')
        A('s_cselect_b32 s10, s12, s22'); A('s_cselect_b32 s11, s13, s23')
        A('s_cmp_ge_u32 s3, 8')
        A('s_cbranch_scc1 L_nowq')
        for j in range(8):
            A(f'buffer_load_dwordx4 v[{64+4*j}:{67+4*j}], v14, s[40:43], s48 offen nt')
            if j < 7: A('s_add_u32 s48, s48, 8192')
        A('global_load_dwordx4 v[16:19], v15, s[66:67]')
        self.lab('L_nowq')
        A('v_mov_b32 v6, 1')
        A('v_lshlrev_b32 v1, 4, v0')
        A('v_and_b32 v57, 3, v5')
        A('v_lshl_add_u32 v11, v57, 12, v1')
        A('v_and_b32 v9, 15, v0')
        A('v_lshrrev_b32 v13, 2, v9')
        A('v_lshlrev_b32 v2, 4, v2')
        A('v_lshl_add_u32 v2, v13, 8, v2')
        A('v_lshl_add_u32 v2, v8, 5, v2')
        A('v_and_b32 v13, 2, v0')
        A('v_lshl_add_u32 v2, v13, 10, v2')
        A(f'v_mul_u32_u24 v3, {QSTR}, v7')
        A('v_lshl_add_u32 v3, v8, 5, v3')
        A('v_lshl_add_u32 v3, v12, 1, v3')
        A('s_mov_b32 s30, 0x05040100')
        A('s_mov_b32 s31, 0x07060302')
        A('s_mov_b32 s100, 0xffff0000')
        A('s_mov_b32 s101, 0x3db504f3')
        A('s_lshr_b32 s20, s2, 7')
        A('s_lshr_b32 s22, s2, 6')
        A('s_and_b32 s23, s2, 63')
        A('s_bfe_u32 s48, s2, 0x20003'); A('s_xor_b32 s48, s48, 1'); A('s_lshr_b32 s49, s3, 2'); A('s_or_b32 s49, s49, s48')
        A('s_cselect_b32 s32, s6, s16'); A('s_cselect_b32 s33, s7, s17'); A('s_mov_b32 s34, 0x4000000'); A('s_mov_b32 s35, 0x20000')
        A('s_cselect_b32 s36, s8, s18'); A('s_cselect_b32 s37, s9, s19'); A('s_mov_b32 s38, 0x4000000'); A('s_mov_b32 s39, 0x20000')
        A('s_cselect_b32 s17, 0, 1')
        A('s_cmp_eq_u32 s48, 0'); A('s_cselect_b32 s16, 1, 0'); A('s_cselect_b32 s18, 8, 12')
        A('s_cmp_eq_u32 s17, 0'); A('s_cselect_b32 s18, s18, 4')
        A(f's_mul_i32 s48, s17, {L_QB - L_Q}'); A('v_add_u32 v3, s48, v3')
        A('s_mov_b32 s44, s28'); A('s_mov_b32 s45, s29'); A(f's_mov_b32 s46, {WS_BYTES}'); A('s_mov_b32 s47, 0x20000')
        A('s_and_b32 s4, s2, 7'); A('s_bfe_u32 s7, s2, 0x30004'); A('s_lshl_b32 s7, s7, 3'); A('s_add_u32 s4, s4, s7')
        A('s_bfe_u32 s7, s2, 0x10003')
        A('s_mov_b32 s14, 0x00ff00ff'); A('s_mov_b32 s15, 0x00ff00ff')
        A('s_lshl_b32 s48, s23, 7')
        A(f's_mul_i32 s6, s22, {32*IB}'); A('s_add_u32 s6, s6, s48'); A(f's_add_u32 s6, s6, {WS_I1}')
        A(f's_mul_i32 s5, s22, {4*IB}'); A('s_add_u32 s5, s5, s48'); A(f's_add_u32 s5, s5, {WS_ML}')
        A('s_lshr_b32 s0, s23, 5')
        A('s_lshl_b32 s19, s0, 3'); A('s_and_b32 s48, s23, 7'); A('s_add_u32 s19, s19, s48')
        A('s_add_u32 s1, s22, 3'); A('s_and_b32 s1, s1, 3'); A('s_lshl_b32 s1, s1, 8'); A('s_lshl_b32 s48, s0, 7'); A('s_add_u32 s1, s1, s48')
        A('s_lshr_b32 s48, s3, 2')
        A('s_add_u32 s49, s48, s22'); A('s_and_b32 s49, s49, 3'); A('s_lshl_b32 s49, s49, 22'); A('s_lshl_b32 s50, s23, 16'); A('s_add_u32 s49, s49, s50')
        A('s_lshl_b32 s50, s19, 16'); A(f's_add_u32 s50, s50, {15 << 20}')
        A('s_cmp_eq_u32 s17, 0'); A('s_cselect_b32 s96, s49, s50')
        A('s_lshl_b32 s48, s22, 24'); A('s_add_u32 s96, s96, s48')
        A('s_and_b32 s48, s3, 3'); A('s_lshl_b32 s48, s48, 12'); A('s_add_u32 s96, s96, s48')
        A('s_add_u32 s97, s96, 16384'); A('s_add_u32 s98, s96, 32768'); A('s_add_u32 s99, s96, 49152')
        A('s_cmp_ge_u32 s3, 8')
        A('s_cbranch_scc1 L_young0')
        A('s_lshr_b32 s56, s2, 5'); A(f's_mul_i32 s56, s56, {4*IB}'); A('s_and_b32 s48, s2, 1'); A('s_lshl_b32 s48, s48, 12'); A('s_add_u32 s56, s56, s48')
        A('s_and_b32 s48, s52, 15'); A('s_lshl_b32 s48, s48, 8'); A('s_add_u32 s56, s56, s48'); A(f's_add_u32 s56, s56, {WS_Q}')
        A(f'v_mul_u32_u24 v60, {IB}, v8'); A('v_lshl_add_u32 v60, v9, 4, v60')
        A('v_lshlrev_b32 v7, 3, v10'); A('v_lshl_add_u32 v7, v12, 1, v7')
        A('s_lshl_b32 s48, s3, 8'); A('v_add_u32 v7, s48, v7')
        A('v_mov_b32 v56, 0xffffff00')
        A('s_waitcnt lgkmcnt(0)')
        A('s_barrier')
        self.tag()
        A('s_waitcnt vmcnt(0)')
        for tt in range(8): self.perm_tile(64, tt, 96 + 4 * tt)
        A('s_nop 1')
        self.proj_result()
        A(f'ds_write_b128 v7, v[20:23] offset:{L_QS}')
        A('s_mov_b64 exec, 1')
        A(f'ds_add_rtn_u32 v5, v4, v6 offset:{C_Q}')
        A('s_mov_b64 exec, -1')
        A('s_waitcnt lgkmcnt(0)')
        A('v_readfirstlane_b32 s48, v5')
        self.stamp(1)
        A('s_cmp_lg_u32 s48, 7')
        A('s_cbranch_scc1 L_task')
        A('s_setprio 3')
        for k in range(2): A(f'ds_read_b128 v[{32+4*k}:{35+4*k}], v1 offset:{L_QS + 1024*k}')
        A('s_waitcnt lgkmcnt(0)')
        for e in range(4): A(f'v_add_f32 v{32+e}, v{32+e}, v{36+e}')
        self.xg_reduce('v_add_f32', [32, 33, 34, 35], [36, 37, 38, 39])
        self.embed(range(32, 36))
        A('s_mov_b64 exec, 0xffffffff')
        A('buffer_store_dwordx4 v[32:35], v60, s[44:47], s56 offen sc1')
        A('s_mov_b64 exec, -1')
        A('s_setprio 2')
        A('s_branch L_task')
        self.lab('L_young0')
        A('v_mov_b32 v5, 0xff800000')
        A('v_cmp_gt_u32 vcc, 16, v0')
        A('v_lshlrev_b32 v7, 2, v0')
        A('s_lshl_b32 s48, s3, 8')
        A('v_cndmask_b32 v5, v4, v5, vcc')
        A(f'ds_write_b32 v7, v5 offset:{L_MISC}')
        A('v_add_u32 v9, s48, v7')
        A(f'ds_write_b32 v9, v4 offset:{L_T - 2048}')
        A('s_waitcnt lgkmcnt(0)')
        A('s_barrier')
        self.tag()
        A('s_cmp_ge_u32 s3, 12')
        A('s_cbranch_scc1 L_dyn')
        self.lab('L_task')
        self.task_static()
        A('s_cmp_ge_u32 s3, 8')
        A('s_cbranch_scc1 L_c')
        A('s_cmp_lg_u32 s3, 0'); A('s_cbranch_scc1 L_wo')
        A('s_lshr_b32 s53, s2, 5'); A('s_lshl_b32 s53, s53, 8'); A(f's_add_u32 s53, s53, {WS_T}')
        A('s_lshl_b32 s57, s22, 8'); A('s_lshl_b32 s48, s0, 7'); A('s_add_u32 s57, s57, s48')
        A('s_sub_u32 s62, s1, 32')
        A('s_mov_b32 s52, 4')
        A('s_setprio 3')
        self.lds_wait(F_GO, 1, sleep=2)
        self.lab('L_deal')
        A('s_mov_b32 s51, 0x8000')
        self.lab('L_drt')
        A('s_mov_b32 s66, 1'); A('s_mov_b32 s67, 0')
        A('s_atomic_add_x2 s[66:67], s[28:29], s53 glc')
        A('s_waitcnt lgkmcnt(0)')
        A('s_cmp_eq_u32 s67, s55'); A('s_cbranch_scc1 L_dok')
        A('s_sub_u32 s51, s51, 1'); A('s_cbranch_scc0 L_drt')
        A('s_mov_b32 s66, 0x10000')
        self.lab('L_dok')
        A('s_cmp_lt_u32 s66, 64'); A('s_cselect_b32 s58, s57, s62'); A('s_add_u32 s58, s58, s66')
        A('s_add_u32 s58, s58, 1')
        A(f's_cmp_lt_u32 s66, {NTICK}'); A('s_cselect_b32 s58, s58, 0x10000')
        A(f's_cmp_ge_u32 s66, {NTICK + o["rk2"]}'); A('s_cselect_b32 s48, 1, 2')
        A(f's_cmp_ge_u32 s66, {NTICK + o["rk"]}'); A('s_cselect_b32 s48, s48, 3')
        A('v_mov_b32 v8, s58'); A('v_mov_b32 v9, s52'); A('v_mov_b32 v5, s48')
        A(f'ds_write_b32 v4, v5 offset:{WGL}')
        A(f'ds_write_b32 v9, v8 offset:{L_T}')
        A(f's_cmp_ge_u32 s66, {NTICK}'); A('s_cbranch_scc1 L_ddone')
        A('s_add_u32 s52, s52, 4')
        A('s_add_u32 s59, s52, 2'); A(f's_cmp_ge_u32 s66, {NTICK - o["eg"]}'); A('s_cselect_b32 s58, s59, s52')
        self.lds_wait(NEED, 's58', sleep=0)
        A('s_branch L_deal')
        self.lab('L_ddone')
        A('s_setprio 2')
        self.lab('L_wo')
        A('s_mov_b32 s40, s10'); A('s_mov_b32 s41, s11')
        A('s_lshr_b32 s50, s4, 4'); A('s_lshl_b32 s50, s50, 10')
        A('s_and_b32 s51, s4, 3'); A('s_lshl_b32 s51, s51, 5'); A('s_add_u32 s50, s50, s51')
        A('s_bfe_u32 s51, s4, 0x20002'); A('s_add_u32 s50, s50, s51')
        A('s_lshl_b32 s50, s50, 11'); A('s_lshl_b32 s51, s7, 10'); A('s_add_u32 s50, s50, s51'); A('s_lshl_b32 s51, s3, 7'); A('s_add_u32 s50, s50, s51')
        A('v_lshrrev_b32 v8, 4, v0'); A('v_and_b32 v61, 8, v0')
        A('v_lshlrev_b32 v58, 19, v8'); A('v_lshl_add_u32 v58, v10, 2, v58'); A('v_lshl_add_u32 v58, v61, 10, v58')
        A('v_mov_b32 v56, 0xffffff00')
        A('v_and_b32 v60, 1, v0'); A('v_lshlrev_b32 v60, 6, v60'); A('v_lshl_add_u32 v60, v8, 4, v60')
        A('v_bfe_u32 v59, v0, 2, 1'); A(f'v_mul_u32_u24 v59, {IB}, v59')
        A('v_and_b32 v7, 3, v0'); A('v_lshl_add_u32 v59, v7, 5, v59'); A('v_lshl_add_u32 v59, v61, 1, v59')
        A('s_lshl_b32 s53, s20, 5'); A('s_lshl_b32 s48, s7, 4'); A('s_add_u32 s53, s53, s48'); A('s_lshl_b32 s48, s3, 1'); A('s_add_u32 s53, s53, s48')
        A(f's_mul_i32 s53, s53, {IB}'); A('s_lshl_b32 s48, s4, 7'); A('s_add_u32 s53, s53, s48'); A(f's_add_u32 s53, s53, {WS_I2}')
        self.lds_wait(F_EX, 1, sleep=1, areg=57)
        A(f'ds_read_b32 v5, v4 offset:{WGL}'); A('s_waitcnt lgkmcnt(0)'); A('v_readfirstlane_b32 s52, v5')
        self.lds_wait(F_EX, 's52', sleep=1, areg=57)
        A('s_setprio 0')
        for j in range(8):
            A(f'buffer_load_dwordx4 v[{64+4*j}:{67+4*j}], v58, s[40:43], s50 offen nt')
            if j < 7: A(f's_add_u32 s50, s50, {16384 if j != 3 else (128 - 24) * 2048}')
        self.stamp(11)
        A('s_setprio 2')
        A('s_waitcnt vmcnt(0)')
        self.lds_inc(C_W)
        for tt in range(8): self.perm_tile(64, tt, 96 + 4 * tt)
        self.stamp(12)
        if o.get('notail'): A('s_branch L_fin')
        A('s_mov_b32 s49, 0x40000')
        self.lab('L_ow')
        A(f'ds_read_b32 v5, v4 offset:{F_O}')
        A(f'ds_read_b128 v[16:19], v60 offset:{L_O}')
        A('s_waitcnt lgkmcnt(0)')
        A('v_readfirstlane_b32 s48, v5')
        A('s_cmp_ge_u32 s48, 2'); A('s_cbranch_scc1 L_owd')
        A('s_sub_u32 s49, s49, 1')
        A('s_cbranch_scc0 L_ow')
        self.lab('L_owd')
        self.proj_result()
        self.embed(range(20, 24))
        A('buffer_store_dwordx4 v[20:23], v59, s[44:47], s53 offen sc1')
        A('s_mov_b64 exec, -1')
        self.stamp(13)
        A('s_branch L_fin')
        self.lab('L_dyn')
        self.task_dynamic()
        self.lab('L_c')
        A('s_cmp_eq_u32 s3, 11')
        A('s_cbranch_scc1 L_red')
        if o.get('notail'): A('s_branch L_fin')
        A('s_cmp_eq_u32 s3, 8')
        A('s_cbranch_scc1 L_fin')
        self.lab('L_comb')
        A('s_lshr_b32 s40, s4, 4'); A('s_lshl_b32 s41, s20, 2'); A('s_add_u32 s40, s40, s41')
        A('s_lshl_b32 s41, s40, 2'); A('s_and_b32 s42, s2, 1'); A('s_add_u32 s41, s41, s42'); A(f's_mul_i32 s41, s41, {IB}'); A(f's_add_u32 s41, s41, {WS_ML}')
        A('s_lshl_b32 s40, s40, 5'); A('s_and_b32 s42, s4, 15'); A('s_lshl_b32 s42, s42, 1'); A('s_add_u32 s40, s40, s42')
        A('s_and_b32 s42, s3, 1'); A('s_add_u32 s40, s40, s42'); A(f's_mul_i32 s40, s40, {IB}'); A(f's_add_u32 s40, s40, {WS_I1}')
        A('s_lshl_b32 s42, s42, 6'); A('v_lshrrev_b32 v8, 4, v0'); A('v_add_u32 v12, v10, v8'); A('v_lshlrev_b32 v12, 1, v12'); A('v_add_u32 v12, s42, v12')
        A('s_add_u32 s42, s41, 4096'); A('s_add_u32 s43, s40, 4096')
        A('v_mov_b32 v15, 0xff'); A(f'v_mov_b32 v14, {LOG2E}')
        M = [96 + 4 * k for k in range(8)]
        for k in range(8):
            A(f'v_mov_b32 v{M[k]}, {NEGBIG}'); A(f'v_mov_b32 v{M[k]+2}, 0')
        for x in range(64, 96): A(f'v_mov_b32 v{x}, 0')
        if o.get('cwarm'):
            nwm = self.newlab('NWM')
            A('s_cmp_lg_u32 s20, 0'); A(f's_cbranch_scc1 {nwm}')
            for k in range(8): A(f'buffer_load_dwordx4 v[{32+4*(k&3)}:{35+4*(k&3)}], v1, s[44:47], {"s40" if k < 4 else "s43"} offen offset:{1024*(k&3)} sc1')
            A('s_waitcnt vmcnt(0)')
            self.lab(nwm)
        A('s_cmp_eq_u32 s20, 0'); A(f's_cselect_b32 s52, {o.get("cw", 8)}, 0')
        self.lds_wait(C_O, 4, sleep=1)
        if o.get('tl'):
            A(f'ds_read_b32 v5, v4 offset:{WGL}'); A('s_waitcnt lgkmcnt(0)'); A('v_readfirstlane_b32 s48, v5')
            A('s_lshl_b32 s48, s48, 2'); A(f's_lshr_b32 s48, {hex(o["tl"])}, s48'); A('s_and_b32 s48, s48, 15'); A('s_min_u32 s52, s52, s48')
        self.lds_wait(C_W, 's52', sleep=1)
        self.stamp(11)
        self.mgather([(96, 's41', 's42', True), (64, 's40', 's43', False)], few=True)
        self.stamp(12)
        A(f'v_max3_f32 v32, v{M[0]}, v{M[1]}, v{M[2]}'); A(f'v_max3_f32 v33, v{M[3]}, v{M[4]}, v{M[5]}'); A(f'v_max3_f32 v32, v32, v{M[6]}, v{M[7]}'); A('v_max_f32 v32, v32, v33')
        self.ror_reduce('v_max_f32', [32], 8)
        self.xg_reduce('v_max_f32', [32], [33])
        A('v_mul_f32 v32, v14, v32')
        for k in range(8): A(f'v_fma_f32 v{16+k}, v{M[k]}, v14, -v32')
        for k in range(8): A(f'v_exp_f32 v{16+k}, v{16+k}')
        A(f'v_mul_f32 v36, v16, v{M[0]+2}')
        for k in range(1, 8): A(f'v_fmac_f32 v36, v{16+k}, v{M[k]+2}')
        fm = [f'v_mul_f32 v{32+e}, v16, v{64+e}' for e in range(4)] + [f'v_fmac_f32 v{32+e}, v{16+k}, v{64+4*k+e}' for k in range(1, 8) for e in range(4)]
        def F(n):
            for _ in range(n): A(fm.pop(0))
        F(2); A('v_add_f32_dpp v36, v36, v36 row_ror:8 row_mask:0xf bank_mask:0xf')
        for sw in ('v_permlane16_swap_b32', 'v_permlane32_swap_b32'):
            A('v_mov_b32 v37, v36'); F(2); A(f'{sw} v36, v37'); F(2); A('v_add_f32 v36, v36, v37')
        A('v_rcp_f32 v37, v36'); F(2)
        A('v_fma_f32 v38, -v36, v37, 1.0'); A('v_fma_f32 v37, v38, v37, v37')
        F(len(fm))
        self.quad_reduce(32)
        A('v_mul_f32 v32, v32, v37')
        A('v_cvt_pk_bf16_f32 v32, v32, v32')
        A('s_mov_b64 exec, s[14:15]')
        A(f'ds_write_b16 v12, v32 offset:{L_O}')
        A('s_mov_b64 exec, 1')
        A(f'ds_add_u32 v4, v6 offset:{F_O}')
        A('s_mov_b64 exec, -1')
        self.stamp(13)
        A('s_branch L_fin')
        self.lab('L_red')
        if o.get('notail'):
            A('s_cmp_lg_u32 s2, 0'); A('s_cbranch_scc1 L_fin')
            self.lds_wait(C_O, 4)
            A('v_mov_b32 v13, s55'); A('s_mov_b64 exec, 1'); A('global_store_dword v4, v13, s[28:29]'); A('s_mov_b64 exec, -1')
            A('s_branch L_fin')
        A('s_bfe_u32 s40, s2, 0x20003'); A('s_cmp_lg_u32 s40, 0')
        A('s_cbranch_scc1 L_fin')
        A('s_lshr_b32 s40, s2, 5'); A('s_lshl_b32 s40, s40, 3'); A('s_and_b32 s41, s2, 7'); A('s_add_u32 s40, s40, s41')
        A('s_lshl_b32 s42, s40, 6'); A('v_lshrrev_b32 v8, 4, v0'); A('v_add_u32 v12, v10, v8'); A('v_lshlrev_b32 v12, 1, v12'); A('v_add_u32 v12, s42, v12')
        A(f's_mul_i32 s40, s40, {IB}'); A(f's_add_u32 s40, s40, {WS_I2}')
        A('v_mov_b32 v13, s55'); A('v_mov_b32 v15, 0xff'); A('s_add_u32 s43, s40, 4096')
        if o.get('rw', 1) == 0: self.lds_wait(C_O, 4, sleep=2)
        if o.get('rw', 1) != 2:
            for k in range(8): A(f'buffer_load_dwordx4 v[{64+4*k}:{67+4*k}], v1, s[44:47], {"s40" if k < 4 else "s43"} offen offset:{1024*(k&3)} sc1')
            A('s_waitcnt vmcnt(0)')
        self.lds_wait(C_W, 8, sleep=1)
        self.lds_wait(F_O, 2, sleep=1)
        self.stamp(11)
        self.mgather([(64, 's40', 's43', False)])
        self.stamp(12)
        for k in range(4):
            for e in (0, 2): A(f'v_pk_add_f32 v[{40+4*k+e}:{41+4*k+e}], v[{64+4*k+e}:{65+4*k+e}], v[{80+4*k+e}:{81+4*k+e}]')
        for k in range(2):
            for e in (0, 2): A(f'v_pk_add_f32 v[{40+4*k+e}:{41+4*k+e}], v[{40+4*k+e}:{41+4*k+e}], v[{48+4*k+e}:{49+4*k+e}]')
        for e in (0, 2): A(f'v_pk_add_f32 v[{40+e}:{41+e}], v[{40+e}:{41+e}], v[{44+e}:{45+e}]')
        self.quad_reduce(40)
        A('v_cvt_pk_bf16_f32 v32, v40, v40')
        A('s_mov_b64 exec, s[14:15]')
        A('global_store_short v12, v32, s[24:25]')
        A('s_cmp_lg_u32 s2, 0')
        A('s_cbranch_scc1 L_nogen')
        A('s_mov_b64 exec, 1')
        A('global_store_dword v4, v13, s[28:29]')
        self.lab('L_nogen')
        A('s_mov_b64 exec, -1')
        self.stamp(13)
        if not o.get('lite'): self.lab('L_fin')
        if self.stamps:
            A('s_waitcnt vmcnt(0) lgkmcnt(0)')
            A('s_getreg_b32 s48, hwreg(HW_REG_XCC_ID)')
            A('s_getreg_b32 s49, hwreg(HW_REG_HW_ID)')
            for i in range(28): A(f'v_writelane_b32 v20, s{68+i}, {i}')
            A('v_writelane_b32 v20, s48, 28')
            A('v_writelane_b32 v20, s49, 29')
            A('s_lshl_b32 s48, s2, 4'); A('s_add_u32 s48, s48, s3'); A('s_lshl_b32 s48, s48, 7'); A(f's_add_u32 s48, s48, {STAMP_OFF}')
            A('v_lshlrev_b32 v7, 2, v0'); A('v_add_u32 v7, s48, v7')
            A('s_mov_b64 exec, 0xffffffff')
            A('global_store_dword v7, v20, s[28:29]')
        if o.get('lite'): self.lab('L_fin')
        self.lab('L_end')
        A('s_endpgm')
        L.append('.section .rodata,"a"')
        L.append('.p2align 6')
        L.append(f'.amdhsa_kernel {NAME}_kernel')
        L.append('  .amdhsa_next_free_vgpr 128')
        L.append('  .amdhsa_next_free_sgpr 102')
        L.append('  .amdhsa_accum_offset 128')
        L.append('  .amdhsa_group_segment_fixed_size 0')
        L.append('  .amdhsa_kernarg_size 104')
        L.append('  .amdhsa_user_sgpr_count 2')
        L.append('  .amdhsa_user_sgpr_kernarg_segment_ptr 1')
        L.append('  .amdhsa_system_sgpr_workgroup_id_x 1')
        L.append('.end_amdhsa_kernel')
        return '\n'.join(L) + '\n'

if __name__ == '__main__':
    out = sys.argv[1]
    stamps = 'stamps' in sys.argv[2:]
    opts = {}
    for a in sys.argv[2:]:
        if '=' in a:
            k, v = a.split('='); opts[k] = int(v, 0)
    open(out, 'w').write(Gen(stamps, opts).build())
```

```python
import sys
NAME = 'concat_heads__gqa_block_cached__sliding_block_cached__decode'
HEADER = open('cdna_kernels/' + NAME + '.s.ref').read().split('; Override launch')[0]

IB = 8448
WS_T = 0x1000
WS_Q = 0x4000
WS_ML = 0x50000
WS_I1 = 0xA0000
WS_I2 = 0x2C0000
WS_BYTES = 0x400000
STAMP_OFF = 0x10000000
L_CH, L_CHB, L_QS, L_Q, L_QB, L_MISC = 0, 16384, 32768, 34816, 37120, 39424
QSTR = 272
L_MA, L_LA = L_MISC, L_MISC + 64
L_C = L_MISC + 128
C_Q, C_M, C_O, C_L, F_Q, F_GO, F_O, WGL, C_D, C_W, NEED, C_WL, F_CH = [L_C + 4 * i for i in range(13)]
F_EX = L_C + 64
L_O = L_MISC + 256
L_M4 = L_MISC + 384
L_T = L_MISC + 768
L_KD = L_T + 2048
LDS_BYTES = L_KD + 4 * 3 * 4096
NTICK = 160
DB = 96
C_DB = L_C + 120
LOG2E = '0x3fb8aa3b'
NEGBIG = '0xf149f2ca'

DOC = '''; ---------------------------------------------------------------------------------------------
;  waves 8-11 : a static 64-key task; afterwards combine (9,10) and final reduce (11) roles
;  Hand-offs between workgroups go through d_ws with write-through stores; every 16-byte granule carries the
; ---------------------------------------------------------------------------------------------'''

class Gen:
    def __init__(self, stamps=False, opts=None):
        self.L = []
        self.stamps = stamps
        self.nlab = 0
        self.o = dict(rk=14, rk2=24, eg=64, hn=60, go=3, cw=8)
        if opts: self.o.update(opts)
    def A(self, s): self.L.append('    ' + s)
    def C(self, s): self.L.append('    ; ' + s)
    def lab(self, s): self.L.append(s + ':')
    def newlab(self, p='L'):
        self.nlab += 1
        return f'{p}_{self.nlab}'
    def stamp(self, i):
        if self.o.get('lite') and i not in (0, 13): return
        if self.stamps: self.A(f's_memrealtime s[{68+2*i}:{69+2*i}]')

    def lds_wait(self, addr, val, sleep=1, areg=4):
        A = self.A
        l = self.newlab('W'); d = self.newlab('D')
        A('s_mov_b32 s49, 0x40000')
        self.lab(l)
        A(f'ds_read_b32 v5, v{areg} offset:{addr}')
        A('s_waitcnt lgkmcnt(0)')
        A('v_readfirstlane_b32 s48, v5')
        A(f's_cmp_ge_u32 s48, {val}')
        A(f's_cbranch_scc1 {d}')
        if sleep: A(f's_sleep {sleep}')
        A('s_sub_u32 s49, s49, 1')
        A(f's_cbranch_scc0 {l}')
        self.lab(d)
    def lds_inc(self, *addrs, areg=4):
        A = self.A
        A('s_mov_b64 exec, 1')
        for a in addrs: A(f'ds_add_u32 v{areg}, v6 offset:{a}')
        A('s_mov_b64 exec, -1')
    def tag(self):
        A = self.A
        A('s_and_b32 s55, s54, 0x7f7f7f7f'); A('s_add_u32 s55, s55, 0x35172b4d'); A('s_and_b32 s8, s54, 0x80808080'); A('s_xor_b32 s55, s55, s8')
        A('s_and_b32 s8, s55, 0xff'); A('s_bfe_u32 s9, s55, 0x80008'); A('s_bfe_u32 s12, s55, 0x80010'); A('s_lshr_b32 s13, s55, 24')
    TB = ['s8', 's9', 's12', 's13']
    def embed(self, regs):
        for r in regs: self.A(f'v_and_or_b32 v{r}, v{r}, v56, {self.TB[r & 3]}')
    def perm_tile(self, src, tt, dst):
        i, h = tt >> 1, tt & 1
        sel = 's31' if h else 's30'
        for jp in range(4):
            self.A(f'v_perm_b32 v{dst+jp}, v{src+4*(2*jp+1)+i}, v{src+4*(2*jp)+i}, {sel}')
    def xg_reduce(self, op, regs, tmps):
        A = self.A
        for sw in ('v_permlane16_swap_b32', 'v_permlane32_swap_b32'):
            for r, t in zip(regs, tmps): A(f'v_mov_b32 v{t}, v{r}')
            A('s_nop 1')
            for r, t in zip(regs, tmps): A(f'{sw} v{r}, v{t}')
            A('s_nop 1')
            for r, t in zip(regs, tmps): A(f'{op} v{r}, v{r}, v{t}')
    def ror_reduce(self, op, regs, n):
        A = self.A
        A('s_nop 1')
        for r in regs: A(f'{op}_dpp v{r}, v{r}, v{r} row_ror:{n} row_mask:0xf bank_mask:0xf')
    def quad_reduce(self, a):
        A = self.A
        A('s_nop 1')
        A(f'v_permlane16_swap_b32 v{a}, v{a+1}'); A(f'v_permlane16_swap_b32 v{a+2}, v{a+3}')
        A('s_nop 0')
        A(f'v_add_f32 v{a}, v{a}, v{a+1}'); A(f'v_add_f32 v{a+2}, v{a+2}, v{a+3}')
        A('s_nop 1')
        A(f'v_permlane32_swap_b32 v{a}, v{a+2}')
        A('s_nop 1')
        A(f'v_add_f32 v{a}, v{a}, v{a+2}')
        A('s_nop 1')
        A(f'v_add_f32_dpp v{a}, v{a}, v{a} row_ror:8 row_mask:0xf bank_mask:0xf')

    MK = [50, 52, 56, 58, 60, 62, 64, 66]
    def mgather(self, sets, few=False):
        A = self.A
        l = self.newlab('MG'); d = self.newlab('MGD'); li = self.newlab('MI')
        A('s_setprio 3')
        A('s_mov_b32 s49, 0x20000')
        if few:
            A('s_mov_b64 s[50:51], -1'); A('s_mov_b64 s[52:53], -1')
            for k in range(2, 8): A(f's_mov_b64 s[{self.MK[k]}:{self.MK[k]+1}], 0')
            A('s_cmp_lg_u32 s20, 0'); A(f's_cbranch_scc1 {li}')
        def loads(k):
            for dst, lo, hi, tg in sets:
                A(f'buffer_load_dwordx4 v[{dst+4*k}:{dst+4*k+3}], v1, s[44:47], {lo if k < 4 else hi} offen offset:{1024*(k&3)} sc1')
        def check(k):
            for dst, lo, hi, tg in sets:
                r = dst + 4 * k
                if tg:
                    A(f'v_xor_b32 v7, s55, v{r+1}'); A(f'v_bitop3_b32 v7, s55, v7, v{r+3} bitop3:0xde')
                else:
                    for e in range(4): A(f'v_xor_b32 v{r+e}, {self.TB[e]}, v{r+e}')
                    A(f'v_or3_b32 v5, v{r}, v{r+1}, v{r+2}')
                    A(f'v_bitop3_b32 v5, v5, v15, v{r+3} bitop3:0xc8')
            if len(sets) == 2: A('v_or_b32 v5, v5, v7')
            m = self.MK[k]
            A(f'v_cmp_ne_u32 s[{m}:{m+1}], 0, v{7 if (len(sets) == 1 and sets[0][3]) else 5}')
        for k in range(8): loads(k)
        n = len(sets)
        for k in range(8):
            A(f's_waitcnt vmcnt({(7-k)*n})')
            check(k)
        self.lab(l)
        A('s_or_b64 vcc, s[50:51], s[52:53]')
        for k in range(2, 8): A(f's_or_b64 vcc, vcc, s[{self.MK[k]}:{self.MK[k]+1}]')
        A(f's_cbranch_scc0 {d}')
        self.lab(li)
        for k in range(8):
            sk = self.newlab('MS'); m = self.MK[k]
            A(f's_wqm_b64 exec, s[{m}:{m+1}]')
            A(f's_cbranch_execz {sk}')
            loads(k)
            self.lab(sk)
        A('s_waitcnt vmcnt(0)')
        for k in range(8):
            sk = self.newlab('MC'); m = self.MK[k]
            A(f's_wqm_b64 exec, s[{m}:{m+1}]')
            A(f's_cbranch_execz {sk}')
            check(k)
            self.lab(sk)
        A('s_mov_b64 exec, -1')
        A('s_sub_u32 s49, s49, 1')
        A(f's_cbranch_scc0 {l}')
        self.lab(d)

    def q_gather(self):
        A = self.A
        A('s_and_b32 s48, s3, 1')
        A('v_lshrrev_b32 v8, 5, v0'); A('v_and_b32 v5, 31, v0')
        A(f'v_mul_u32_u24 v8, {QSTR}, v8'); A('v_lshl_add_u32 v8, v5, 3, v8')
        A(f's_mul_i32 s40, s48, {L_QB - L_Q}'); A('v_add_u32 v8, s40, v8')
        A(f's_mul_i32 s40, s48, {DB}'); A('v_mov_b32 v9, s40')
        A('v_mov_b32 v15, 0xff')
        A('s_lshl_b32 s40, s48, 2'); A('s_add_u32 s40, s40, s22'); A('s_lshl_b32 s40, s40, 2'); A('s_and_b32 s41, s2, 1'); A('s_add_u32 s40, s40, s41')
        A(f's_mul_i32 s40, s40, {IB}'); A(f's_add_u32 s40, s40, {WS_Q}'); A('s_add_u32 s41, s40, 4096')
        self.mgather([(32, 's40', 's41', False)])
        for k in range(4):
            r = 32 + 4 * k
            for e in range(4): A(f'v_add_f32 v{r+e}, v{r+e}, v{r+16+e}')
            A(f'v_cvt_pk_bf16_f32 v{r}, v{r}, v{r+1}'); A(f'v_cvt_pk_bf16_f32 v{r+1}, v{r+2}, v{r+3}')
            A(f'ds_write_b64 v8, v[{r}:{r+1}] offset:{L_Q + 2*QSTR*k}')
        A(f'ds_write_b32 v9, v6 offset:{F_Q}')
        A('s_setprio 2')

    def v_issue(self, sig):
        self.A('s_setprio 1')
        for i in range(4):
            if sig and i == self.o['go']: self.A(f'ds_write_b32 v4, v6 offset:{F_GO}')
            for T in range(2):
                for nn in range(2):
                    r = 64 + 32 * T + 4 * (2 * i + nn)
                    self.A(f'buffer_load_dwordx4 v[{r}:{r+3}], v1, s[36:39], s{96+i} offen offset:{2048*T+1024*nn} nt')
                    self.A('s_nop 0')
        self.A('s_setprio 2')
    def read_q(self):
        for hf in range(2):
            self.A(f'ds_read_b128 v[{16+4*hf}:{19+4*hf}], v3 offset:{L_Q + 128*hf}')
        self.A('s_waitcnt lgkmcnt(0)')
    def qk(self, N, D0, R):
        A = self.A
        for hf in range(2):
            for i in range(N):
                r = 64 + 8 * i + 4 * hf; d = D0 + 4 * i
                c = '0' if hf == 0 else f'v[{d}:{d+3}]'
                A(f'v_mfma_f32_16x16x32_bf16 v[{d}:{d+3}], v[{r}:{r+3}], v[{16+4*hf}:{19+4*hf}], {c}')
        A(f's_nop {max(0, 8 - N)}')
        for i in range(N):
            d = D0 + 4 * i
            A(f'v_cndmask_b32 v{d}, v{d+3}, v{d}, s[14:15]')
            A(f'v_cndmask_b32 v{d+1}, v{d+1}, v{d+2}, s[14:15]')
        if N < 3: A('s_nop 1')
        for i in range(N):
            d = D0 + 4 * i
            A(f'v_add_f32_dpp v{R[i]}, v{d+1}, v{d} row_ror:8 row_mask:0xf bank_mask:0xf')
    def round_chain(self, S, T):
        A = self.A
        n = len(S) // 2
        for rep in range(2):
            for k in range(n): A(f'v_cvt_pk_bf16_f32 v{T+k}, v{S[2*k]}, v{S[2*k+1]}')
            for k in range(n):
                A(f'v_lshlrev_b32 v{S[2*k]}, 16, v{T+k}')
                A(f'v_and_b32 v{S[2*k+1]}, s100, v{T+k}')
            if rep == 0:
                for x in S: A(f'v_mul_f32 v{x}, s101, v{x}')

    def task_static(self):
        A = self.A
        S = list(range(24, 32))
        for i in range(4):
            for nn in range(2):
                for hf in range(2):
                    r = 64 + 16 * i + 8 * nn + 4 * hf
                    A(f'buffer_load_dwordx4 v[{r}:{r+3}], v2, s[32:35], s{96+i} offen offset:{1024*nn+128*hf} nt')
                    A('s_nop 0')
        self.stamp(2)
        A(f's_sub_u32 s48, s3, {self.o.get("qw", 4)}'); A('s_cmp_gt_u32 s48, s16'); A('s_cbranch_scc1 L_nq')
        if 'qd' in self.o: A(f's_waitcnt vmcnt({self.o["qd"]})')
        self.q_gather()
        self.stamp(9)
        self.lab('L_nq')
        A(f's_mul_i32 s48, s17, {DB}'); A('v_mov_b32 v15, s48')
        A('s_lshl_b32 s48, s17, 5'); A('v_add_u32 v13, s48, v10')
        self.lds_wait(F_Q, 1, areg=15)
        self.read_q()
        A('s_waitcnt vmcnt(0)')
        self.stamp(3)
        self.qk(8, 32, S)
        self.round_chain(S, 32)
        A('v_max3_f32 v8, v24, v25, v26'); A('v_max3_f32 v9, v27, v28, v29'); A('v_max3_f32 v8, v8, v30, v31'); A('v_max_f32 v8, v8, v9')
        self.ror_reduce('v_max_f32', [8], 8)
        self.xg_reduce('v_max_f32', [8], [9])
        A('s_mov_b64 exec, 0xff')
        A(f'ds_max_f32 v13, v8 offset:{L_MA}')
        A('s_mov_b64 exec, 1')
        A(f'ds_add_u32 v15, v6 offset:{C_M}')
        A('s_mov_b64 exec, -1')
        self.stamp(4)
        A('s_cmp_ge_u32 s3, 8'); A('s_cbranch_scc1 L_young')
        self.v_issue(False)
        self.stamp(10)
        self.lab('L_young')
        self.lds_wait(C_M, 's18', areg=15)
        self.stamp(5)
        A(f'ds_read_b32 v12, v13 offset:{L_MA}')
        A('s_waitcnt lgkmcnt(0)')
        for x in S: A(f'v_sub_f32 v{x}, v{x}, v12')
        for x in S: A(f'v_mul_f32 v{x}, {LOG2E}, v{x}')
        for x in S: A(f'v_exp_f32 v{x}, v{x}')
        A('s_nop 0')
        for k in range(4): A(f'v_cvt_pk_bf16_f32 v{32+k}, v{S[2*k]}, v{S[2*k+1]}')
        A('v_add_f32 v14, v24, v25'); A('v_add_f32 v9, v26, v27')
        A('v_add_f32 v14, v14, v28'); A('v_add_f32 v9, v9, v29'); A('v_add_f32 v14, v14, v30'); A('v_add_f32 v9, v9, v31')
        A('v_add_f32 v14, v14, v9')
        self.ror_reduce('v_add_f32', [14], 8)
        self.xg_reduce('v_add_f32', [14], [9])
        A('s_mov_b64 exec, 0xff')
        A(f'ds_add_f32 v13, v14 offset:{L_LA}')
        A('s_mov_b64 exec, 1')
        A(f'ds_add_u32 v15, v6 offset:{C_L}')
        A('s_mov_b64 exec, -1')
        for k in range(4): A(f'v_cndmask_b32 v{16+k}, 0, v{32+k}, s[14:15]')
        for k in range(4): A(f'v_cndmask_b32 v{28+k}, v{32+k}, 0, s[14:15]')
        for k in range(4): A(f'v_mov_b32_dpp v{24+k}, v{16+k} row_ror:8 row_mask:0xf bank_mask:0xf')
        for k in range(4): A(f'v_mov_b32_dpp v{20+k}, v{28+k} row_ror:8 row_mask:0xf bank_mask:0xf')
        A('v_lshrrev_b32 v57, 10, v11')
        for x in range(32, 48): A(f'v_mov_b32 v{x}, 0')
        A('s_lshr_b32 s52, s3, 2'); A('s_sub_u32 s52, s52, s16'); A('s_max_i32 s52, s52, 0')
        A('s_cmp_lt_u32 s3, 8'); A('s_cbranch_scc1 L_old')
        self.v_issue(True)
        self.stamp(10)
        self.lab('L_old')
        A('s_cmp_eq_u32 s52, 0'); A('s_cbranch_scc1 L_noch')
        self.lds_wait(F_CH, 's52', areg=57)
        for q in range(4): A(f'ds_read_b128 v[{32+4*q}:{35+4*q}], v11 offset:{L_CH + 1024*q}')
        self.lab('L_noch')
        self.stamp(6)
        A('s_waitcnt lgkmcnt(0)')
        tq = [48, 52]
        for T in range(2):
            A(f's_waitcnt vmcnt({2 if T == 0 else 0})')
            src = 64 + 32 * T
            self.perm_tile(src, 0, tq[0])
            for tt in range(8):
                if tt < 7: self.perm_tile(src, tt + 1, tq[(tt + 1) & 1])
                else: A('s_nop 1')
                q = tq[tt & 1]; d = 32 + 4 * (tt & 3); p = (16 if tt < 4 else 24) + 4 * T
                A(f'v_mfma_f32_16x16x32_bf16 v[{d}:{d+3}], v[{q}:{q+3}], v[{p}:{p+3}], v[{d}:{d+3}]')
        self.stamp(7)
        A('s_nop 5')
        A('s_cmp_lg_u32 s17, 0'); A('s_cbranch_scc1 L_wfin')
        for q in range(4): A(f'ds_write_b128 v11, v[{32+4*q}:{35+4*q}] offset:{L_CH + 1024*q}')
        self.lds_inc(F_CH, areg=57)
        A('s_branch L_tdone')
        self.lab('L_wfin')
        for q in range(4): A(f'ds_write_b128 v11, v[{32+4*q}:{35+4*q}] offset:{L_CHB + 1024*q}')
        self.lds_inc(C_DB)
        A('v_lshl_add_u32 v59, v57, 8, v1')
        A('v_lshrrev_b32 v58, 3, v0'); A(f'v_mul_u32_u24 v58, {IB}, v58'); A('v_lshl_add_u32 v58, v10, 2, v58')
        A('v_mov_b32 v56, 0xffffff00')
        A('s_sub_u32 s50, s19, s23'); A('s_lshl_b32 s50, s50, 7')
        A('s_add_u32 s51, s50, s5'); A(f's_add_u32 s51, s51, {16*IB}')
        A('s_add_u32 s50, s50, s6'); A(f's_mul_i32 s52, s3, {8*IB}'); A('s_add_u32 s50, s50, s52'); A(f's_add_u32 s50, s50, {128*IB}')
        self.lds_wait(C_DB, 4)
        for w in range(4): A(f'ds_read_b128 v[{64+4*w}:{67+4*w}], v59 offset:{L_CHB + 4096*w}')
        A(f'ds_read_b32 v14, v13 offset:{L_LA}')
        A('s_waitcnt lgkmcnt(0)')
        A('v_mov_b32 v13, s55'); A('v_mov_b32 v15, s55')
        for e in range(4): A(f'v_add_f32 v{32+e}, v{64+e}, v{68+e}')
        for e in range(4): A(f'v_add_f32 v{36+e}, v{72+e}, v{76+e}')
        for e in range(4): A(f'v_add_f32 v{32+e}, v{32+e}, v{36+e}')
        self.embed(range(32, 36))
        A('s_setprio 3')
        A('buffer_store_dwordx4 v[32:35], v58, s[44:47], s50 offen sc1')
        A('s_cmp_lg_u32 s3, 1'); A('s_cbranch_scc1 L_wnm')
        A('s_mov_b64 exec, 0xffff')
        A('buffer_store_dwordx4 v[12:15], v58, s[44:47], s51 offen sc1')
        A('s_mov_b64 exec, -1')
        self.lab('L_wnm')
        A('s_setprio 2')
        self.lab('L_tdone')

    def wait3(self, a, b, c):
        A = self.A
        d = self.newlab('WT')
        A(f's_waitcnt vmcnt({a})')
        A('s_cmp_eq_u32 s61, 0'); A(f's_cbranch_scc1 {d}')
        A(f's_waitcnt vmcnt({b})')
        A('s_cmp_eq_u32 s61, 1'); A(f's_cbranch_scc1 {d}')
        A(f's_waitcnt vmcnt({c})')
        self.lab(d)

    def task_dynamic(self):
        A = self.A
        A('s_sub_u32 s52, s3, 12')
        A('s_cmp_lg_u32 s52, 0'); A('s_cbranch_scc1 L_nopre')
        A('s_and_b32 s48, s23, 31'); A('s_add_u32 s48, s48, s1'); A('s_add_u32 s48, s48, 1')
        A('v_mov_b32 v8, s48')
        A(f'ds_write_b32 v4, v8 offset:{L_T}')
        self.lab('L_nopre')
        A(f's_mul_i32 s27, s52, {3*4096}'); A(f's_add_u32 s27, s27, {L_KD}')
        A('v_add_u32 v63, s27, v1')
        for x in range(32, 48): A(f'v_mov_b32 v{x}, 0')
        A(f'v_mov_b32 v12, {NEGBIG}'); A('v_mov_b32 v14, 0')
        A('v_lshrrev_b32 v57, 10, v11')
        A('v_mov_b32 v56, 0xffffff00')
        A('v_lshrrev_b32 v58, 3, v0'); A(f'v_mul_u32_u24 v58, {IB}, v58'); A('v_lshl_add_u32 v58, v10, 2, v58')
        A('v_lshl_add_u32 v59, v57, 8, v1')
        A('v_lshlrev_b32 v61, 3, v10'); A('v_lshl_add_u32 v60, v57, 1, v61')
        A('v_mov_b32 v62, 0')
        A(f'v_mov_b32 v7, {LOG2E}')
        A('s_lshl_b32 s26, s22, 24'); A('s_lshl_b32 s48, s52, 12'); A('s_add_u32 s26, s26, s48'); A('s_sub_u32 s26, s26, 16384')
        A(f's_mul_i32 s56, s52, {8*IB}')
        A('v_mov_b32 v13, s55'); A('v_mov_b32 v15, s55')
        A('s_and_b32 s48, s23, 31'); A('s_or_b32 s48, s48, s52'); A('s_cbranch_scc1 L_ni')
        A('v_mov_b32 v8, 32'); A('v_mov_b32 v9, s55')
        A('s_lshr_b32 s48, s2, 5'); A('s_lshl_b32 s48, s48, 8'); A(f's_add_u32 s48, s48, {WS_T}')
        A('s_mov_b64 exec, 1'); A('s_setprio 3')
        A('buffer_store_dwordx2 v[8:9], v4, s[44:47], s48 offen sc1')
        A('s_setprio 2'); A('s_mov_b64 exec, -1')
        self.lab('L_ni')
        A('s_sub_u32 s57, 3, s16')
        A('s_add_u32 s56, s56, s6')
        self.stamp(2)
        A('s_mov_b32 s21, 0'); A('s_mov_b32 s64, 0'); A('s_mov_b32 s65, 0'); A('s_mov_b32 s60, 0'); A('s_mov_b32 s59, 0')
        self.lab('L_dl')
        for b in range(3):
            pr, ex, dr, nx, tk, no, pe, nf = [self.newlab(x) for x in ('PR', 'EX', 'DR', 'NX', 'TK', 'NO', 'PE', 'NF')]
            A('s_cmp_lg_u32 s65, 0'); A(f's_cbranch_scc1 {dr}')
            A(f'ds_read_b32 v5, v62 offset:{L_T}')
            A('s_waitcnt lgkmcnt(0)')
            A('v_readfirstlane_b32 s48, v5')
            A('s_cmp_eq_u32 s48, 0'); A(f's_cbranch_scc1 {no}')
            self.lab(tk)
            A('v_add_u32 v62, 4, v62')
            A('s_sub_u32 s49, s48, 1')
            A('s_cmp_ge_u32 s49, 1024'); A(f's_cbranch_scc1 {ex}')
            A('s_lshl_b32 s50, s48, 14'); A('s_add_u32 s50, s50, s26')
            A(f's_add_u32 s48, s27, {4096*b}')
            A('s_mov_b64 exec, 1'); A(f'ds_max_u32 v4, v62 offset:{NEED}'); A('s_mov_b64 exec, -1')
            for j, (imm, adj) in enumerate(((0, 896), (128, 128), (1024, 896), (1152, 0))):
                A('s_mov_b32 m0, s48'); A(f's_add_u32 s48, s48, {adj}')
                A(f'buffer_load_dwordx4 v2, s[32:35], s50 offen offset:{imm} nt lds')
            A('v_add_u32 v5, 2, v62')
            for j in range(4):
                r = 80 + 16 * b + 4 * j
                if j == 3:
                    A('s_mov_b64 exec, 1'); A(f'ds_max_u32 v4, v5 offset:{NEED}'); A('s_mov_b64 exec, -1')
                A(f'buffer_load_dwordx4 v[{r}:{r+3}], v1, s[36:39], s50 offen offset:{1024*j} nt')
                A('s_nop 0')
            A('s_setprio 1')
            A('s_add_u32 s64, s64, 1')
            A('s_mov_b32 s61, 0')
            A('s_cmp_eq_u32 s60, 0'); A('s_mov_b32 s60, 0'); A(f's_cbranch_scc1 {pr}')
            A(f's_branch {nx}')
            self.lab(no)
            A('s_mov_b32 s61, 1'); A('s_mov_b32 s60, 1')
            A(f's_branch {pr}')
            self.lab(ex)
            A('s_getpc_b64 s[62:63]')
            A('s_branch L_exh')
            A('s_mov_b32 s65, s60')
            A('s_cmp_lg_u32 s60, 0'); A('s_mov_b32 s60, 0'); A(f's_cbranch_scc1 {nx}')
            self.lab(dr)
            A('s_add_u32 s65, s65, 1')
            A('v_mov_b32 v5, s65')
            A(f'ds_write_b32 v57, v5 offset:{F_EX}')
            A('s_cmp_gt_u32 s65, 2'); A('s_cbranch_scc1 L_dfin')
            A('s_mov_b32 s61, s65')
            self.lab(pr)
            A('s_cmp_lt_u32 s21, 2'); A(f's_cbranch_scc1 {pe}')
            if b == 2:
                A('s_cmp_lg_u32 s21, 2'); A(f's_cbranch_scc1 {nf}')
                self.lds_wait(F_Q, 1)
                self.read_q()
                self.lab(nf)
            pb = (b + 1) % 3
            self.wait3(20, 12, 4)
            for n in range(4): A(f'ds_read_b128 v[{64+4*n}:{67+4*n}], v63 offset:{4096*pb + 1024*n}')
            A('s_waitcnt lgkmcnt(0)')
            self.qk(2, 48, [24, 25])
            self.round_chain([24, 25], 26)
            A('v_max3_f32 v8, v24, v25, v12')
            self.ror_reduce('v_max_f32', [8], 8)
            self.xg_reduce('v_max_f32', [8], [9])
            A('v_sub_f32 v9, v12, v8'); A('v_sub_f32 v24, v24, v8'); A('v_sub_f32 v25, v25, v8')
            A('v_mul_f32 v9, v7, v9'); A('v_mul_f32 v24, v7, v24'); A('v_mul_f32 v25, v7, v25')
            A('v_exp_f32 v9, v9'); A('v_exp_f32 v24, v24'); A('v_exp_f32 v25, v25')
            A('v_mov_b32 v12, v8')
            A('v_cvt_pk_bf16_f32 v26, v24, v25')
            A('v_fma_f32 v14, v14, v9, v24')
            A('v_add_f32 v14, v14, v25')
            A('v_mov_b32_dpp v27, v26 row_ror:8 row_mask:0xf bank_mask:0xf')
            for x in range(32, 48): A(f'v_mul_f32 v{x}, v{x}, v9')
            A('v_cndmask_b32 v28, 0, v26, s[14:15]'); A('v_cndmask_b32 v29, 0, v27, s[14:15]')
            A('v_cndmask_b32 v30, v27, 0, s[14:15]'); A('v_cndmask_b32 v31, v26, 0, s[14:15]')
            self.wait3(16, 8, 0)
            vb = 80 + 16 * pb
            for tt in range(8):
                i, h = tt >> 1, tt & 1
                sel = 's31' if h else 's30'
                A(f'v_perm_b32 v{64+2*tt}, v{vb+4+i}, v{vb+i}, {sel}')
                A(f'v_perm_b32 v{65+2*tt}, v{vb+12+i}, v{vb+8+i}, {sel}')
            for tt in range(8):
                d = 32 + 4 * (tt & 3); p = 28 if tt < 4 else 30
                A(f'v_mfma_f32_16x16x16_bf16 v[{d}:{d+3}], v[{64+2*tt}:{65+2*tt}], v[{p}:{p+1}], v[{d}:{d+3}]')
            self.lab(pe)
            A('s_cmp_eq_u32 s60, 0'); A(f's_cbranch_scc1 {nx}')
            A('s_getpc_b64 s[62:63]')
            A('s_branch L_tryf')
            self.lds_wait(L_T, 1, sleep=1, areg=62)
            A(f's_branch {tk}')
            self.lab(nx)
            A('s_add_u32 s21, s21, 1')
        A('s_branch L_dl')
        self.lab('L_tryf')
        A('s_cmp_lg_u32 s59, 0'); A('s_cbranch_scc1 L_ret')
        A(f'ds_read_b32 v5, v57 offset:{F_CH}')
        A('s_waitcnt lgkmcnt(0)')
        A('v_readfirstlane_b32 s48, v5')
        A('s_cmp_ge_u32 s48, s57'); A('s_cbranch_scc1 L_fold')
        A('s_branch L_ret')
        self.lab('L_exh')
        self.stamp(10)
        A('s_setprio 2')
        A(f'ds_write_b32 v57, v6 offset:{F_EX}')
        A('s_cmp_lg_u32 s59, 0'); A('s_cbranch_scc1 L_ret')
        self.lds_wait(F_CH, 's57', areg=57)
        self.lab('L_fold')
        A('s_mov_b32 s59, 1')
        for q in range(4): A(f'ds_read_b128 v[{64+4*q}:{67+4*q}], v11 offset:{L_CH + 1024*q}')
        A(f'ds_read_b32 v8, v10 offset:{L_MA}')
        self.lds_wait(C_L, 's18')
        A(f'ds_read_b32 v24, v10 offset:{L_LA}')
        A('v_max_f32 v25, v8, v12')
        A('v_sub_f32 v9, v12, v25'); A('v_sub_f32 v8, v8, v25')
        A('v_mul_f32 v9, v7, v9'); A('v_mul_f32 v8, v7, v8')
        A('v_exp_f32 v9, v9'); A('v_exp_f32 v8, v8')
        A('v_mov_b32 v12, v25')
        A('s_waitcnt lgkmcnt(0)')
        A('v_mul_f32 v24, 0x3d000000, v24')
        A('v_mul_f32 v14, v14, v9')
        A('v_fmac_f32 v14, v24, v8')
        for x in range(32, 48): A(f'v_mul_f32 v{x}, v{x}, v9')
        for x in range(32, 48): A(f'v_fmac_f32 v{x}, v{x+32}, v8')
        self.lab('L_ret')
        A('s_add_u32 s62, s62, 4'); A('s_addc_u32 s63, s63, 0')
        A('s_setpc_b64 s[62:63]')
        self.lab('L_dfin')
        A('s_setprio 3')
        self.stamp(7)
        for q in range(4): A(f'ds_write_b128 v11, v[{32+4*q}:{35+4*q}] offset:{L_CH + 1024*q}')
        A('v_mov_b32 v24, v12')
        A('v_add_f32_dpp v25, v14, v14 row_ror:8 row_mask:0xf bank_mask:0xf')
        self.xg_reduce('v_add_f32', [25], [9])
        A(f'ds_write_b64 v60, v[24:25] offset:{L_M4}')
        self.lds_inc(C_D)
        A('s_mov_b32 s49, 0x40000')
        self.lab('L_mw')
        A(f'ds_read_b32 v5, v4 offset:{C_D}')
        A(f'ds_read_b128 v[16:19], v61 offset:{L_M4}')
        A(f'ds_read_b128 v[20:23], v61 offset:{L_M4+16}')
        for w in range(4): A(f'ds_read_b128 v[{64+4*w}:{67+4*w}], v59 offset:{L_CH + 4096*w}')
        A('s_waitcnt lgkmcnt(6)')
        A('v_readfirstlane_b32 s48, v5')
        A('s_cmp_ge_u32 s48, 4'); A('s_cbranch_scc1 L_mwd')
        A('s_sub_u32 s49, s49, 1')
        A('s_cbranch_scc0 L_mw')
        self.lab('L_mwd')
        A('s_waitcnt lgkmcnt(4)')
        A('v_max3_f32 v12, v16, v18, v20'); A('v_max_f32 v12, v12, v22')
        for w in range(4): A(f'v_sub_f32 v{16+2*w}, v{16+2*w}, v12')
        for w in range(4): A(f'v_mul_f32 v{16+2*w}, v7, v{16+2*w}')
        for w in range(4): A(f'v_exp_f32 v{16+2*w}, v{16+2*w}')
        A('s_waitcnt lgkmcnt(0)')
        for e in range(4): A(f'v_mul_f32 v{32+e}, v{64+e}, v16')
        for w in range(1, 4):
            for e in range(4): A(f'v_fmac_f32 v{32+e}, v{64+4*w+e}, v{16+2*w}')
        self.embed(range(32, 36))
        A('buffer_store_dwordx4 v[32:35], v58, s[44:47], s56 offen sc1')
        A('s_cmp_lg_u32 s3, 12'); A('s_cbranch_scc1 L_noml')
        A('v_mul_f32 v14, v17, v16')
        for w in range(1, 4): A(f'v_fmac_f32 v14, v{17+2*w}, v{16+2*w}')
        A('s_mov_b64 exec, 0xffff')
        A('buffer_store_dwordx4 v[12:15], v58, s[44:47], s5 offen sc1')
        A('s_mov_b64 exec, -1')
        self.lab('L_noml')
        self.lds_inc(C_O)
        self.stamp(8)
        if self.stamps and not self.o.get('lite'):
            A('s_mul_i32 s70, s64, 100'); A('s_add_u32 s70, s70, s68'); A('s_mov_b32 s71, s69')
        A('s_branch L_fin')

    def proj_result(self):
        A = self.A
        for tt in (0, 4, 1, 5, 2, 6, 3, 7):
            A(f'v_mfma_f32_16x16x32_bf16 v[{24+4*tt}:{27+4*tt}], v[16:19], v[{96+4*tt}:{99+4*tt}], 0')
        A('s_nop 1')
        for k in range(4):
            d0 = 24 + 4 * k; d4 = 24 + 4 * (k + 4)
            A(f'v_cndmask_b32 v{d0+2}, v{d4+1}, v{d0}, s[14:15]')
            A(f'v_cndmask_b32 v{d0+3}, v{d0+1}, v{d4}, s[14:15]')
        A('s_mov_b64 exec, 0xffff')
        for k in range(4):
            d0 = 24 + 4 * k
            A(f'v_add_f32_dpp v{20+k}, v{d0+3}, v{d0+2} row_ror:8 row_mask:0xf bank_mask:0xf')

    def build(self):
        A = self.A; o = self.o; L = self.L
        L.append(HEADER.rstrip())
        L.append(f'; @launch grid=(256,1,1) block=(1024,1,1) lds={LDS_BYTES}')
        L.append(DOC)
        L.append('.amdgcn_target "amdgcn-amd-amdhsa--gfx950"')
        L.append('.text')
        L.append(f'.globl {NAME}_kernel')
        L.append('.p2align 8')
        L.append(f'.type {NAME}_kernel,@function')
        L.append(f'{NAME}_kernel:')
        A('s_cmp_ge_u32 s2, 256')
        A('s_cbranch_scc1 L_end')
        A('s_load_dwordx16 s[4:19], s[0:1], 0')
        A('s_load_dwordx8 s[20:27], s[0:1], 64')
        A('s_load_dwordx2 s[28:29], s[0:1], 96')
        if self.stamps:
            for i in range(70, 96): A(f's_mov_b32 s{i}, 0')
        self.stamp(0)
        A('v_lshrrev_b32 v5, 6, v0')
        A('v_mov_b32 v4, 0')
        A('v_readfirstlane_b32 s3, v5')
        A('v_and_b32 v0, 63, v0')
        A('v_lshrrev_b32 v8, 4, v0')
        A('v_and_b32 v7, 7, v0')
        A('v_lshlrev_b32 v10, 2, v7')
        A('v_and_b32 v12, 8, v0')
        A('v_lshlrev_b32 v14, 15, v12'); A('v_lshl_add_u32 v14, v8, 16, v14'); A('v_lshl_add_u32 v14, v10, 2, v14')
        A('v_and_b32 v2, 1, v0'); A('v_lshlrev_b32 v15, 6, v2'); A('v_lshl_add_u32 v15, v8, 4, v15')
        A('s_and_b32 s49, s2, 1'); A('s_lshl_b32 s49, s49, 9'); A('s_lshl_b32 s48, s3, 6'); A('s_add_u32 s49, s49, s48')
        A('s_bfe_u32 s52, s2, 0x60001')
        A('s_lshl_b32 s48, s49, 13'); A('s_lshl_b32 s50, s52, 7'); A('s_add_u32 s48, s48, s50')
        A('s_lshl_b32 s49, s49, 1'); A('v_add_u32 v15, s49, v15')
        A('s_mov_b32 s42, 0x800000'); A('s_mov_b32 s43, 0x20000')
        A('s_setprio 2')
        A('s_cmp_lt_u32 s2, 128')
        A('s_waitcnt lgkmcnt(0)')
        A('s_load_dword s54, s[28:29], 0')
        A('s_cselect_b32 s40, s10, s20'); A('s_cselect_b32 s41, s11, s21')
        A('s_cselect_b32 s66, s4, s14');  A('s_cselect_b32 s67, s5, s15')
        A('s_cselect_b32 s10, s12, s22'); A('s_cselect_b32 s11, s13, s23')
        A('s_cmp_ge_u32 s3, 8')
        A('s_cbranch_scc1 L_nowq')
        for j in range(8):
            A(f'buffer_load_dwordx4 v[{64+4*j}:{67+4*j}], v14, s[40:43], s48 offen nt')
            if j < 7: A('s_add_u32 s48, s48, 8192')
        A('global_load_dwordx4 v[16:19], v15, s[66:67]')
        self.lab('L_nowq')
        A('v_mov_b32 v6, 1')
        A('v_lshlrev_b32 v1, 4, v0')
        A('v_and_b32 v57, 3, v5')
        A('v_lshl_add_u32 v11, v57, 12, v1')
        A('v_and_b32 v9, 15, v0')
        A('v_lshrrev_b32 v13, 2, v9')
        A('v_lshlrev_b32 v2, 4, v2')
        A('v_lshl_add_u32 v2, v13, 8, v2')
        A('v_lshl_add_u32 v2, v8, 5, v2')
        A('v_and_b32 v13, 2, v0')
        A('v_lshl_add_u32 v2, v13, 10, v2')
        A(f'v_mul_u32_u24 v3, {QSTR}, v7')
        A('v_lshl_add_u32 v3, v8, 5, v3')
        A('v_lshl_add_u32 v3, v12, 1, v3')
        A('s_mov_b32 s30, 0x05040100')
        A('s_mov_b32 s31, 0x07060302')
        A('s_mov_b32 s100, 0xffff0000')
        A('s_mov_b32 s101, 0x3db504f3')
        A('s_lshr_b32 s20, s2, 7')
        A('s_lshr_b32 s22, s2, 6')
        A('s_and_b32 s23, s2, 63')
        A('s_bfe_u32 s48, s2, 0x20003'); A('s_xor_b32 s48, s48, 1'); A('s_lshr_b32 s49, s3, 2'); A('s_or_b32 s49, s49, s48')
        A('s_cselect_b32 s32, s6, s16'); A('s_cselect_b32 s33, s7, s17'); A('s_mov_b32 s34, 0x4000000'); A('s_mov_b32 s35, 0x20000')
        A('s_cselect_b32 s36, s8, s18'); A('s_cselect_b32 s37, s9, s19'); A('s_mov_b32 s38, 0x4000000'); A('s_mov_b32 s39, 0x20000')
        A('s_cselect_b32 s17, 0, 1')
        A('s_cmp_eq_u32 s48, 0'); A('s_cselect_b32 s16, 1, 0'); A('s_cselect_b32 s18, 8, 12')
        A('s_cmp_eq_u32 s17, 0'); A('s_cselect_b32 s18, s18, 4')
        A(f's_mul_i32 s48, s17, {L_QB - L_Q}'); A('v_add_u32 v3, s48, v3')
        A('s_mov_b32 s44, s28'); A('s_mov_b32 s45, s29'); A(f's_mov_b32 s46, {WS_BYTES}'); A('s_mov_b32 s47, 0x20000')
        A('s_and_b32 s4, s2, 7'); A('s_bfe_u32 s7, s2, 0x30004'); A('s_lshl_b32 s7, s7, 3'); A('s_add_u32 s4, s4, s7')
        A('s_bfe_u32 s7, s2, 0x10003')
        A('s_mov_b32 s14, 0x00ff00ff'); A('s_mov_b32 s15, 0x00ff00ff')
        A('s_lshl_b32 s48, s23, 7')
        A(f's_mul_i32 s6, s22, {32*IB}'); A('s_add_u32 s6, s6, s48'); A(f's_add_u32 s6, s6, {WS_I1}')
        A(f's_mul_i32 s5, s22, {4*IB}'); A('s_add_u32 s5, s5, s48'); A(f's_add_u32 s5, s5, {WS_ML}')
        A('s_lshr_b32 s0, s23, 5')
        A('s_lshl_b32 s19, s0, 3'); A('s_and_b32 s48, s23, 7'); A('s_add_u32 s19, s19, s48')
        A('s_add_u32 s1, s22, 3'); A('s_and_b32 s1, s1, 3'); A('s_lshl_b32 s1, s1, 8'); A('s_lshl_b32 s48, s0, 7'); A('s_add_u32 s1, s1, s48')
        A('s_lshr_b32 s48, s3, 2')
        A('s_add_u32 s49, s48, s22'); A('s_and_b32 s49, s49, 3'); A('s_lshl_b32 s49, s49, 22'); A('s_lshl_b32 s50, s23, 16'); A('s_add_u32 s49, s49, s50')
        A('s_lshl_b32 s50, s19, 16'); A(f's_add_u32 s50, s50, {15 << 20}')
        A('s_cmp_eq_u32 s17, 0'); A('s_cselect_b32 s96, s49, s50')
        A('s_lshl_b32 s48, s22, 24'); A('s_add_u32 s96, s96, s48')
        A('s_and_b32 s48, s3, 3'); A('s_lshl_b32 s48, s48, 12'); A('s_add_u32 s96, s96, s48')
        A('s_add_u32 s97, s96, 16384'); A('s_add_u32 s98, s96, 32768'); A('s_add_u32 s99, s96, 49152')
        A('s_cmp_ge_u32 s3, 8')
        A('s_cbranch_scc1 L_young0')
        A('s_lshr_b32 s56, s2, 5'); A(f's_mul_i32 s56, s56, {4*IB}'); A('s_and_b32 s48, s2, 1'); A('s_lshl_b32 s48, s48, 12'); A('s_add_u32 s56, s56, s48')
        A('s_and_b32 s48, s52, 15'); A('s_lshl_b32 s48, s48, 8'); A('s_add_u32 s56, s56, s48'); A(f's_add_u32 s56, s56, {WS_Q}')
        A(f'v_mul_u32_u24 v60, {IB}, v8'); A('v_lshl_add_u32 v60, v9, 4, v60')
        A('v_lshlrev_b32 v7, 3, v10'); A('v_lshl_add_u32 v7, v12, 1, v7')
        A('s_lshl_b32 s48, s3, 8'); A('v_add_u32 v7, s48, v7')
        A('v_mov_b32 v56, 0xffffff00')
        A('s_waitcnt lgkmcnt(0)')
        A('s_barrier')
        self.tag()
        A('s_waitcnt vmcnt(0)')
        for tt in range(8): self.perm_tile(64, tt, 96 + 4 * tt)
        A('s_nop 1')
        self.proj_result()
        A(f'ds_write_b128 v7, v[20:23] offset:{L_QS}')
        A('s_mov_b64 exec, 1')
        A(f'ds_add_rtn_u32 v5, v4, v6 offset:{C_Q}')
        A('s_mov_b64 exec, -1')
        A('s_waitcnt lgkmcnt(0)')
        A('v_readfirstlane_b32 s48, v5')
        self.stamp(1)
        A('s_cmp_lg_u32 s48, 7')
        A('s_cbranch_scc1 L_task')
        A('s_setprio 3')
        for k in range(2): A(f'ds_read_b128 v[{32+4*k}:{35+4*k}], v1 offset:{L_QS + 1024*k}')
        A('s_waitcnt lgkmcnt(0)')
        for e in range(4): A(f'v_add_f32 v{32+e}, v{32+e}, v{36+e}')
        self.xg_reduce('v_add_f32', [32, 33, 34, 35], [36, 37, 38, 39])
        self.embed(range(32, 36))
        A('s_mov_b64 exec, 0xffffffff')
        A('buffer_store_dwordx4 v[32:35], v60, s[44:47], s56 offen sc1')
        A('s_mov_b64 exec, -1')
        A('s_setprio 2')
        A('s_branch L_task')
        self.lab('L_young0')
        A('v_mov_b32 v5, 0xff800000')
        A('v_cmp_gt_u32 vcc, 16, v0')
        A('v_lshlrev_b32 v7, 2, v0')
        A('s_lshl_b32 s48, s3, 8')
        A('v_cndmask_b32 v5, v4, v5, vcc')
        A(f'ds_write_b32 v7, v5 offset:{L_MISC}')
        A('v_add_u32 v9, s48, v7')
        A(f'ds_write_b32 v9, v4 offset:{L_T - 2048}')
        A('s_waitcnt lgkmcnt(0)')
        A('s_barrier')
        self.tag()
        A('s_cmp_ge_u32 s3, 12')
        A('s_cbranch_scc1 L_dyn')
        self.lab('L_task')
        self.task_static()
        A('s_cmp_ge_u32 s3, 8')
        A('s_cbranch_scc1 L_c')
        A('s_cmp_lg_u32 s3, 0'); A('s_cbranch_scc1 L_wo')
        A('s_lshr_b32 s53, s2, 5'); A('s_lshl_b32 s53, s53, 8'); A(f's_add_u32 s53, s53, {WS_T}')
        A('s_lshl_b32 s57, s22, 8'); A('s_lshl_b32 s48, s0, 7'); A('s_add_u32 s57, s57, s48')
        A('s_sub_u32 s62, s1, 32')
        A('s_mov_b32 s52, 4')
        A('s_setprio 3')
        self.lds_wait(F_GO, 1, sleep=2)
        self.lab('L_deal')
        A('s_mov_b32 s51, 0x8000')
        self.lab('L_drt')
        A('s_mov_b32 s66, 1'); A('s_mov_b32 s67, 0')
        A('s_atomic_add_x2 s[66:67], s[28:29], s53 glc')
        A('s_waitcnt lgkmcnt(0)')
        A('s_cmp_eq_u32 s67, s55'); A('s_cbranch_scc1 L_dok')
        A('s_sub_u32 s51, s51, 1'); A('s_cbranch_scc0 L_drt')
        A('s_mov_b32 s66, 0x10000')
        self.lab('L_dok')
        A('s_cmp_lt_u32 s66, 64'); A('s_cselect_b32 s58, s57, s62'); A('s_add_u32 s58, s58, s66')
        A('s_add_u32 s58, s58, 1')
        A(f's_cmp_lt_u32 s66, {NTICK}'); A('s_cselect_b32 s58, s58, 0x10000')
        bi = o.get('bias', 0)
        A(f's_mul_i32 s59, s20, {2 * bi}'); A('s_sub_u32 s59, s66, s59')
        A(f's_cmp_ge_i32 s59, {NTICK + o["rk2"] - bi}'); A('s_cselect_b32 s48, 1, 2')
        A(f's_cmp_ge_i32 s59, {NTICK + o["rk"] - bi}'); A('s_cselect_b32 s48, s48, 3')
        A('v_mov_b32 v8, s58'); A('v_mov_b32 v9, s52'); A('v_mov_b32 v5, s48')
        A(f'ds_write_b32 v4, v5 offset:{WGL}')
        A(f'ds_write_b32 v9, v8 offset:{L_T}')
        A(f's_cmp_ge_u32 s66, {NTICK}'); A('s_cbranch_scc1 L_ddone')
        A('s_add_u32 s52, s52, 4')
        A('s_add_u32 s59, s52, 2'); A(f's_cmp_ge_u32 s66, {NTICK - o["eg"]}'); A('s_cselect_b32 s58, s59, s52')
        self.lds_wait(NEED, 's58', sleep=0)
        A('s_branch L_deal')
        self.lab('L_ddone')
        A('s_setprio 2')
        self.lab('L_wo')
        A('s_mov_b32 s40, s10'); A('s_mov_b32 s41, s11')
        A('s_lshr_b32 s50, s4, 4'); A('s_lshl_b32 s50, s50, 10')
        A('s_and_b32 s51, s4, 3'); A('s_lshl_b32 s51, s51, 5'); A('s_add_u32 s50, s50, s51')
        A('s_bfe_u32 s51, s4, 0x20002'); A('s_add_u32 s50, s50, s51')
        A('s_lshl_b32 s50, s50, 11'); A('s_lshl_b32 s51, s7, 10'); A('s_add_u32 s50, s50, s51'); A('s_lshl_b32 s51, s3, 7'); A('s_add_u32 s50, s50, s51')
        A('v_lshrrev_b32 v8, 4, v0'); A('v_and_b32 v61, 8, v0')
        A('v_lshlrev_b32 v58, 19, v8'); A('v_lshl_add_u32 v58, v10, 2, v58'); A('v_lshl_add_u32 v58, v61, 10, v58')
        A('v_mov_b32 v56, 0xffffff00')
        A('v_and_b32 v60, 1, v0'); A('v_lshlrev_b32 v60, 6, v60'); A('v_lshl_add_u32 v60, v8, 4, v60')
        A('v_bfe_u32 v59, v0, 2, 1'); A(f'v_mul_u32_u24 v59, {IB}, v59')
        A('v_and_b32 v7, 3, v0'); A('v_lshl_add_u32 v59, v7, 5, v59'); A('v_lshl_add_u32 v59, v61, 1, v59')
        A('s_lshl_b32 s53, s20, 5'); A('s_lshl_b32 s48, s7, 4'); A('s_add_u32 s53, s53, s48'); A('s_lshl_b32 s48, s3, 1'); A('s_add_u32 s53, s53, s48')
        A(f's_mul_i32 s53, s53, {IB}'); A('s_lshl_b32 s48, s4, 7'); A('s_add_u32 s53, s53, s48'); A(f's_add_u32 s53, s53, {WS_I2}')
        self.lds_wait(F_EX, 1, sleep=1, areg=57)
        A(f'ds_read_b32 v5, v4 offset:{WGL}'); A('s_waitcnt lgkmcnt(0)'); A('v_readfirstlane_b32 s52, v5')
        self.lds_wait(F_EX, 's52', sleep=1, areg=57)
        A('s_setprio 0')
        for j in range(8):
            A(f'buffer_load_dwordx4 v[{64+4*j}:{67+4*j}], v58, s[40:43], s50 offen nt')
            if j < 7: A(f's_add_u32 s50, s50, {16384 if j != 3 else (128 - 24) * 2048}')
        self.stamp(11)
        A('s_setprio 2')
        A('s_waitcnt vmcnt(0)')
        self.lds_inc(C_W)
        for tt in range(8): self.perm_tile(64, tt, 96 + 4 * tt)
        self.stamp(12)
        if o.get('notail'): A('s_branch L_fin')
        A('s_mov_b32 s49, 0x40000')
        self.lab('L_ow')
        A(f'ds_read_b32 v5, v4 offset:{F_O}')
        A(f'ds_read_b128 v[16:19], v60 offset:{L_O}')
        A('s_waitcnt lgkmcnt(0)')
        A('v_readfirstlane_b32 s48, v5')
        A('s_cmp_ge_u32 s48, 2'); A('s_cbranch_scc1 L_owd')
        A('s_sub_u32 s49, s49, 1')
        A('s_cbranch_scc0 L_ow')
        self.lab('L_owd')
        self.proj_result()
        self.embed(range(20, 24))
        A('buffer_store_dwordx4 v[20:23], v59, s[44:47], s53 offen sc1')
        A('s_mov_b64 exec, -1')
        self.stamp(13)
        A('s_branch L_fin')
        self.lab('L_dyn')
        self.task_dynamic()
        self.lab('L_c')
        A('s_cmp_eq_u32 s3, 11')
        A('s_cbranch_scc1 L_red')
        if o.get('notail'): A('s_branch L_fin')
        A('s_lshr_b32 s40, s4, 4'); A('s_lshl_b32 s41, s20, 2'); A('s_add_u32 s40, s40, s41')
        A('s_cmp_eq_u32 s20, 0'); A(f's_cselect_b32 s53, {o["cw"]}, 0')
        A('s_cmp_lg_u32 s3, 8')
        A('s_cbranch_scc1 L_comb')
        A('s_lshl_b32 s41, s40, 2'); A('s_and_b32 s42, s2, 1'); A('s_add_u32 s41, s41, s42'); A(f's_mul_i32 s41, s41, {IB}'); A(f's_add_u32 s41, s41, {WS_ML}')
        A('s_add_u32 s42, s41, 4096')
        A(f'v_mov_b32 v14, {LOG2E}')
        M = [96 + 4 * k for k in range(8)]
        for k in range(8):
            A(f'v_mov_b32 v{M[k]}, {NEGBIG}'); A(f'v_mov_b32 v{M[k]+2}, 0')
        self.lds_wait(C_O, 4, sleep=1)
        self.lds_wait(C_W, 's53', sleep=1)
        self.mgather([(96, 's41', 's42', True)], few=True)
        A(f'v_max3_f32 v32, v{M[0]}, v{M[1]}, v{M[2]}'); A(f'v_max3_f32 v33, v{M[3]}, v{M[4]}, v{M[5]}'); A(f'v_max3_f32 v32, v32, v{M[6]}, v{M[7]}'); A('v_max_f32 v32, v32, v33')
        self.ror_reduce('v_max_f32', [32], 8)
        self.xg_reduce('v_max_f32', [32], [33])
        A('v_mul_f32 v32, v14, v32')
        for k in range(8): A(f'v_fma_f32 v{16+k}, v{M[k]}, v14, -v32')
        for k in range(8): A(f'v_exp_f32 v{16+k}, v{16+k}')
        A(f'v_mul_f32 v36, v16, v{M[0]+2}')
        A(f'ds_write_b128 v1, v[16:19] offset:{L_CHB}'); A(f'ds_write_b128 v1, v[20:23] offset:{L_CHB+1024}')
        A(f'ds_write_b32 v4, v6 offset:{C_WL}')
        for k in range(1, 8): A(f'v_fmac_f32 v36, v{16+k}, v{M[k]+2}')
        self.ror_reduce('v_add_f32', [36], 8)
        self.xg_reduce('v_add_f32', [36], [37])
        A('v_rcp_f32 v37, v36')
        A('v_mov_b32 v5, 2')
        A('v_fma_f32 v38, -v36, v37, 1.0'); A('v_fma_f32 v37, v38, v37, v37')
        A(f'ds_write_b32 v10, v37 offset:{L_CHB+2048}')
        A(f'ds_write_b32 v4, v5 offset:{C_WL}')
        A('s_branch L_fin')
        self.lab('L_comb')
        A('s_lshl_b32 s40, s40, 5'); A('s_and_b32 s42, s4, 15'); A('s_lshl_b32 s42, s42, 1'); A('s_add_u32 s40, s40, s42')
        A('s_and_b32 s42, s3, 1'); A('s_add_u32 s40, s40, s42'); A(f's_mul_i32 s40, s40, {IB}'); A(f's_add_u32 s40, s40, {WS_I1}')
        A('s_lshl_b32 s42, s42, 6'); A('v_lshrrev_b32 v8, 4, v0'); A('v_add_u32 v12, v10, v8'); A('v_lshlrev_b32 v12, 1, v12'); A('v_add_u32 v12, s42, v12')
        A('s_add_u32 s43, s40, 4096')
        A('v_mov_b32 v15, 0xff')
        for x in range(64, 96): A(f'v_mov_b32 v{x}, 0')
        self.lds_wait(C_O, 4, sleep=1)
        self.lds_wait(C_W, 's53', sleep=1)
        self.stamp(11)
        self.mgather([(64, 's40', 's43', False)], few=True)
        self.stamp(12)
        A('s_mov_b32 s49, 0x40000')
        self.lab('L_ww')
        A(f'ds_read_b32 v5, v4 offset:{C_WL}')
        A(f'ds_read_b128 v[16:19], v1 offset:{L_CHB}'); A(f'ds_read_b128 v[20:23], v1 offset:{L_CHB+1024}')
        A('s_waitcnt lgkmcnt(0)')
        A('v_readfirstlane_b32 s48, v5')
        A('s_cmp_ge_u32 s48, 1'); A('s_cbranch_scc1 L_wwd')
        A('s_sub_u32 s49, s49, 1'); A('s_cbranch_scc0 L_ww')
        self.lab('L_wwd')
        for e in range(4): A(f'v_mul_f32 v{32+e}, v16, v{64+e}')
        for k in range(1, 8):
            if k == 5:
                A(f'ds_read_b32 v5, v4 offset:{C_WL}'); A(f'ds_read_b32 v37, v10 offset:{L_CHB+2048}')
            for e in range(4): A(f'v_fmac_f32 v{32+e}, v{16+k}, v{64+4*k+e}')
        self.quad_reduce(32)
        A('s_waitcnt lgkmcnt(0)')
        A('v_readfirstlane_b32 s48, v5')
        A('s_cmp_ge_u32 s48, 2'); A('s_cbranch_scc1 L_rok')
        self.lds_wait(C_WL, 2, sleep=0)
        A(f'ds_read_b32 v37, v10 offset:{L_CHB+2048}')
        A('s_waitcnt lgkmcnt(0)')
        self.lab('L_rok')
        A('v_mul_f32 v32, v32, v37')
        A('v_cvt_pk_bf16_f32 v32, v32, v32')
        A('s_mov_b64 exec, s[14:15]')
        A(f'ds_write_b16 v12, v32 offset:{L_O}')
        A('s_mov_b64 exec, 1')
        A(f'ds_add_u32 v4, v6 offset:{F_O}')
        A('s_mov_b64 exec, -1')
        self.stamp(13)
        A('s_branch L_fin')
        self.lab('L_red')
        if o.get('notail'):
            A('s_cmp_lg_u32 s2, 0'); A('s_cbranch_scc1 L_fin')
            self.lds_wait(C_O, 4)
            A('v_mov_b32 v13, s55'); A('s_mov_b64 exec, 1'); A('global_store_dword v4, v13, s[28:29]'); A('s_mov_b64 exec, -1')
            A('s_branch L_fin')
        A('s_bfe_u32 s40, s2, 0x20003'); A('s_cmp_lg_u32 s40, 0')
        A('s_cbranch_scc1 L_fin')
        A('s_lshr_b32 s40, s2, 5'); A('s_lshl_b32 s40, s40, 3'); A('s_and_b32 s41, s2, 7'); A('s_add_u32 s40, s40, s41')
        A('s_lshl_b32 s42, s40, 6'); A('v_lshrrev_b32 v8, 4, v0'); A('v_add_u32 v12, v10, v8'); A('v_lshlrev_b32 v12, 1, v12'); A('v_add_u32 v12, s42, v12')
        A(f's_mul_i32 s40, s40, {IB}'); A(f's_add_u32 s40, s40, {WS_I2}')
        A('v_mov_b32 v13, s55'); A('v_mov_b32 v15, 0xff'); A('s_add_u32 s43, s40, 4096')
        if o.get('rw', 1) == 0: self.lds_wait(C_O, 4, sleep=2)
        if o.get('rw', 1) != 2:
            for k in range(8): A(f'buffer_load_dwordx4 v[{64+4*k}:{67+4*k}], v1, s[44:47], {"s40" if k < 4 else "s43"} offen offset:{1024*(k&3)} sc1')
            A('s_waitcnt vmcnt(0)')
        self.lds_wait(C_W, 8, sleep=1)
        self.lds_wait(F_O, 2, sleep=1)
        self.stamp(11)
        self.mgather([(64, 's40', 's43', False)])
        self.stamp(12)
        for k in range(4):
            for e in (0, 2): A(f'v_pk_add_f32 v[{40+4*k+e}:{41+4*k+e}], v[{64+4*k+e}:{65+4*k+e}], v[{80+4*k+e}:{81+4*k+e}]')
        for k in range(2):
            for e in (0, 2): A(f'v_pk_add_f32 v[{40+4*k+e}:{41+4*k+e}], v[{40+4*k+e}:{41+4*k+e}], v[{48+4*k+e}:{49+4*k+e}]')
        for e in (0, 2): A(f'v_pk_add_f32 v[{40+e}:{41+e}], v[{40+e}:{41+e}], v[{44+e}:{45+e}]')
        self.quad_reduce(40)
        A('v_cvt_pk_bf16_f32 v32, v40, v40')
        A('s_mov_b64 exec, s[14:15]')
        A('global_store_short v12, v32, s[24:25]')
        A('s_cmp_lg_u32 s2, 0')
        A('s_cbranch_scc1 L_nogen')
        A('s_mov_b64 exec, 1')
        A('global_store_dword v4, v13, s[28:29]')
        self.lab('L_nogen')
        A('s_mov_b64 exec, -1')
        self.stamp(13)
        if not o.get('lite'): self.lab('L_fin')
        if self.stamps:
            A('s_waitcnt vmcnt(0) lgkmcnt(0)')
            A('s_getreg_b32 s48, hwreg(HW_REG_XCC_ID)')
            A('s_getreg_b32 s49, hwreg(HW_REG_HW_ID)')
            for i in range(28): A(f'v_writelane_b32 v20, s{68+i}, {i}')
            A('v_writelane_b32 v20, s48, 28')
            A('v_writelane_b32 v20, s49, 29')
            A('s_lshl_b32 s48, s2, 4'); A('s_add_u32 s48, s48, s3'); A('s_lshl_b32 s48, s48, 7'); A(f's_add_u32 s48, s48, {STAMP_OFF}')
            A('v_lshlrev_b32 v7, 2, v0'); A('v_add_u32 v7, s48, v7')
            A('s_mov_b64 exec, 0xffffffff')
            A('global_store_dword v7, v20, s[28:29]')
        if o.get('lite'): self.lab('L_fin')
        self.lab('L_end')
        A('s_endpgm')
        L.append('.section .rodata,"a"')
        L.append('.p2align 6')
        L.append(f'.amdhsa_kernel {NAME}_kernel')
        L.append('  .amdhsa_next_free_vgpr 128')
        L.append('  .amdhsa_next_free_sgpr 102')
        L.append('  .amdhsa_accum_offset 128')
        L.append('  .amdhsa_group_segment_fixed_size 0')
        L.append('  .amdhsa_kernarg_size 104')
        L.append('  .amdhsa_user_sgpr_count 2')
        L.append('  .amdhsa_user_sgpr_kernarg_segment_ptr 1')
        L.append('  .amdhsa_system_sgpr_workgroup_id_x 1')
        L.append('.end_amdhsa_kernel')
        return '\n'.join(L) + '\n'

if __name__ == '__main__':
    out = sys.argv[1]
    stamps = 'stamps' in sys.argv[2:]
    opts = {}
    for a in sys.argv[2:]:
        if '=' in a:
            k, v = a.split('='); opts[k] = int(v, 0)
    open(out, 'w').write(Gen(stamps, opts).build())
```
